```python
import torch

def _softmax(x, axis=-1):
    return torch.softmax(x, dim=axis)
def _gelu(x):
    return torch.nn.functional.gelu(x, approximate="tanh")
def _silu(x):
    return torch.nn.functional.silu(x)
def _sigmoid(x):
    return torch.sigmoid(x)
def _layernorm(x, axis=-1, eps=1e-5):
    m = x.mean(dim=axis, keepdim=True)
    v = x.var(dim=axis, keepdim=True, unbiased=False)
    return (x - m) / torch.sqrt(v + eps)
def _scatter_add(tgt, idx, src, axis=0):
    return tgt.clone().index_add_(axis, idx, src)
def _segment_sum(src, seg, n):
    out = torch.zeros((n,) + src.shape[1:], dtype=src.dtype)
    return out.index_add_(0, seg, src)
def _pad(x, pw):
    flat = tuple(v for pair in reversed(pw) for v in pair)
    return torch.nn.functional.pad(x, flat)

kernel_name = 'sequential_preLN__mha_block__mixer_channel_mlp__prompt'

def setup_inputs():

    _w = (lambda a: (lambda t: t.to(torch.bfloat16) if t.is_floating_point() else t)(torch.as_tensor(a)))
    def _A_setup():
        B, S, D, H = 1, 2048, 512, 32
        return {
            "x": _w((lambda *s: torch.randn(*s, dtype=torch.bfloat16) * 0.05)(B, S, D)),
            "wqkv": _w((lambda *s: torch.randn(*s, dtype=torch.bfloat16) * 0.05)(D, 3 * D)),
            "wo": _w((lambda *s: torch.randn(*s, dtype=torch.bfloat16) * 0.05)(D, D)),
        }
    _A_in = _A_setup()

    def _B_setup():
        B, S, D, F = 1, 2048, 512, 1792
        return {
            "x": _w((lambda *s: torch.randn(*s, dtype=torch.bfloat16) * 0.05)(B, S, D)),
            "w1": _w((lambda *s: torch.randn(*s, dtype=torch.bfloat16) * 3.2)(D, F) * (D ** -0.5)),
            "b1": _w((lambda *s: torch.randn(*s, dtype=torch.bfloat16) * 1.6)(F)),
            "w2": _w((lambda *s: torch.randn(*s, dtype=torch.bfloat16) * 0.05)(F, D) * (F ** -0.5)),
            "b2": _w((lambda *s: torch.randn(*s, dtype=torch.bfloat16) * 0.1)(D)),
        }
    _B_in = _B_setup()

    return {
        "A_x": _A_in["x"],
        "A_wqkv": _A_in["wqkv"],
        "A_wo": _A_in["wo"],
        "B_x": _B_in["x"],
        "B_w1": _B_in["w1"],
        "B_b1": _B_in["b1"],
        "B_w2": _B_in["w2"],
        "B_b2": _B_in["b2"],
    }

def reference(A_x, A_wqkv, A_wo, B_x, B_w1, B_b1, B_w2, B_b2):
    def _A_ref(x, wqkv, wo):
        B, S, D = x.shape
        H = 32
        Dh = D // H
        qkv = (lambda x, *d: x.permute(*d))((x @ wqkv).reshape(B, S, 3, H, Dh), 2, 0, 3, 1, 4)
        q, k, v = qkv[0], qkv[1], qkv[2]
        scores = torch.einsum("bhqd,bhkd->bhqk", q, k) * (Dh ** -0.5)
        p = _softmax(scores, axis=-1)
        o = torch.einsum("bhqk,bhkd->bhqd", p, v)
        return (lambda x, *d: x.permute(*d))(o, 0, 2, 1, 3).reshape(B, S, D) @ wo

    def _B_ref(x, w1, b1, w2, b2):
        y = _layernorm(x, axis=-1)
        h = _gelu(torch.einsum("bsd,df->bsf", y, w1) + b1)
        return torch.einsum("bsf,fd->bsd", h, w2) + b2

    x = A_x
    h = x + _A_ref(_layernorm(x, axis=-1), A_wqkv, A_wo)
    h2 = h + _B_ref(_layernorm(h, axis=-1), B_w1, B_b1, B_w2, B_b2)
    return h2
```

```python
import struct
def v(n): return f"v{n}"
def vr(n, c): return f"v[{n}:{n+c-1}]"
def a(n): return f"a{n}"
def ar(n, c): return f"a[{n}:{n+c-1}]"
def s(n): return f"s{n}"
def sr(n, c): return f"s[{n}:{n+c-1}]"
def f32(x): return "0x%08x" % struct.unpack("<I", struct.pack("<f", x))[0]

class Kern:
    def __init__(self, name, grid, block, lds, nvgpr, nsgpr=96, accum=None):
        self.name = name; self.grid = grid; self.block = block; self.lds = lds
        self.nvgpr = nvgpr; self.nsgpr = nsgpr
        self.accum = accum if accum is not None else ((nvgpr + 3) // 4 * 4)
        self.L = []
        self.lab = 0
    def __call__(self, line):
        for l in line.split("\n"):
            l = l.strip()
            if l: self.L.append("    " + l if not l.endswith(":") else l)
    def label(self, base="L"):
        self.lab += 1
        return f"{self.name}_{base}{self.lab}"
    def srd(self, sreg, ptr_lo, nbytes):
        self(f"s_mov_b32 s{sreg}, s{ptr_lo}")
        self(f"s_mov_b32 s{sreg+1}, s{ptr_lo+1}")
        self(f"s_mov_b32 s{sreg+2}, {nbytes}")
        self(f"s_mov_b32 s{sreg+3}, 0x00020000")
    def text(self):
        h = f".globl {self.name}\n.p2align 8\n.type {self.name},@function\n{self.name}:\n"
        return h + "\n".join(self.L) + "\n"
    def desc(self):
        return f""".amdhsa_kernel {self.name}
  .amdhsa_next_free_vgpr {self.nvgpr}
  .amdhsa_next_free_sgpr {self.nsgpr}
  .amdhsa_accum_offset {self.accum}
  .amdhsa_group_segment_fixed_size 0
  .amdhsa_kernarg_size 88
  .amdhsa_user_sgpr_count 2
  .amdhsa_user_sgpr_kernarg_segment_ptr 1
  .amdhsa_system_sgpr_workgroup_id_x 1
.end_amdhsa_kernel
"""
    def launch_line(self):
        g = self.grid; b = self.block
        return f"; @launch kernel={self.name} grid=({g},1,1) block=({b},1,1) lds={self.lds}\n"

HEADER = """; Kernarg layout for this problem (88 bytes, ptrs only, base s[0:1]):
"""
def build(kernels, path):
    src = HEADER
    for k in kernels: src += k.launch_line()
    src += '.amdgcn_target "amdgcn-amd-amdhsa--gfx950"\n.text\n'
    for k in kernels: src += k.text()
    src += '.section .rodata,"a"\n.p2align 6\n'
    for k in kernels: src += k.desc()
    open(path, "w").write(src)
    return src

WS_Q = 0
WS_K = 2 << 20
WS_V = 4 << 20
WS_O = 6 << 20
WS_H = 8 << 20
WS_G = 10 << 20
WS_END = 18 << 20

STAMP_BASE = 64 << 20
def stamp(k, idx, on=True):
    if not on: return
    k(f"s_memtime s[{60+2*idx}:{61+2*idx}]")
def stamp_rt(k, idx):
    k(f"s_memrealtime s[{60+2*idx}:{61+2*idx}]")
def stamp_flush(k, n, ws_lo, wave_sgpr, nwaves):
    k("s_waitcnt lgkmcnt(0)")
    k(f"s_add_u32 s56, s{ws_lo}, {STAMP_BASE}")
    k(f"s_addc_u32 s57, s{ws_lo+1}, 0")
    k("s_mov_b32 s58, 0x1000000")
    k("s_mov_b32 s59, 0x00020000")
    k(f"s_mul_i32 s55, s2, {nwaves}")
    k(f"s_add_u32 s55, s55, s{wave_sgpr}")
    k("s_lshl_b32 s55, s55, 6")
    k("v_mov_b32 v1, s55")
    k("s_mov_b64 exec, 1")
    for i in range(n):
        k(f"v_mov_b32 v2, s{60+2*i}")
        k(f"buffer_store_dword v2, v1, s[56:59], 0 offen offset:{4*i}")
    k("s_waitcnt vmcnt(0)")
```

```python
from dsl import *

def make_att(ST=False, UNR=8):
    k = Kern("att_kernel", 256, 512, 131072 + 4096, 112)
    Q=4; KF=[8,12]; VF0=[16,20]; VF1=[24,28]; P=32; S=[40,56]; O=72; NM=88
    k("s_cmp_ge_u32 s2, 256")
    k("s_cbranch_scc1 att_done")
    if ST: stamp_rt(k, 0)
    stamp(k, 1, ST)
    k("s_load_dwordx2 s[16:17], s[0:1], 80")
    k("s_and_b32 s24, s2, 7")
    k("s_lshr_b32 s25, s2, 3")
    k("s_lshl_b32 s20, s24, 2")
    k("s_and_b32 s26, s25, 3")
    k("s_add_u32 s20, s20, s26")
    k("s_lshr_b32 s21, s25, 2")
    k("v_lshrrev_b32 v2, 6, v0")
    k("v_and_b32 v1, 63, v0")
    k("v_readfirstlane_b32 s22, v2")
    k("v_lshlrev_b32 v2, 4, v1")
    k("s_waitcnt lgkmcnt(0)")
    k("s_mov_b32 s18, %d" % (8 << 20))
    k("s_mov_b32 s19, 0x00020000")
    k("s_lshl_b32 s23, s20, 16")
    k("s_lshl_b32 s26, s21, 3")
    k("s_add_u32 s27, s26, s22")
    k("s_lshl_b32 s26, s27, 10")
    k("s_add_u32 s26, s26, s23")
    k(f"buffer_load_dwordx4 {vr(Q,4)}, v2, s[16:19], s26 offen")
    k("s_and_b32 s26, s22, 3")
    k("s_lshl_b32 s26, s26, 10")
    k("s_lshr_b32 s28, s22, 2")
    k("s_lshl_b32 s29, s28, 16")
    k("s_add_u32 s29, s29, s26")
    k("s_lshl_b32 s28, s28, 21")
    k(f"s_add_u32 s28, s28, {WS_K}")
    k("s_add_u32 s28, s28, s23")
    k("s_add_u32 s28, s28, s26")
    for c in range(16):
        k(f"s_add_u32 m0, s29, {c*4096}")
        k(f"s_add_u32 s26, s28, {c*4096}")
        k(f"buffer_load_dwordx4 v2, s[16:19], s26 offen lds")
    stamp(k, 2, ST)
    k("v_lshrrev_b32 v3, 5, v1")
    k("v_lshlrev_b32 v3, 8, v3")
    k("v_and_b32 v104, 15, v1")
    k("v_lshl_add_u32 v3, v104, 4, v3")
    k("v_add_u32 v3, 0x10000, v3")
    k("v_mov_b32 v106, v2")
    k("v_mov_b32 v107, v3")
    for r in range(16, 32):
        k(f"v_mov_b32 v{r}, 0x3f803f80")
    k("s_mov_b32 s34, 0x0000ffff")
    k("s_mov_b32 s35, 0x0000ffff")
    k("s_mov_b32 s36, 0")
    k("s_mov_b32 s37, 1")
    k("s_waitcnt vmcnt(13)")
    k("s_barrier")
    stamp(k, 3, ST)
    k("att_retry:")
    k("v_mov_b32 v104, 0xff800000")
    k("v_mov_b32 v105, v106")
    k("s_mov_b32 s38, 0")
    k("att_maxloop:")
    k(f"ds_read_b128 {vr(KF[0],4)}, v105")
    k("v_add_u32 v105, 1024, v105")
    k("s_waitcnt lgkmcnt(0)")
    k(f"v_mfma_f32_32x32x16_bf16 {vr(S[0],16)}, {vr(KF[0],4)}, {vr(Q,4)}, 0")
    k("s_nop 15")
    for r in range(0, 16, 2):
        k(f"v_max3_f32 v104, v{S[0]+r}, v{S[0]+r+1}, v104")
    k("s_add_u32 s38, s38, 1")
    k("s_cmp_lt_u32 s38, s37")
    k("s_cbranch_scc1 att_maxloop")
    k("v_mov_b32 v105, v104")
    k("s_nop 1")
    k("v_permlane32_swap_b32 v104, v105")
    k("v_mov_b32 v2, v106")
    k("v_mov_b32 v3, v107")
    k("v_max_f32 v104, v104, v105")
    k(f"ds_read_b128 {vr(KF[1],4)}, v2 offset:1024")
    k("s_mov_b64 exec, s[34:35]")
    k(f"ds_read_b128 {vr(VF0[0],4)}, v3")
    k("s_mov_b64 exec, -1")
    k(f"ds_read_b128 {vr(KF[0],4)}, v2")
    for r in range(16):
        k(f"v_sub_f32 v{NM+r}, 0, v104")
    for r in range(16):
        k(f"v_mov_b32 v{O+r}, 0")
    for r in range(4):
        k(f"v_mov_b32 v{P+4+r}, 0")
    k("s_waitcnt lgkmcnt(0)")
    k(f"v_mfma_f32_32x32x16_bf16 {vr(S[0],16)}, {vr(KF[0],4)}, {vr(Q,4)}, {vr(NM,16)}")
    k("s_nop 7")
    def body():
        for u in range(UNR):
            b = u & 1; nb = b ^ 1
            Sc = S[b]; Sn = S[nb]
            k("s_waitcnt lgkmcnt(0)")
            k(f"v_mfma_f32_32x32x16_bf16 {vr(Sn,16)}, {vr(KF[nb],4)}, {vr(Q,4)}, {vr(NM,16)}")
            k(f"ds_read_b128 {vr(KF[b],4)}, v2 offset:{(u+2)*1024}")
            k("s_mov_b64 exec, s[34:35]")
            k(f"ds_read_b128 {vr(VF0[nb],4)}, v3 offset:{(u+1)*1024}")
            k(f"ds_read_b128 {vr(VF1[b],4)}, v3 offset:{u*1024+512}")
            k("s_mov_b64 exec, -1")
            for r in range(6):
                k(f"v_exp_f32 v{Sc+r}, v{Sc+r}")
            k(f"v_mfma_f32_32x32x16_bf16 {vr(O,16)}, {vr(VF1[nb],4)}, {vr(P+4,4)}, {vr(O,16)}")
            for r in range(6, 8):
                k(f"v_exp_f32 v{Sc+r}, v{Sc+r}")
            for r in range(4):
                k(f"v_cvt_pk_bf16_f32 v{P+r}, v{Sc+2*r}, v{Sc+2*r+1}")
            for r in range(8, 11):
                k(f"v_exp_f32 v{Sc+r}, v{Sc+r}")
            k(f"v_mfma_f32_32x32x16_bf16 {vr(O,16)}, {vr(VF0[b],4)}, {vr(P,4)}, {vr(O,16)}")
            for r in range(11, 16):
                k(f"v_exp_f32 v{Sc+r}, v{Sc+r}")
            for r in range(4):
                k(f"v_cvt_pk_bf16_f32 v{P+4+r}, v{Sc+8+2*r}, v{Sc+8+2*r+1}")
        k(f"v_add_u32 v2, {UNR*1024}, v2")
        k(f"v_add_u32 v3, {UNR*1024}, v3")
    NIT = 64 // UNR
    k("s_mov_b32 s38, 0")
    k("s_cmp_lg_u32 s36, 0")
    k("s_cbranch_scc1 att_loop")
    body()
    k("s_waitcnt vmcnt(6)")
    k("s_barrier")
    body()
    k("s_waitcnt vmcnt(0)")
    k("s_barrier")
    k("s_mov_b32 s38, 2")
    k("att_loop:")
    body()
    k("s_add_u32 s38, s38, 1")
    k(f"s_cmp_lt_u32 s38, {NIT}")
    k("s_cbranch_scc1 att_loop")
    stamp(k, 4, ST)
    k("s_waitcnt lgkmcnt(0)")
    k(f"v_mfma_f32_32x32x16_bf16 {vr(O,16)}, {vr(VF1[(UNR-1)&1],4)}, {vr(P+4,4)}, {vr(O,16)}")
    k("s_nop 15")
    k(f"v_add_f32 v104, |v{O}|, |v{O+1}|")
    k(f"v_add_f32 v105, |v{O+2}|, |v{O+3}|")
    k(f"v_add_f32 v108, |v{O+4}|, |v{O+5}|")
    k(f"v_add_f32 v109, |v{O+6}|, |v{O+7}|")
    k("v_add_f32 v104, v104, v105")
    k("v_add_f32 v108, v108, v109")
    k("v_add_f32 v104, v104, v108")
    k(f"v_mul_f32 v104, {f32(2.0**-20)}, v104")
    k(f"v_add_f32 v104, v104, v{O+8}")
    k(f"v_mov_b32 v108, {f32(2.0**100)}")
    k("v_cmp_nlt_f32 vcc, v104, v108")
    k("s_nop 3")
    k("s_cmp_eq_u64 vcc, 0")
    k("s_cbranch_scc1 att_ok")
    k("s_cmp_lg_u32 s36, 0")
    k("s_cbranch_scc1 att_ok")
    k("s_mov_b32 s36, 1")
    k("s_mov_b32 s37, 64")
    k("s_branch att_retry")
    k("att_ok:")
    k(f"v_rcp_f32 v104, v{O+8}")
    k("s_nop 0")
    for r in range(8):
        k(f"v_mul_f32 v{O+r}, v{O+r}, v104")
    for r in range(4):
        k(f"v_cvt_pk_bf16_f32 v{P+r}, v{O+2*r}, v{O+2*r+1}")
    k("s_lshl_b32 s26, s27, 15")
    k("s_lshl_b32 s28, s20, 10")
    k("s_add_u32 s26, s26, s28")
    k(f"s_add_u32 s26, s26, {WS_O}")
    k(f"buffer_store_dwordx4 {vr(P,4)}, v106, s[16:19], s26 offen")
    stamp(k, 5, ST)
    k("s_waitcnt vmcnt(0)")
    if ST:
        stamp(k, 6, ST)
        k("s_waitcnt lgkmcnt(0)")
        stamp_rt(k, 7)
        stamp_flush(k, 8, 16, 22, 8)
    k("att_done:")
    k("s_endpgm")
    return k

if __name__ == "__main__":
    from k_qkv import make_qkv
    build([make_qkv(), make_att()], "qa.s")
    build([make_att(True)], "att_st.s")
```

```python
from dsl import *

def make_g64(kind, ST=False):
    name = kind + "_kernel"
    KS = 32 if kind == "wo" else 112
    NCH = KS // 8
    NS = 4 if kind == "wo" else 5
    k = Kern(name, 256, 512, NS*32768, 128)
    A_WS = WS_O if kind == "wo" else WS_G
    k("s_cmp_ge_u32 s2, 256")
    k(f"s_cbranch_scc1 {name}_done")
    if ST: stamp_rt(k, 0)
    stamp(k, 1, ST)
    k("s_load_dwordx2 s[16:17], s[0:1], 80")
    if kind == "wo":
        k("s_load_dwordx2 s[4:5], s[0:1], 16")
        k("s_load_dwordx2 s[6:7], s[0:1], 0")
    else:
        k("s_load_dwordx2 s[4:5], s[0:1], 48")
        k("s_load_dwordx4 s[40:43], s[0:1], 56")
    k("s_and_b32 s24, s2, 7")
    k("s_lshr_b32 s25, s2, 3")
    k("s_lshl_b32 s20, s24, 2")
    k("s_and_b32 s26, s25, 3")
    k("s_add_u32 s20, s20, s26")
    k("s_lshr_b32 s21, s25, 2")
    k("v_lshrrev_b32 v2, 6, v0")
    k("v_and_b32 v1, 63, v0")
    k("v_readfirstlane_b32 s22, v2")
    k("v_lshlrev_b32 v2, 4, v1")
    k("s_waitcnt lgkmcnt(0)")
    k("s_mov_b32 s18, %d" % WS_END)
    k("s_mov_b32 s19, 0x00020000")
    k.srd(8, 4, KS*16*1024)
    k("s_cmp_lt_u32 s22, 4")
    k(f"s_cbranch_scc1 {name}_cons")
    k("s_sub_u32 s23, s22, 4")
    k("v_lshrrev_b32 v3, 3, v1")
    k("v_and_b32 v4, 7, v1")
    k("v_bfe_u32 v5, v1, 4, 1")
    k("v_lshlrev_b32 v5, 2, v5")
    k("v_xor_b32 v4, v4, v5")
    k("v_lshlrev_b32 v4, 4, v4")
    k("v_lshl_add_u32 v3, v3, 10, v4")
    k("s_lshl_b32 s26, s20, 1")
    k("s_lshr_b32 s27, s23, 1")
    k("s_add_u32 s26, s26, s27")
    k(f"s_mul_i32 s30, s26, {KS*1024}")
    k("s_and_b32 s27, s23, 1")
    k("s_lshl_b32 s28, s27, 12")
    k("s_add_u32 s30, s30, s28")
    k(f"s_add_u32 s30, s30, {A_WS}")
    k("s_lshl_b32 s31, s23, 12")
    k("s_lshl_b32 s32, s23, 15")
    k("s_lshl_b32 s26, s21, 7")
    k("s_add_u32 s32, s32, s26")
    k("s_lshl_b32 s33, s23, 12")
    k("s_add_u32 s33, s33, 16384")
    def dma_chunk_static(c):
        slot = (c % NS) * 32768
        for n in range(4):
            k(f"s_add_u32 m0, s31, {slot + n*1024}")
            k(f"s_add_u32 s26, s30, {c*8192 + n*1024}")
            k(f"buffer_load_dwordx4 v2, s[16:19], s26 offen lds")
        for n in range(4):
            k(f"s_add_u32 m0, s33, {slot + n*1024}")
            k(f"s_add_u32 s26, s32, {c*131072 + n*8192}")
            k(f"buffer_load_dwordx4 v3, s[8:11], s26 offen lds")
    for c in range(min(NS, NCH)): dma_chunk_static(c)
    stamp(k, 2, ST)
    issued = min(NS, NCH)
    for c in range(NCH):
        k(f"s_waitcnt vmcnt({min(63, 8*(issued - 1 - c))})")
        k("s_barrier")
        if c >= 2 and issued < NCH and (c - 2) + NS == issued:
            dma_chunk_static(issued); issued += 1
    if ST:
        stamp(k, 3, ST); stamp(k, 4, ST); stamp(k, 5, ST); stamp(k, 6, ST)
        k("s_waitcnt lgkmcnt(0)")
        stamp_rt(k, 7)
        stamp_flush(k, 8, 16, 22, 8)
    k("s_endpgm")
    k(f"{name}_cons:")
    k("s_lshr_b32 s23, s22, 1")
    k("s_and_b32 s24, s22, 1")
    k("v_and_b32 v3, 31, v1")
    k("v_lshrrev_b32 v4, 5, v1")
    if kind == "wo":
        k.srd(12, 6, 2048*1024)
        k("v_lshlrev_b32 v5, 10, v3")
        k("v_lshl_add_u32 v5, v4, 3, v5")
        k("s_lshl_b32 s26, s20, 16")
        k("s_lshl_b32 s27, s23, 15")
        k("s_add_u32 s26, s26, s27")
        k("s_lshl_b32 s27, s21, 7")
        k("s_add_u32 s26, s26, s27")
        k("s_lshl_b32 s27, s24, 6")
        k("s_add_u32 s26, s26, s27")
        for rr in range(4):
            k(f"buffer_load_dwordx2 {vr(96+2*rr,2)}, v5, s[12:15], s26 offen offset:{rr*16}")
    else:
        k.srd(12, 40, 1024)
        k.srd(44, 42, 2048*1024)
        k("s_lshl_b32 s26, s20, 1")
        k("s_add_u32 s26, s26, s23")
        k("s_lshl_b32 s26, s26, 15")
        k("s_lshl_b32 s27, s21, 12")
        k("s_add_u32 s26, s26, s27")
        k("s_lshl_b32 s27, s24, 11")
        k("s_add_u32 s26, s26, s27")
        k(f"s_add_u32 s26, s26, {WS_H}")
        k(f"buffer_load_dwordx4 v[96:99], v2, s[16:19], s26 offen")
        k(f"buffer_load_dwordx4 v[100:103], v2, s[16:19], s26 offen offset:1024")
        k("v_lshlrev_b32 v5, 3, v4")
        k("s_lshl_b32 s26, s21, 7")
        k("s_lshl_b32 s27, s24, 6")
        k("s_add_u32 s26, s26, s27")
        for rr in range(4):
            k(f"buffer_load_dwordx2 {vr(104+2*rr,2)}, v5, s[12:15], s26 offen offset:{rr*16}")
    k("s_lshl_b32 s26, s23, 13")
    k("v_add_u32 v6, s26, v2")
    k("v_bfe_u32 v7, v1, 2, 2")
    k("v_lshl_add_u32 v8, v4, 2, v7")
    k("v_lshlrev_b32 v8, 7, v8")
    k("v_lshrrev_b32 v7, 1, v7")
    k("v_xor_b32 v7, s24, v7")
    k("v_lshl_add_u32 v8, v7, 6, v8")
    k("v_bfe_u32 v7, v1, 4, 1")
    k("v_lshl_add_u32 v8, v7, 5, v8")
    k("v_and_b32 v7, 3, v1")
    k("v_lshl_add_u32 v8, v7, 3, v8")
    k("v_add_u32 v7, 16384, v8")
    for r in range(64, 80): k(f"v_mov_b32 v{r}, 0")
    def fa(S): return 16 + 8*(S & 3)
    def fw(S): return 20 + 8*(S & 3)
    def reads(S, nxt):
        s_ = S & 7
        ra = "v12" if nxt else "v10"; rw = "v13" if nxt else "v11"
        k(f"ds_read_b128 {vr(fa(S),4)}, {ra} offset:{s_*1024}")
        k(f"ds_read_b64_tr_b16 {vr(fw(S),2)}, {rw} offset:{s_*2048}")
        k(f"ds_read_b64_tr_b16 {vr(fw(S)+2,2)}, {rw} offset:{s_*2048+1024}")
    k("v_mov_b32 v10, v6")
    k("v_mov_b32 v11, v7")
    k("s_mov_b32 s34, 0")
    k("s_mov_b32 s35, 0")
    k("s_barrier")
    stamp(k, 2, ST)
    for S in range(4): reads(S, False)
    def chunk_body(last):
        for s_ in range(8):
            if s_ == 4 and not last:
                k(f"s_add_u32 s34, s34, 32768")
                k(f"s_cmp_eq_u32 s34, {NS*32768}")
                k("s_cselect_b32 s34, 0, s34")
                k("v_add_u32 v12, s34, v6")
                k("v_add_u32 v13, s34, v7")
                k("s_barrier")
            if last and s_ >= 4:
                k(f"s_waitcnt lgkmcnt({3*(7-s_)})")
            else:
                k("s_waitcnt lgkmcnt(9)")
            k(f"v_mfma_f32_32x32x16_bf16 v[64:79], {vr(fw(s_),4)}, {vr(fa(s_),4)}, v[64:79]")
            if s_ < 4: reads(s_+4, False)
            elif not last: reads(s_+4, True)
        if not last:
            k("v_mov_b32 v10, v12")
            k("v_mov_b32 v11, v13")
    lab = f"{name}_loop"
    k(f"{lab}:")
    chunk_body(False)
    k("s_add_u32 s35, s35, 1")
    k(f"s_cmp_lt_u32 s35, {NCH-1}")
    k(f"s_cbranch_scc1 {lab}")
    chunk_body(True)
    stamp(k, 3, ST)
    k("s_waitcnt vmcnt(0)")
    k("s_nop 15")
    if kind == "wo":
        for rr in range(4):
            for i in range(2):
                d = 96 + 2*rr + i
                k(f"v_lshlrev_b32 v80, 16, v{d}")
                k(f"v_and_b32 v81, 0xffff0000, v{d}")
                k(f"v_add_f32 v{64+4*rr+2*i}, v{64+4*rr+2*i}, v80")
                k(f"v_add_f32 v{65+4*rr+2*i}, v{65+4*rr+2*i}, v81")
        for r in range(8):
            k(f"v_cvt_pk_bf16_f32 v{84+r}, v{64+2*r}, v{65+2*r}")
        k("s_lshl_b32 s26, s20, 1")
        k("s_add_u32 s26, s26, s23")
        k("s_lshl_b32 s26, s26, 15")
        k("s_lshl_b32 s27, s21, 12")
        k("s_add_u32 s26, s26, s27")
        k("s_lshl_b32 s27, s24, 11")
        k("s_add_u32 s26, s26, s27")
        k(f"s_add_u32 s26, s26, {WS_H}")
        k(f"buffer_store_dwordx4 v[84:87], v2, s[16:19], s26 offen")
        k(f"buffer_store_dwordx4 v[88:91], v2, s[16:19], s26 offen offset:1024")
    else:
        for r in range(8):
            k(f"v_lshlrev_b32 v80, 16, v{96+r}")
            k(f"v_and_b32 v81, 0xffff0000, v{96+r}")
            k(f"v_lshlrev_b32 v82, 16, v{104+r}")
            k(f"v_and_b32 v83, 0xffff0000, v{104+r}")
            k(f"v_add_f32 v{64+2*r}, v{64+2*r}, v82")
            k(f"v_add_f32 v{65+2*r}, v{65+2*r}, v83")
            k(f"v_add_f32 v{64+2*r}, v{64+2*r}, v80")
            k(f"v_add_f32 v{65+2*r}, v{65+2*r}, v81")
        for r in range(8):
            k(f"v_cvt_pk_bf16_f32 v{84+r}, v{64+2*r}, v{65+2*r}")
        k("s_nop 1")
        for pr in range(2):
            k(f"v_permlane32_swap_b32 v{84+4*pr}, v{86+4*pr}")
            k(f"v_permlane32_swap_b32 v{85+4*pr}, v{87+4*pr}")
        k("v_lshlrev_b32 v5, 10, v3")
        k("v_lshl_add_u32 v5, v4, 4, v5")
        k("s_lshl_b32 s26, s20, 16")
        k("s_lshl_b32 s27, s23, 15")
        k("s_add_u32 s26, s26, s27")
        k("s_lshl_b32 s27, s21, 7")
        k("s_add_u32 s26, s26, s27")
        k("s_lshl_b32 s27, s24, 6")
        k("s_add_u32 s26, s26, s27")
        k(f"buffer_store_dwordx4 v[84:87], v5, s[44:47], s26 offen")
        k(f"buffer_store_dwordx4 v[88:91], v5, s[44:47], s26 offen offset:32")
    stamp(k, 4, ST); stamp(k, 5, ST)
    k("s_waitcnt vmcnt(0)")
    if ST:
        stamp(k, 6, ST)
        k("s_waitcnt lgkmcnt(0)")
        stamp_rt(k, 7)
        stamp_flush(k, 8, 16, 22, 8)
    k(f"{name}_done:")
    k("s_endpgm")
    return k
```

```python
from dsl import *

def make_mlp1(ST=False):
    name = "mlp1_kernel"
    CSB = 131072
    k = Kern(name, 224, 512, CSB + 1024, 256)
    k("s_cmp_ge_u32 s2, 224")
    k(f"s_cbranch_scc1 {name}_done")
    if ST: stamp_rt(k, 0)
    stamp(k, 1, ST)
    k("s_load_dwordx2 s[16:17], s[0:1], 80")
    k("s_load_dwordx4 s[4:7], s[0:1], 32")
    k("s_and_b32 s24, s2, 7")
    k("s_lshr_b32 s25, s2, 3")
    k("s_lshr_b32 s20, s24, 1")
    k("s_lshl_b32 s20, s20, 2")
    k("s_and_b32 s26, s25, 3")
    k("s_add_u32 s20, s20, s26")
    k("s_and_b32 s21, s24, 1")
    k("s_mul_i32 s21, s21, 7")
    k("s_lshr_b32 s26, s25, 2")
    k("s_add_u32 s21, s21, s26")
    k("v_lshrrev_b32 v2, 6, v0")
    k("v_and_b32 v1, 63, v0")
    k("v_readfirstlane_b32 s22, v2")
    k("v_lshlrev_b32 v2, 4, v1")
    k("v_lshrrev_b32 v4, 5, v1")
    k("v_bfe_u32 v7, v1, 2, 2")
    k("v_lshl_add_u32 v8, v4, 2, v7")
    k("v_lshlrev_b32 v8, 8, v8")
    k("v_lshl_add_u32 v8, v7, 6, v8")
    k("v_bfe_u32 v7, v1, 4, 1")
    k("v_lshl_add_u32 v8, v7, 5, v8")
    k("v_and_b32 v7, 3, v1")
    k("v_lshl_add_u32 v8, v7, 3, v8")
    k("v_mov_b32 v18, 0x3f803f80")
    k("s_waitcnt lgkmcnt(0)")
    k("s_mov_b32 s18, %d" % WS_END)
    k("s_mov_b32 s19, 0x00020000")
    k.srd(8, 4, 512*3584)
    k.srd(12, 6, 3584)
    k("s_cmp_lt_u32 s22, 4")
    k(f"s_cbranch_scc1 {name}_cons")
    k("s_sub_u32 s23, s22, 4")
    k("v_lshrrev_b32 v3, 4, v1")
    k("v_and_b32 v5, 15, v1")
    k("v_lshlrev_b32 v6, 2, v3")
    k("v_xor_b32 v5, v5, v6")
    k("v_mul_u32_u24 v3, 3584, v3")
    k("v_lshl_add_u32 v3, v5, 4, v3")
    k("s_mul_i32 s32, s23, %d" % (32*3584))
    k("s_lshl_b32 s26, s21, 8")
    k("s_add_u32 s32, s32, s26")
    k("s_lshl_b32 s33, s23, 13")
    for c in range(4):
        for n in range(8):
            k(f"s_add_u32 m0, s33, {(c*128 + 4*n)*256}")
            k(f"s_add_u32 s26, s32, {(c*128 + 4*n)*3584}")
            k(f"buffer_load_dwordx4 v3, s[8:11], s26 offen lds")
    k("v_and_b32 v5, 31, v1")
    k("v_lshlrev_b32 v5, 1, v5")
    k("s_lshl_b32 s26, s21, 8")
    k("s_lshl_b32 s27, s23, 6")
    k("s_add_u32 s26, s26, s27")
    k("buffer_load_ushort v20, v5, s[12:15], s26 offen")
    stamp(k, 2, ST)
    k("s_lshl_b32 s26, s23, 6")
    k("v_xor_b32 v9, s26, v8")
    k("v_add_u32 v10, 0x10000, v9")
    k("v_mov_b32 v24, 0")
    k("v_mov_b32 v25, 0")
    for c in range(4):
        k(f"s_waitcnt vmcnt({8*(3-c)+1})")
        k("s_barrier")
        ad = "v9" if c < 2 else "v10"
        for s_ in range(8):
            S = (c & 1)*8 + s_
            k(f"ds_read_b64_tr_b16 {vr(32+4*s_,2)}, {ad} offset:{S*4096}")
            k(f"ds_read_b64_tr_b16 {vr(34+4*s_,2)}, {ad} offset:{S*4096+2048}")
        for s_ in range(8):
            k(f"s_waitcnt lgkmcnt({2*(7-s_)})")
            for q in range(4):
                k(f"v_dot2_f32_bf16 v{24+(q&1)}, v{32+4*s_+q}, v18, v{24+(q&1)}")
    k("s_nop 2")
    k("v_add_f32 v24, v24, v25")
    k("v_mov_b32 v25, v24")
    k("s_nop 1")
    k("v_permlane32_swap_b32 v24, v25")
    k("s_waitcnt vmcnt(0)")
    k("v_lshlrev_b32 v20, 16, v20")
    k("v_add_f32 v24, v24, v25")
    k("v_and_b32 v5, 31, v1")
    k("v_lshlrev_b32 v5, 2, v5")
    k("s_lshl_b32 s26, s23, 7")
    k(f"s_add_u32 s26, s26, {CSB}")
    k("v_add_u32 v5, s26, v5")
    k("ds_write_b32 v5, v24")
    k("ds_write_b32 v5, v20 offset:512")
    k("s_waitcnt lgkmcnt(0)")
    k("s_barrier")
    if ST:
        stamp(k, 3, ST); stamp(k, 4, ST); stamp(k, 5, ST); stamp(k, 6, ST)
        k("s_waitcnt lgkmcnt(0)")
        stamp_rt(k, 7)
        stamp_flush(k, 8, 16, 22, 8)
    k("s_endpgm")
    k(f"{name}_cons:")
    HF = 128
    k("s_lshl_b32 s26, s20, 2")
    k("s_add_u32 s26, s26, s22")
    k("s_lshl_b32 s30, s26, 15")
    k(f"s_add_u32 s30, s30, {WS_H}")
    for S in range(32):
        k(f"s_add_u32 s27, s30, {(S//4)*4096}")
        k(f"buffer_load_dwordx4 {vr(HF+4*S,4)}, v2, s[16:19], s27 offen offset:{(S%4)*1024}")
    stamp(k, 2, ST)
    for g in range(4):
        k(f"v_xor_b32 v{10+g}, {g*64}, v8")
    for r in range(20, 24): k(f"v_mov_b32 v{r}, 0")
    for r in range(64, 128): k(f"v_mov_b32 v{r}, 0")
    WF = [32, 48]
    def rd(S, g):
        b = S & 1
        off = (S & 15)*4096
        k(f"ds_read_b64_tr_b16 {vr(WF[b]+4*g,2)}, v{10+g} offset:{off}")
        k(f"ds_read_b64_tr_b16 {vr(WF[b]+4*g+2,2)}, v{10+g} offset:{off+2048}")
    k("s_barrier")
    stamp(k, 3, ST)
    for g in range(4): rd(0, g)
    for S in range(32):
        b = S & 1
        x = HF + 4*S
        if S < 31 and (S & 7) == 7:
            k("s_barrier")
        if S == 15:
            for g in range(4):
                k(f"v_add_u32 v{10+g}, 0x10000, v{10+g}")
        k(f"s_waitcnt vmcnt({31-S})")
        for g in range(4):
            if S < 31:
                k("s_waitcnt lgkmcnt(6)")
            else:
                k(f"s_waitcnt lgkmcnt({6-2*g})")
            k(f"v_mfma_f32_32x32x16_bf16 {vr(64+16*g,16)}, {vr(WF[b]+4*g,4)}, {vr(x,4)}, {vr(64+16*g,16)}")
            if S < 31: rd(S+1, g)
            k(f"v_dot2_f32_bf16 v{20+(g&1)}, v{x+g}, v18, v{20+(g&1)}")
            k(f"v_dot2_f32_bf16 v{22+(g&1)}, v{x+g}, v{x+g}, v{22+(g&1)}")
    stamp(k, 4, ST)
    k("s_nop 2")
    k("v_add_f32 v20, v20, v21")
    k("v_add_f32 v22, v22, v23")
    k("v_mov_b32 v21, v20")
    k("v_mov_b32 v23, v22")
    k("s_nop 1")
    k("v_permlane32_swap_b32 v20, v21")
    k("v_permlane32_swap_b32 v22, v23")
    k("s_nop 1")
    k("v_add_f32 v20, v20, v21")
    k("v_add_f32 v22, v22, v23")
    k(f"v_mul_f32 v20, {f32(1/512)}, v20")
    k(f"v_mul_f32 v22, {f32(1/512)}, v22")
    k("v_fma_f32 v22, -v20, v20, v22")
    k("v_max_f32 v22, 0, v22")
    k(f"v_add_f32 v23, {f32(1e-5)}, v22")
    k("v_rsq_f32 v23, v23")
    k("s_nop 0")
    k("v_mul_f32 v21, v23, v23")
    k("v_mul_f32 v21, v21, v22")
    k(f"v_add_f32 v21, {f32(1e-5)}, v21")
    k("v_rsq_f32 v21, v21")
    k("s_nop 0")
    k("v_mul_f32 v22, v23, v21")
    k("v_mul_f32 v20, v20, v22")
    k("s_barrier")
    k("v_lshlrev_b32 v5, 4, v4")
    k(f"v_add_u32 v5, {CSB}, v5")
    C0 = -2.0 * 1.4426950408889634 * 0.7978845608028654
    C1 = C0 * 0.044715
    k(f"s_mov_b32 s40, {f32(C0)}")
    k(f"s_mov_b32 s41, {f32(C1)}")
    k("s_lshl_b32 s26, s20, 2")
    k("s_add_u32 s26, s26, s22")
    k(f"s_mul_i32 s30, s26, {112*1024}")
    k("s_lshl_b32 s27, s21, 13")
    k("s_add_u32 s30, s30, s27")
    k(f"s_add_u32 s30, s30, {WS_G}")
    for g in range(4):
        acc = 64 + 16*g
        CS = 32; B1 = 48
        for rr in range(4):
            k(f"ds_read_b128 {vr(CS+4*rr,4)}, v5 offset:{g*128+rr*32}")
            k(f"ds_read_b128 {vr(B1+4*rr,4)}, v5 offset:{512+g*128+rr*32}")
        k("s_waitcnt lgkmcnt(0)")
        for r in range(16):
            k(f"v_fma_f32 v{B1+r}, -v20, v{CS+r}, v{B1+r}")
        for r in range(16):
            k(f"v_fma_f32 v{acc+r}, v{acc+r}, v22, v{B1+r}")
        for r in range(16):
            k(f"v_mul_f32 v{CS+r}, v{acc+r}, v{acc+r}")
        for r in range(16):
            k(f"v_fma_f32 v{CS+r}, v{CS+r}, s41, v{28}") if False else None
        if g == 0:
            k(f"v_mov_b32 v28, s40")
            k(f"v_mov_b32 v29, s41")
        for r in range(16):
            k(f"v_fma_f32 v{CS+r}, v{CS+r}, v29, v28")
        for r in range(16):
            k(f"v_mul_f32 v{CS+r}, v{CS+r}, v{acc+r}")
        for r in range(16):
            k(f"v_exp_f32 v{CS+r}, v{CS+r}")
        for r in range(16):
            k(f"v_add_f32 v{CS+r}, 1.0, v{CS+r}")
        for r in range(16):
            k(f"v_rcp_f32 v{CS+r}, v{CS+r}")
        for r in range(16):
            k(f"v_mul_f32 v{acc+r}, v{acc+r}, v{CS+r}")
        for r in range(8):
            k(f"v_cvt_pk_bf16_f32 v{B1+r}, v{acc+2*r}, v{acc+2*r+1}")
        k(f"s_add_u32 s27, s30, {g*2048}")
        k(f"buffer_store_dwordx4 {vr(B1,4)}, v2, s[16:19], s27 offen")
        k(f"buffer_store_dwordx4 {vr(B1+4,4)}, v2, s[16:19], s27 offen offset:1024")
        k("s_nop 1")
    stamp(k, 5, ST)
    k("s_waitcnt vmcnt(0)")
    if ST:
        stamp(k, 6, ST)
        k("s_waitcnt lgkmcnt(0)")
        stamp_rt(k, 7)
        stamp_flush(k, 8, 16, 22, 8)
    k(f"{name}_done:")
    k("s_endpgm")
    return k
```

```python
from dsl import *

def make_qkv(ST=False, NODOT=False, NOCS=False, NOMFMA=False):
    k = Kern("qkv_kernel", 256, 256, 163840, 192)
    XB = 98304
    k("s_cmp_ge_u32 s2, 256")
    k("s_cbranch_scc1 qkv_done")
    stamp_rt_on = ST
    if ST: stamp_rt(k, 0)
    stamp(k, 1, ST)
    k("s_load_dwordx4 s[4:7], s[0:1], 0")
    k("s_load_dwordx2 s[16:17], s[0:1], 80")
    k("s_and_b32 s24, s2, 7")
    k("s_lshr_b32 s25, s2, 3")
    k("s_lshr_b32 s20, s24, 1")
    k("s_lshl_b32 s20, s20, 2")
    k("s_and_b32 s26, s25, 3")
    k("s_add_u32 s20, s20, s26")
    k("s_and_b32 s21, s24, 1")
    k("s_lshl_b32 s21, s21, 3")
    k("s_lshr_b32 s26, s25, 2")
    k("s_add_u32 s21, s21, s26")
    k("v_lshrrev_b32 v2, 6, v0")
    k("v_and_b32 v1, 63, v0")
    k("v_readfirstlane_b32 s22, v2")
    k("v_lshrrev_b32 v7, 4, v1")
    k("v_and_b32 v19, 15, v1")
    for p in range(4):
        k(f"v_add_u32 v28, {4*p}, v7")
        k(f"v_xor_b32 v29, v28, v19")
        k(f"v_lshlrev_b32 v29, 4, v29")
        k(f"v_lshl_add_u32 v{2+p}, v28, 10, v29")
    k("v_lshrrev_b32 v28, 2, v1")
    k("v_mul_u32_u24 v28, 3072, v28")
    k("v_and_b32 v29, 3, v1")
    k("v_lshl_add_u32 v6, v29, 4, v28")
    k("s_waitcnt lgkmcnt(0)")
    k.srd(8, 4, 2048*512*2)
    k.srd(12, 6, 512*1536*2)
    k("s_mov_b32 s18, %d" % (6 << 20))
    k("s_mov_b32 s19, 0x00020000")
    k("s_lshl_b32 s30, s20, 17")
    k("s_lshl_b32 s26, s22, 15")
    k("s_add_u32 s30, s30, s26")
    k("s_lshl_b32 s31, s22, 14")
    k(f"s_add_u32 s31, s31, {XB}")
    k("s_mul_i32 s32, s22, %d" % (32*3072))
    k("s_lshl_b32 s26, s21, 6")
    k("s_add_u32 s32, s32, s26")
    k("s_lshl_b32 s33, s22, 11")

    def dma_x(c):
        for n in range(8):
            k(f"s_add_u32 m0, s31, {(c&1)*8192 + n*1024}")
            k(f"s_add_u32 s26, s30, {(n>>2)*16384 + c*256}")
            k(f"buffer_load_dwordx4 v{2+(n&3)}, s[8:11], s26 offen lds")
    def dma_w(c):
        for g in range(3):
            for n in range(2):
                k(f"s_add_u32 m0, s33, {g*32768 + (c*128 + n*16)*64}")
                k(f"s_add_u32 s26, s32, {(c*128 + n*16)*3072 + g*1024}")
                k(f"buffer_load_dwordx4 v6, s[12:15], s26 offen lds")
    dma_x(0); dma_w(0); dma_x(1); dma_w(1); dma_w(2); dma_w(3)

    stamp(k, 2, ST)
    k("v_and_b32 v28, 31, v1")
    k("v_lshrrev_b32 v29, 5, v1")
    k("v_and_b32 v30, 15, v28")
    k("v_xor_b32 v30, v30, v29")
    k("v_lshlrev_b32 v30, 4, v30")
    k("v_lshl_add_u32 v30, v28, 8, v30")
    k("v_add_u32 v30, s31, v30")
    for s_ in range(8):
        k(f"v_xor_b32 v{8+s_}, {s_*32}, v30")
    k("v_bfe_u32 v28, v1, 2, 2")
    k("v_lshlrev_b32 v28, 6, v28")
    k("v_and_b32 v30, 3, v1")
    k("v_lshl_add_u32 v28, v30, 3, v28")
    k("v_bfe_u32 v30, v1, 4, 1")
    k("v_lshl_add_u32 v28, v30, 5, v28")
    k("v_lshl_add_u32 v16, v29, 9, v28")
    k("v_add_u32 v17, 0x10000, v16")
    k("v_mov_b32 v18, 0x3f803f80")
    for r in list(range(20, 27)):
        k(f"v_mov_b32 v{r}, 0")
    for r in range(64, 112):
        k(f"v_mov_b32 v{r}, 0")

    XF = [32, 36]
    WF = [40, 52]
    def reads(S):
        c = S >> 3; s_ = S & 7; b = S & 1
        k(f"ds_read_b128 {vr(XF[b],4)}, v{8+s_} offset:{(c&1)*8192}")
        for g in range(3):
            ad = "v16" if g < 2 else "v17"
            off = (g*32768 if g < 2 else 0) + S*1024
            k(f"ds_read_b64_tr_b16 {vr(WF[b]+4*g,2)}, {ad} offset:{off}")
            k(f"ds_read_b64_tr_b16 {vr(WF[b]+4*g+2,2)}, {ad} offset:{off+256}")
    k("s_waitcnt vmcnt(26)")
    stamp(k, 3, ST)
    k("s_barrier")
    stamp(k, 4, ST)
    reads(0)
    for S in range(32):
        b = S & 1
        if S < 31:
            if (S & 7) == 7:
                n = {7: 12, 15: 0, 23: 0}[S]
                k(f"s_waitcnt vmcnt({n})")
                k("s_barrier")
                stamp(k, {7:5,15:6,23:7}[S], ST)
            reads(S+1)
            k("s_waitcnt lgkmcnt(7)")
        else:
            k("s_waitcnt lgkmcnt(0)")
        if S == 7: dma_x(2)
        if S == 15: dma_x(3)
        x = XF[b]; w = WF[b]
        k(f"v_mfma_f32_32x32x16_bf16 v[64:79], {vr(w,4)}, {vr(x,4)}, v[64:79]")
        for q in range(0 if NODOT else 2):
            k(f"v_dot2_f32_bf16 v{20+q}, v{x+q}, v18, v{20+q}")
            k(f"v_dot2_f32_bf16 v{22+q}, v{x+q}, v{x+q}, v{22+q}")
        k(f"v_mfma_f32_32x32x16_bf16 v[80:95], {vr(w+4,4)}, {vr(x,4)}, v[80:95]")
        for q in range(0 if NODOT else 2):
            k(f"v_dot2_f32_bf16 v{20+q}, v{x+2+q}, v18, v{20+q}")
            k(f"v_dot2_f32_bf16 v{22+q}, v{x+2+q}, v{x+2+q}, v{22+q}")
        k(f"v_mfma_f32_32x32x16_bf16 v[96:111], {vr(x,4)}, {vr(w+8,4)}, v[96:111]")
        lab = k.label("cs")
        k(f"s_cmp_lg_u32 s22, {S & 3}")
        k(f"s_cbranch_scc1 {lab}")
        for q in range(0 if NOCS else 4):
            for g in range(3):
                k(f"v_dot2_f32_bf16 v{24+g}, v{w+4*g+q}, v18, v{24+g}")
        k(f"{lab}:")
    stamp(k, 8, ST)
    k("v_add_f32 v20, v20, v21")
    k("v_add_f32 v22, v22, v23")
    k("v_mov_b32 v21, v20")
    k("v_mov_b32 v23, v22")
    k("s_nop 1")
    k("v_permlane32_swap_b32 v20, v21")
    k("v_permlane32_swap_b32 v22, v23")
    k("s_nop 1")
    k("v_add_f32 v20, v20, v21")
    k("v_add_f32 v22, v22, v23")
    k(f"v_mul_f32 v20, {f32(1/512)}, v20")
    k(f"v_mul_f32 v22, {f32(1/512)}, v22")
    k("v_fma_f32 v22, -v20, v20, v22")
    k("v_max_f32 v22, 0, v22")
    k(f"v_add_f32 v22, {f32(1e-5)}, v22")
    k("v_rsq_f32 v22, v22")
    k("s_nop 0")
    k("v_mul_f32 v20, v20, v22")
    k("v_lshlrev_b32 v28, 2, v1")
    k("v_add_u32 v28, s31, v28")
    for g in range(3):
        k(f"ds_write_b32 v28, v{24+g} offset:{g*256}")
    k("ds_write_b32 v28, v22 offset:1024")
    k("ds_write_b32 v28, v20 offset:1280")
    k("s_waitcnt lgkmcnt(0)")
    k("s_barrier")
    lab = k.label("cs2")
    k("s_cmp_ge_u32 s22, 3")
    k(f"s_cbranch_scc1 {lab}")
    k("v_and_b32 v29, 31, v1")
    k("v_lshlrev_b32 v29, 2, v29")
    k("s_lshl_b32 s26, s22, 8")
    k(f"s_add_u32 s26, s26, {XB}")
    k("v_add_u32 v29, s26, v29")
    for w in range(4):
        k(f"ds_read_b32 v{112+2*w}, v29 offset:{w*16384}")
        k(f"ds_read_b32 v{113+2*w}, v29 offset:{w*16384+128}")
    k("s_waitcnt lgkmcnt(0)")
    k("v_add_f32 v112, v112, v113")
    k("v_add_f32 v114, v114, v115")
    k("v_add_f32 v116, v116, v117")
    k("v_add_f32 v118, v118, v119")
    k("v_add_f32 v112, v112, v114")
    k("v_add_f32 v116, v116, v118")
    k("v_add_f32 v112, v112, v116")
    k("v_and_b32 v29, 31, v1")
    k("v_lshlrev_b32 v29, 2, v29")
    k("s_lshl_b32 s26, s22, 7")
    k(f"s_add_u32 s26, s26, {XB+2048}")
    k("v_add_u32 v29, s26, v29")
    k("ds_write_b32 v29, v112")
    k("s_waitcnt lgkmcnt(0)")
    k(f"{lab}:")
    k("s_barrier")
    k("v_lshrrev_b32 v29, 5, v1")
    k("v_lshlrev_b32 v30, 4, v29")
    k(f"v_add_u32 v31, {XB+2048}, v30")
    for g in range(2):
        for rr in range(4):
            k(f"ds_read_b128 {vr(112+16*g+4*rr,4)}, v31 offset:{g*128+rr*32}")
    k("v_and_b32 v28, 31, v1")
    k("v_lshlrev_b32 v28, 2, v28")
    k(f"v_add_u32 v28, {XB+2048+256}, v28")
    k("ds_read_b32 v144, v28")
    k("v_add_u32 v30, s31, v30")
    for rr in range(4):
        k(f"ds_read_b128 {vr(148+4*rr,4)}, v30 offset:{1024+rr*32}")
        k(f"ds_read_b128 {vr(164+4*rr,4)}, v30 offset:{1280+rr*32}")
    QS = 0.25 * 1.4426950408889634
    k(f"v_mul_f32 v26, {f32(QS)}, v22")
    k(f"v_mul_f32 v27, {f32(QS)}, v20")
    k("s_waitcnt lgkmcnt(0)")
    k("v_lshlrev_b32 v28, 4, v1")
    k("s_lshl_b32 s26, s21, 17")
    k("s_lshl_b32 s27, s20, 12")
    k("s_add_u32 s26, s26, s27")
    k("s_lshl_b32 s27, s22, 10")
    k("s_add_u32 s26, s26, s27")
    for g, (rsr, mrsr) in enumerate([(26, 27), (22, 20)]):
        acc = 64 + 16*g
        for r in range(16):
            k(f"v_mul_f32 v{112+16*g+r}, v{mrsr}, v{112+16*g+r}")
            k(f"v_fma_f32 v{acc+r}, v{acc+r}, v{rsr}, -v{112+16*g+r}")
        for r in range(8):
            k(f"v_cvt_pk_bf16_f32 v{112+16*g+r}, v{acc+2*r}, v{acc+2*r+1}")
        for hh in range(2):
            k(f"s_add_u32 s27, s26, {g*WS_K + hh*65536}")
            k(f"buffer_store_dwordx4 {vr(112+16*g+4*hh,4)}, v28, s[16:19], s27 offen")
    for r in range(16):
        k(f"v_mul_f32 v{164+r}, v144, v{164+r}")
        k(f"v_fma_f32 v{96+r}, v{96+r}, v{148+r}, -v{164+r}")
    for r in range(8):
        k(f"v_cvt_pk_bf16_f32 v{148+r}, v{96+2*r}, v{96+2*r+1}")
    k("v_bfe_u32 v28, v1, 4, 1")
    k("v_lshlrev_b32 v28, 16, v28")
    k("v_lshl_add_u32 v28, v29, 8, v28")
    k("v_and_b32 v30, 15, v1")
    k("v_lshl_add_u32 v28, v30, 4, v28")
    k(f"s_add_u32 s27, s26, {WS_V}")
    k(f"buffer_store_dwordx4 v[148:151], v28, s[16:19], s27 offen")
    k(f"buffer_store_dwordx4 v[152:155], v28, s[16:19], s27 offen offset:512")
    stamp(k, 9, ST)
    k("s_waitcnt vmcnt(0)")
    stamp(k, 10, ST)
    if ST:
        k("s_waitcnt lgkmcnt(0)")
        stamp_rt(k, 11)
        stamp_flush(k, 12, 16, 22, 4)
    k("qkv_done:")
    k("s_endpgm")
    return k

if __name__ == "__main__":
    build([make_qkv()], "qkv.s")
    build([make_qkv(True)], "qkv_st.s")
    build([make_qkv(True, NODOT=True)], "qkv_st1.s")
    build([make_qkv(True, NODOT=True, NOCS=True)], "qkv_st2.s")
```

```python
import sys
from dsl import *
from k_qkv import make_qkv
from k_att import make_att
from k_g64 import make_g64
from k_mlp1 import make_mlp1
if __name__ == "__main__":
    ks = [make_qkv(), make_att(), make_g64("wo"), make_mlp1(), make_g64("mlp2")]
    out = sys.argv[1] if len(sys.argv) > 1 else "sequential_preLN__mha_block__mixer_channel_mlp__prompt.s"
    build(ks, out)
    import json
    json.dump([(k.name, k.grid, k.block, k.lds) for k in ks], open("all.json", "w"))
```

```python
from dsl import *
from gen_all import *
def empty(name):
    k = Kern(name, 256, 256, 0, 32)
    k("s_endpgm")
    return k
base = lambda: [make_qkv(), make_att(), make_g64("wo"), make_mlp1(), make_g64("mlp2")]
ks = base()
def build_list(ks, order, path):
    src = HEADER
    for i in order: src += ks[i].launch_line()
    src += '.amdgcn_target "amdgcn-amd-amdhsa--gfx950"\n.text\n'
    for k in ks: src += k.text()
    src += '.section .rodata,"a"\n.p2align 6\n'
    for k in ks: src += k.desc()
    open(path, "w").write(src)
ks2 = ks + [empty("nop_kernel")]
build_list(ks2, [0,1,2,3,4,5,5,5,5,5], "v1_nop5.s")
build_list(ks2, [0,1,2,3,4,5], "v1_nop1.s")
build_list(ks, [0,0,1,2,3,4], "v1_qkv2.s")
build_list(ks, [0,1,1,2,3,4], "v1_att2.s")
build_list(ks, [0,1,2,3,3,4,4], "v1_mlp2x.s")
```

```python
import struct
def v(n): return f"v{n}"
def vr(n, c): return f"v[{n}:{n+c-1}]"
def a(n): return f"a{n}"
def ar(n, c): return f"a[{n}:{n+c-1}]"
def s(n): return f"s{n}"
def sr(n, c): return f"s[{n}:{n+c-1}]"
def f32(x): return "0x%08x" % struct.unpack("<I", struct.pack("<f", x))[0]

class Kern:
    def __init__(self, name, grid, block, lds, nvgpr, nsgpr=96, accum=None):
        self.name = name; self.grid = grid; self.block = block; self.lds = lds
        self.nvgpr = nvgpr; self.nsgpr = nsgpr
        self.accum = accum if accum is not None else ((nvgpr + 3) // 4 * 4)
        self.L = []
        self.lab = 0
    def __call__(self, line):
        for l in line.split("\n"):
            l = l.strip()
            if l: self.L.append("    " + l if not l.endswith(":") else l)
    def label(self, base="L"):
        self.lab += 1
        return f"{self.name}_{base}{self.lab}"
    def srd(self, sreg, ptr_lo, nbytes):
        self(f"s_mov_b32 s{sreg}, s{ptr_lo}")
        self(f"s_mov_b32 s{sreg+1}, s{ptr_lo+1}")
        self(f"s_mov_b32 s{sreg+2}, {nbytes}")
        self(f"s_mov_b32 s{sreg+3}, 0x00020000")
    def text(self):
        h = f".globl {self.name}\n.p2align 8\n.type {self.name},@function\n{self.name}:\n"
        return h + "\n".join(self.L) + "\n"
    def desc(self):
        return f""".amdhsa_kernel {self.name}
  .amdhsa_next_free_vgpr {self.nvgpr}
  .amdhsa_next_free_sgpr {self.nsgpr}
  .amdhsa_accum_offset {self.accum}
  .amdhsa_group_segment_fixed_size 0
  .amdhsa_kernarg_size 88
  .amdhsa_user_sgpr_count 2
  .amdhsa_user_sgpr_kernarg_segment_ptr 1
  .amdhsa_system_sgpr_workgroup_id_x 1
.end_amdhsa_kernel
"""
    def launch_line(self):
        g = self.grid; b = self.block
        return f"; @launch kernel={self.name} grid=({g},1,1) block=({b},1,1) lds={self.lds}\n"

HEADER = """; Kernarg layout for this problem (88 bytes, ptrs only, base s[0:1]):
"""
def build(kernels, path):
    src = HEADER
    for k in kernels: src += k.launch_line()
    src += '.amdgcn_target "amdgcn-amd-amdhsa--gfx950"\n.text\n'
    for k in kernels: src += k.text()
    src += '.section .rodata,"a"\n.p2align 6\n'
    for k in kernels: src += k.desc()
    open(path, "w").write(src)
    return src

WS_Q = 0
WS_K = 2 << 20
WS_V = 4 << 20
WS_O = 6 << 20
WS_H = 8 << 20
WS_G = 10 << 20
WS_END = 18 << 20

STAMP_BASE = 64 << 20
def stamp(k, idx, on=True):
    if not on: return
    k(f"s_memtime s[{60+2*idx}:{61+2*idx}]")
def stamp_rt(k, idx):
    k(f"s_memrealtime s[{60+2*idx}:{61+2*idx}]")
KIDX = {"qkv_kernel":0, "att_kernel":1, "wo_kernel":2, "mlp1_kernel":3, "mlp2_kernel":4}
def stamp_flush(k, n, ws_lo, wave_sgpr, nwaves):
    k("s_waitcnt lgkmcnt(0)")
    k(f"s_add_u32 s56, s{ws_lo}, {STAMP_BASE + KIDX.get(k.name, 0)*(1<<20)}")
    k(f"s_addc_u32 s57, s{ws_lo+1}, 0")
    k("s_mov_b32 s58, 0x1000000")
    k("s_mov_b32 s59, 0x00020000")
    k(f"s_mul_i32 s55, s2, {nwaves}")
    k(f"s_add_u32 s55, s55, s{wave_sgpr}")
    k("s_lshl_b32 s55, s55, 6")
    k("v_mov_b32 v1, s55")
    k("s_mov_b64 exec, 1")
    for i in range(n):
        k(f"v_mov_b32 v2, s{60+2*i}")
        k(f"buffer_store_dword v2, v1, s[56:59], 0 offen offset:{4*i}")
    k("s_waitcnt vmcnt(0)")
WS_ST = 17 << 20
WS_CS1 = (17 << 20) + (512 << 10)
```

```python
from dsl import *

class G:
    pass

def gemm_core(k, name, cfg, hooks):
    NTT, NG, KC, NCH, NS, AHEAD = (cfg[x] for x in ("NTT", "NG", "KC", "NCH", "NS", "AHEAD"))
    ABYTES = NTT*KC*1024
    WROW = NG*64
    WBYTES = KC*16*WROW
    SZ = ABYTES + WBYTES
    ST = cfg.get("ST", False)
    cfg["NWAVES"] = 16 if ("helper_chunk" in hooks or "free_helper" in hooks) else 12
    k("s_cmp_lt_u32 s22, 4")
    k(f"s_cbranch_scc1 {name}_cons")
    if "helper_chunk" in hooks or "free_helper" in hooks:
        k("s_cmp_ge_u32 s22, 12")
        k(f"s_cbranch_scc1 {name}_help")
    k("s_cmp_ge_u32 s22, 8")
    k(f"s_cbranch_scc1 {name}_wprod")
    ASRD, WSRD = cfg["a_srd"], cfg["w_srd"]
    wst = cfg["w_stride"]
    def prod_loop(per, dma, pre_chunk, post_chunk, post, late=None, nlate=0):
        issued = 0; extra = 0
        for c in range(min(AHEAD, NCH)):
            dma(c); issued += 1
        stamp(k, 2, ST)
        for c in range(NCH):
            k(f"s_waitcnt vmcnt({per*(issued - 1 - c) + extra})")
            k("s_barrier")
            pre_chunk(k, c, (c % NS)*SZ)
            if issued < NCH:
                assert issued - NS <= c - 2
                dma(issued); issued += 1
                if issued == NCH and late is not None:
                    late(k); extra = nlate
            post_chunk(k, c, (c % NS)*SZ)
        post(k)
        if ST:
            stamp(k, 3, ST); stamp(k, 4, ST); stamp(k, 5, ST); stamp(k, 6, ST)
            k("s_waitcnt lgkmcnt(0)")
            stamp_rt(k, 7)
            stamp_flush(k, 8, 16, 22, cfg["NWAVES"])
        k("s_endpgm")
    nop2 = lambda k, c, slot: None
    k("s_sub_u32 s23, s22, 4")
    nA = NTT*KC//4
    if cfg["a_mode"] == "frag":
        k("v_lshlrev_b32 v2, 4, v1")
        if NTT == 4:
            k(f"s_mul_i32 s34, s23, {cfg['a_tile_stride']}")
        else:
            k("s_lshr_b32 s26, s23, 1")
            k(f"s_mul_i32 s34, s26, {cfg['a_tile_stride']}")
            k("s_and_b32 s26, s23, 1")
            k(f"s_mul_i32 s26, s26, {nA*1024}")
            k("s_add_u32 s34, s34, s26")
        k("s_add_u32 s34, s34, s30")
        a_chunk_stride = KC*1024
        a_voffs = ["v2"]*nA
        a_soffs = [n*1024 for n in range(nA)]
    else:
        assert KC == 4 and NTT == 4
        k("v_lshrrev_b32 v6, 3, v1")
        k("v_and_b32 v7, 7, v1")
        for n in range(4):
            k(f"v_lshrrev_b32 v8, 1, v6")
            k(f"v_add_u32 v8, {4*n}, v8")
            k(f"v_and_b32 v8, 7, v8")
            k(f"v_xor_b32 v8, v8, v7")
            k(f"v_lshlrev_b32 v8, 4, v8")
            k(f"v_lshl_add_u32 v{10+n}, v6, 10, v8")
        k("s_lshl_b32 s34, s23, 15")
        k("s_add_u32 s34, s34, s30")
        a_chunk_stride = KC*32
        a_voffs = [f"v{10+n}" for n in range(4)]
        a_soffs = [n*8192 for n in range(4)]
    k(f"s_mul_i32 s35, s23, {nA*1024}")
    k(f"s_mul_i32 s38, s29, {a_chunk_stride}")
    k("s_add_u32 s34, s34, s38")
    k(f"s_sub_u32 s38, {NCH}, s29")
    k("s_waitcnt lgkmcnt(0)")
    hooks["srds_a"](k)
    def dma_a(c):
        slot = (c % NS)*SZ
        for n in range(nA):
            k(f"s_add_u32 m0, s35, {slot + n*1024}")
            if a_soffs[n]:
                k(f"s_add_u32 s26, s34, {a_soffs[n]}")
                k(f"buffer_load_dwordx4 {a_voffs[n]}, s[{ASRD}:{ASRD+3}], s26 offen lds")
            else:
                k("s_nop 0")
                k(f"buffer_load_dwordx4 {a_voffs[n]}, s[{ASRD}:{ASRD+3}], s34 offen lds")
        k(f"s_add_u32 s34, s34, {a_chunk_stride}")
        k("s_sub_u32 s38, s38, 1")
        k("s_cmp_eq_u32 s38, 0")
        k(f"s_cselect_b32 s26, {NCH*a_chunk_stride}, 0")
        k("s_sub_u32 s34, s34, s26")
    hooks.get("aprod_pre", lambda k: None)(k)
    prod_loop(nA, dma_a, hooks.get("aprod_chunk_pre", nop2), hooks.get("aprod_chunk_post", nop2), hooks.get("aprod_post", lambda k: None))
    k(f"{name}_wprod:")
    k("s_sub_u32 s23, s22, 8")
    nW = KC*NG//4
    rows_per_p = KC*4
    if NG == 2:
        k("v_lshrrev_b32 v3, 3, v1")
        k("v_and_b32 v4, 7, v1")
        k("v_bfe_u32 v5, v1, 4, 1")
        k("v_lshlrev_b32 v5, 2, v5")
        k("v_xor_b32 v4, v4, v5")
        k("v_lshlrev_b32 v4, 4, v4")
        k(f"s_mov_b32 s26, {wst}")
        k("v_mul_lo_u32 v3, v3, s26")
        k("v_add_u32 v3, v3, v4")
        w_voffs = ["v3"]*nW; w_soffs = [n*8*wst for n in range(nW)]
    elif NG == 4:
        k("v_lshrrev_b32 v3, 4, v1")
        k("v_and_b32 v5, 15, v1")
        k("v_lshlrev_b32 v4, 2, v3")
        k("v_xor_b32 v5, v5, v4")
        k(f"s_mov_b32 s26, {wst}")
        k("v_mul_lo_u32 v3, v3, s26")
        k("v_lshl_add_u32 v3, v5, 4, v3")
        w_voffs = ["v3"]*nW; w_soffs = [n*4*wst for n in range(nW)]
    else:
        assert nW == 3
        k(f"s_mov_b32 s26, {wst}")
        k("s_mov_b32 s27, 0x15555556")
        for n in range(3):
            k(f"v_add_u32 v4, {64*n}, v1")
            k("v_mul_hi_u32 v5, v4, s27")
            k("v_mul_u32_u24 v6, 12, v5")
            k("v_sub_u32 v4, v4, v6")
            k("v_mul_lo_u32 v5, v5, s26")
            k(f"v_lshl_add_u32 v{14+n}, v4, 4, v5")
        w_voffs = [f"v{14+n}" for n in range(3)]; w_soffs = [0, 0, 0]
    k(f"s_mul_i32 s36, s23, {rows_per_p*wst}")
    k("s_add_u32 s36, s36, s32")
    k(f"s_mul_i32 s37, s23, {nW*1024}")
    k(f"s_add_u32 s37, s37, {ABYTES}")
    w_chunk_stride = KC*16*wst
    k(f"s_mul_i32 s39, s29, {w_chunk_stride}")
    k("s_add_u32 s36, s36, s39")
    k(f"s_sub_u32 s38, {NCH}, s29")
    k("s_waitcnt lgkmcnt(0)")
    hooks["srds_w"](k)
    def dma_w(c):
        slot = (c % NS)*SZ
        for n in range(nW):
            k(f"s_add_u32 m0, s37, {slot + n*1024}")
            if w_soffs[n]:
                k(f"s_add_u32 s26, s36, {w_soffs[n]}")
                k(f"buffer_load_dwordx4 {w_voffs[n]}, s[{WSRD}:{WSRD+3}], s26 offen lds")
            else:
                k("s_nop 0")
                k(f"buffer_load_dwordx4 {w_voffs[n]}, s[{WSRD}:{WSRD+3}], s36 offen lds")
        k(f"s_add_u32 s36, s36, {w_chunk_stride}")
        k("s_sub_u32 s38, s38, 1")
        k("s_cmp_eq_u32 s38, 0")
        k(f"s_cselect_b32 s27, {NCH*w_chunk_stride}, 0")
        k("s_sub_u32 s36, s36, s27")
    hooks.get("prod_pre", lambda k: None)(k)
    prod_loop(nW, dma_w, hooks.get("prod_chunk_pre", nop2), hooks.get("prod_chunk_post", nop2), hooks.get("prod_post", lambda k: None), hooks.get("prod_late"), cfg.get("NLATE", 0))
    if "helper_chunk" in hooks:
        k(f"{name}_help:")
        k("s_sub_u32 s23, s22, 12")
        hooks["helper_pre"](k)
        stamp(k, 2, ST)
        for c in range(NCH):
            k("s_barrier")
            hooks["helper_chunk"](k, c, (c % NS)*SZ)
        hooks["helper_post"](k)
        if ST:
            stamp(k, 3, ST); stamp(k, 4, ST); stamp(k, 5, ST); stamp(k, 6, ST)
            k("s_waitcnt lgkmcnt(0)")
            stamp_rt(k, 7)
            stamp_flush(k, 8, 16, 22, cfg["NWAVES"])
        k("s_endpgm")
    if "free_helper" in hooks:
        k(f"{name}_help:")
        k("s_sub_u32 s23, s22, 12")
        hooks["free_helper"](k)
        if ST:
            stamp(k, 2, ST); stamp(k, 3, ST); stamp(k, 4, ST); stamp(k, 5, ST); stamp(k, 6, ST)
            k("s_mov_b64 exec, -1")
            k("s_waitcnt lgkmcnt(0)")
            stamp_rt(k, 7)
            stamp_flush(k, 8, 16, 22, cfg["NWAVES"])
        k("s_endpgm")
    k(f"{name}_cons:")
    hooks["cons_pre"](k)
    stamp(k, 2, ST)
    tts, gs = cfg["wave_ntt"], cfg["wave_ng"]
    k("v_lshrrev_b32 v4, 5, v1")
    if cfg["a_mode"] == "frag":
        k("v_lshlrev_b32 v5, 4, v1")
        k(f"s_mul_i32 s26, s23, {KC*1024}")
        k("v_add_u32 v14, s26, v5")
        a_addr_regs = None
    else:
        k("v_and_b32 v5, 31, v1")
        k("v_bfe_u32 v6, v1, 1, 3")
        k("v_xor_b32 v6, v6, v4")
        k("v_lshlrev_b32 v6, 4, v6")
        k("v_lshl_add_u32 v6, v5, 7, v6")
        k("s_lshl_b32 s26, s23, 12")
        k("v_add_u32 v14, s26, v6")
    k("v_bfe_u32 v7, v1, 2, 2")
    if cfg["perm"] == "pi":
        k("v_lshl_add_u32 v8, v4, 2, v7")
        second = 8*WROW
    else:
        k("v_lshl_add_u32 v8, v4, 3, v7")
        second = 4*WROW
    k(f"v_mul_u32_u24 v8, {WROW}, v8")
    if NG == 2:
        k("v_lshrrev_b32 v7, 1, v7")
        k("v_lshl_add_u32 v8, v7, 6, v8")
    elif NG == 4:
        k("v_lshl_add_u32 v8, v7, 6, v8")
    k("v_bfe_u32 v7, v1, 4, 1")
    k("v_lshl_add_u32 v8, v7, 5, v8")
    k("v_and_b32 v7, 3, v1")
    k("v_lshl_add_u32 v8, v7, 3, v8")
    k(f"v_add_u32 v8, {ABYTES}, v8")
    k("s_lshl_b32 s26, s24, 6")
    if NG == 3:
        k("v_add_u32 v15, s26, v8")
    else:
        k("v_xor_b32 v15, s26, v8")
    nAreg = 1 if cfg["a_mode"] == "frag" else KC
    nWreg = 1 if NG == 3 else gs
    BA = 16; BW = BA + nAreg; CUR = BW + nWreg; NXT = CUR + nAreg + nWreg; FR = NXT + nAreg + nWreg
    FR = (FR + 3)//4*4
    for i in range(nAreg):
        if i == 0: k(f"v_mov_b32 v{BA}, v14")
        else: k(f"v_xor_b32 v{BA+i}, {i*32}, v14")
    for i in range(nWreg):
        if i == 0: k(f"v_mov_b32 v{BW}, v15")
        else: k(f"v_xor_b32 v{BW+i}, {i*64}, v15")
    for i in range(nAreg + nWreg):
        k(f"v_mov_b32 v{CUR+i}, v{BA+i}")
    FSZ = 4*(tts + gs)
    NSET = cfg["NSET"]
    ACC = FR + NSET*FSZ
    ACC = (ACC + 3)//4*4
    cfg["ACC"] = ACC
    cfg["FREE"] = ACC + 16*tts*gs
    for r in range(ACC, ACC + 16*tts*gs): k(f"v_mov_b32 v{r}, 0")
    def fa(S, i): return FR + (S % NSET)*FSZ + 4*i
    def fw(S, g): return FR + (S % NSET)*FSZ + 4*tts + 4*g
    def rd_a(S_set, s_, i, base):
        if cfg["a_mode"] == "frag":
            k(f"ds_read_b128 {vr(fa(S_set,i),4)}, v{base} offset:{s_*1024 + i*KC*1024}")
        else:
            k(f"ds_read_b128 {vr(fa(S_set,i),4)}, v{base+s_} offset:{i*4096}")
    def rd_w(S_set, s_, g, base):
        if NG == 3:
            ad = base + nAreg; off = s_*16*WROW + g*64
        else:
            ad = base + nAreg + g; off = s_*16*WROW
        k(f"ds_read_b64_tr_b16 {vr(fw(S_set,g),2)}, v{ad} offset:{off}")
        k(f"ds_read_b64_tr_b16 {vr(fw(S_set,g)+2,2)}, v{ad} offset:{off+second}")
    nrd = tts + 2*gs
    D = NSET
    assert KC % NSET == 0 or NSET <= KC
    k("s_mov_b32 s34, 0")
    k("s_mov_b32 s35, 0")
    k("s_barrier")
    stamp(k, 3, ST)
    for S in range(D):
        for i in range(tts): rd_a(S, S, i, CUR)
        for g in range(gs): rd_w(S, S, g, CUR)
    def chunk_body(last, cidx=None):
        for s_ in range(KC):
            nx = s_ + D
            in_next = nx >= KC
            if nx == KC and not last:
                k(f"s_add_u32 s34, s34, {SZ}")
                k(f"s_cmp_eq_u32 s34, {NS*SZ}")
                k("s_cselect_b32 s34, 0, s34")
                for i in range(nAreg + nWreg):
                    k(f"v_add_u32 v{NXT+i}, s34, v{BA+i}")
                k("s_barrier")
            do_rd = not (last and in_next)
            if do_rd: allowed = nrd*(D-1)
            else: allowed = nrd*(KC-1-s_)
            k(f"s_waitcnt lgkmcnt({min(15, allowed)})")
            base = NXT if in_next else CUR
            sn = nx - KC if in_next else nx
            hooks.get("pre_step", lambda *a: None)(k, s_, lambda g: fw(s_, g))
            for i in range(tts):
                for g in range(gs):
                    acc = ACC + 16*(i*gs + g)
                    k(f"v_mfma_f32_32x32x16_bf16 {vr(acc,16)}, {vr(fw(s_,g),4)}, {vr(fa(s_,i),4)}, {vr(acc,16)}")
                    hooks.get("after_mfma", lambda *a: None)(k, s_, i, g, fa(s_, i), fw(s_, g))
                    if do_rd:
                        if i == tts - 1: rd_w(s_, sn, g, base)
                        if g == gs - 1: rd_a(s_, sn, i, base)
        if not last:
            for i in range(nAreg + nWreg):
                k(f"v_mov_b32 v{CUR+i}, v{NXT+i}")
    nvar = cfg.get("NVAR", 1)
    if nvar > 1:
        for v_ in range(1, nvar):
            k(f"s_cmp_eq_u32 s36, {v_}")
            k(f"s_cbranch_scc1 {name}_var{v_}")
    for v_ in range(nvar):
        cfg["VAR"] = v_
        lab = f"{name}_loop{v_}"
        k(f"{name}_var{v_}:")
        k(f"{lab}:")
        chunk_body(False)
        k("s_add_u32 s35, s35, 1")
        k(f"s_cmp_lt_u32 s35, {NCH-1}")
        k(f"s_cbranch_scc1 {lab}")
        chunk_body(True)
        if v_ < nvar - 1: k(f"s_branch {name}_epi")
    k(f"{name}_epi:")
    stamp(k, 4, ST)
    hooks["epilogue"](k, cfg)
    stamp(k, 5, ST)
    if ST:
        k("s_waitcnt vmcnt(0)")
        k("s_mov_b64 exec, -1")
        stamp(k, 6, ST)
        k("s_waitcnt lgkmcnt(0)")
        stamp_rt(k, 7)
        stamp_flush(k, 8, 16, 22, cfg["NWAVES"])
```

```python
from dsl import *
from gemm import gemm_core
import os
ROT = os.environ.get("ROT", "1111")

def common_head(k, name, nwg, ST):
    k(f"s_cmp_ge_u32 s2, {nwg}")
    k(f"s_cbranch_scc1 {name}_done")
    if ST: stamp_rt(k, 0)
    stamp(k, 1, ST)

def ids(k):
    k("v_lshrrev_b32 v2, 6, v0")
    k("v_and_b32 v1, 63, v0")
    k("v_readfirstlane_b32 s22, v2")

def make_g64(kind, ST=False):
    name = kind + "_kernel"
    KS = 32 if kind == "wo" else 112
    NCH = KS // 4
    NS = 8
    SZ = 16384
    k = Kern(name, 256, 768, NS*SZ, 128)
    A_WS = WS_O if kind == "wo" else WS_G
    common_head(k, name, 256, ST)
    k("s_load_dwordx2 s[16:17], s[0:1], 80")
    if kind == "wo":
        k("s_load_dwordx2 s[4:5], s[0:1], 16")
        k("s_load_dwordx2 s[6:7], s[0:1], 0")
        k("s_load_dwordx2 s[48:49], s[0:1], 32")
    else:
        k("s_load_dwordx2 s[4:5], s[0:1], 48")
        k("s_load_dwordx4 s[40:43], s[0:1], 56")
    k("s_and_b32 s24, s2, 7")
    k("s_lshr_b32 s25, s2, 3")
    k("s_lshl_b32 s20, s24, 2")
    k("s_and_b32 s26, s25, 3")
    k("s_add_u32 s20, s20, s26")
    k("s_lshr_b32 s21, s25, 2")
    ids(k)
    k(f"s_mul_i32 s29, s21, {NCH}")
    k("s_lshr_b32 s29, s29, 3")
    if ROT[1 if kind == "wo" else 3] == "0": k("s_mov_b32 s29, 0")
    k(f"s_mul_i32 s30, s20, {2*KS*1024}")
    k(f"s_add_u32 s30, s30, {A_WS}")
    k("s_lshl_b32 s32, s21, 7")
    cfg = dict(NTT=2, NG=2, KC=4, NCH=NCH, NS=NS, AHEAD=3, a_mode="frag", a_srd=16, w_srd=8, w_stride=1024, perm="pi",
               a_tile_stride=KS*1024, wave_ntt=1, wave_ng=1, NSET=4, ST=ST)
    def srds_a(k):
        k("s_mov_b32 s18, %d" % WS_END); k("s_mov_b32 s19, 0x00020000")
    def srds_w(k):
        k.srd(8, 4, KS*16*1024)
    EP = 96
    def cons_pre(k):
        k("s_lshr_b32 s23, s22, 1")
        k("s_and_b32 s24, s22, 1")
        k("v_and_b32 v3, 31, v1")
        k("v_lshrrev_b32 v4, 5, v1")
        k("v_lshlrev_b32 v2, 4, v1")
        k("s_lshl_b32 s27, s20, 1")
        k("s_add_u32 s27, s27, s23")
        k("s_waitcnt lgkmcnt(0)")
        k("s_mov_b32 s18, %d" % WS_END); k("s_mov_b32 s19, 0x00020000")
        if kind == "wo":
            k.srd(12, 6, 2048*1024)
            k("v_lshlrev_b32 v5, 10, v3")
            k("v_lshl_add_u32 v5, v4, 3, v5")
            k("s_lshl_b32 s28, s27, 15")
            k("s_lshl_b32 s26, s21, 7")
            k("s_add_u32 s28, s28, s26")
            k("s_lshl_b32 s26, s24, 6")
            k("s_add_u32 s28, s28, s26")
            for rr in range(4):
                k(f"buffer_load_dwordx2 {vr(EP+2*rr,2)}, v5, s[12:15], s28 offen offset:{rr*16}")
        else:
            k.srd(12, 40, 1024)
            k.srd(44, 42, 2048*1024)
            k("s_lshl_b32 s28, s27, 15")
            k("s_lshl_b32 s26, s21, 12")
            k("s_add_u32 s28, s28, s26")
            k("s_lshl_b32 s26, s24, 11")
            k("s_add_u32 s28, s28, s26")
            k(f"s_add_u32 s28, s28, {WS_H}")
            k(f"buffer_load_dwordx4 {vr(EP,4)}, v2, s[16:19], s28 offen")
            k(f"buffer_load_dwordx4 {vr(EP+4,4)}, v2, s[16:19], s28 offen offset:1024")
            k("v_lshlrev_b32 v5, 3, v4")
            k("s_lshl_b32 s28, s21, 7")
            k("s_lshl_b32 s26, s24, 6")
            k("s_add_u32 s28, s28, s26")
            for rr in range(4):
                k(f"buffer_load_dwordx2 {vr(EP+8+2*rr,2)}, v5, s[12:15], s28 offen offset:{rr*16}")
    def epilogue(k, cfg):
        A0 = cfg["ACC"]; T = 112; PK = 116
        k("s_waitcnt vmcnt(0)")
        k("s_nop 7")
        if kind == "wo":
            for r in range(8):
                d = EP + r
                k(f"v_lshlrev_b32 v{T}, 16, v{d}")
                k(f"v_and_b32 v{T+1}, 0xffff0000, v{d}")
                k(f"v_add_f32 v{A0+2*r}, v{A0+2*r}, v{T}")
                k(f"v_add_f32 v{A0+2*r+1}, v{A0+2*r+1}, v{T+1}")
            for r in range(8):
                k(f"v_cvt_pk_bf16_f32 v{PK+r}, v{A0+2*r}, v{A0+2*r+1}")
            k("s_lshl_b32 s28, s27, 15")
            k("s_lshl_b32 s26, s21, 12")
            k("s_add_u32 s28, s28, s26")
            k("s_lshl_b32 s26, s24, 11")
            k("s_add_u32 s28, s28, s26")
            k(f"s_add_u32 s28, s28, {WS_H}")
            k(f"buffer_store_dwordx4 {vr(PK,4)}, v2, s[16:19], s28 offen")
            k(f"buffer_store_dwordx4 {vr(PK+4,4)}, v2, s[16:19], s28 offen offset:1024")
            k(f"v_add_f32 v{T}, v{A0}, v{A0+1}")
            k(f"v_mul_f32 v{T+1}, v{A0}, v{A0}")
            k(f"v_fmac_f32 v{T+1}, v{A0+1}, v{A0+1}")
            k(f"v_add_f32 v{T+2}, v{A0+2}, v{A0+3}")
            k(f"v_mul_f32 v{T+3}, v{A0+2}, v{A0+2}")
            k(f"v_fmac_f32 v{T+3}, v{A0+3}, v{A0+3}")
            for r in range(4, 16, 2):
                k(f"v_add_f32 v{T+(r&2)}, v{T+(r&2)}, v{A0+r}")
                k(f"v_fmac_f32 v{T+1+(r&2)}, v{A0+r}, v{A0+r}")
                k(f"v_add_f32 v{T+(r&2)}, v{T+(r&2)}, v{A0+r+1}")
                k(f"v_fmac_f32 v{T+1+(r&2)}, v{A0+r+1}, v{A0+r+1}")
            k(f"v_add_f32 v{T}, v{T}, v{T+2}")
            k(f"v_add_f32 v{T+1}, v{T+1}, v{T+3}")
            k(f"v_mov_b32 v{T+2}, v{T}")
            k(f"v_mov_b32 v{T+3}, v{T+1}")
            k("v_lshlrev_b32 v5, 7, v3")
            k("s_lshl_b32 s28, s27, 12")
            k(f"v_permlane32_swap_b32 v{T}, v{T+2}")
            k(f"v_permlane32_swap_b32 v{T+1}, v{T+3}")
            k("s_lshl_b32 s26, s21, 4")
            k("s_add_u32 s28, s28, s26")
            k(f"v_add_f32 v{T}, v{T}, v{T+2}")
            k(f"v_add_f32 v{T+1}, v{T+1}, v{T+3}")
            k("s_lshl_b32 s26, s24, 3")
            k("s_add_u32 s28, s28, s26")
            k(f"s_add_u32 s28, s28, {WS_ST}")
            k("s_mov_b32 exec_hi, 0")
            k(f"buffer_store_dwordx2 v[{T}:{T+1}], v5, s[16:19], s28 offen")
        else:
            for r in range(8):
                k(f"v_lshlrev_b32 v{T}, 16, v{EP+r}")
                k(f"v_and_b32 v{T+1}, 0xffff0000, v{EP+r}")
                k(f"v_lshlrev_b32 v{T+2}, 16, v{EP+8+r}")
                k(f"v_and_b32 v{T+3}, 0xffff0000, v{EP+8+r}")
                k(f"v_add_f32 v{A0+2*r}, v{A0+2*r}, v{T+2}")
                k(f"v_add_f32 v{A0+2*r+1}, v{A0+2*r+1}, v{T+3}")
                k(f"v_add_f32 v{A0+2*r}, v{A0+2*r}, v{T}")
                k(f"v_add_f32 v{A0+2*r+1}, v{A0+2*r+1}, v{T+1}")
            for r in range(8):
                k(f"v_cvt_pk_bf16_f32 v{PK+r}, v{A0+2*r}, v{A0+2*r+1}")
            k("v_lshlrev_b32 v5, 10, v3")
            k("v_lshl_add_u32 v5, v4, 4, v5")
            for pr in range(2):
                k(f"v_permlane32_swap_b32 v{PK+4*pr}, v{PK+2+4*pr}")
                k(f"v_permlane32_swap_b32 v{PK+1+4*pr}, v{PK+3+4*pr}")
            k("s_lshl_b32 s28, s27, 15")
            k("s_lshl_b32 s26, s21, 7")
            k("s_add_u32 s28, s28, s26")
            k("s_lshl_b32 s26, s24, 6")
            k("s_add_u32 s28, s28, s26")
            k(f"buffer_store_dwordx4 {vr(PK,4)}, v5, s[44:47], s28 offen")
            k(f"buffer_store_dwordx4 {vr(PK+4,4)}, v5, s[44:47], s28 offen offset:32")
    hk = dict(srds_a=srds_a, srds_w=srds_w, cons_pre=cons_pre, epilogue=epilogue)
    if kind == "wo":
        def prod_late(k):
            k("s_mov_b32 s50, %d" % (512*3584)); k("s_mov_b32 s51, 0x00020000")
            k("s_and_b32 s40, s2, 7")
            k("s_lshr_b32 s41, s40, 1"); k("s_mul_i32 s41, s41, 28"); k("s_add_u32 s41, s41, s25")
            k("s_and_b32 s40, s40, 1"); k("s_mul_i32 s40, s40, 112"); k("s_add_u32 s41, s41, s40")
            k("s_min_u32 s41, s41, 223")
            k("s_lshl_b32 s40, s41, 4")
            k("s_mul_i32 s42, s23, %d" % (128*3584)); k("s_add_u32 s40, s40, s42")
            k("v_mul_u32_u24 v30, 3584, v1")
            k("buffer_load_dwordx4 v[40:43], v30, s[48:51], s40 offen")
            k("s_add_u32 s40, s40, %d" % (64*3584))
            k("buffer_load_dwordx4 v[44:47], v30, s[48:51], s40 offen")
        def prod_post(k):
            lab = k.label("cs")
            k("s_cmp_ge_u32 s25, 28")
            k(f"s_cbranch_scc1 {lab}")
            k("s_waitcnt vmcnt(0)")
            for q in range(4):
                k(f"v_lshlrev_b32 v{8+2*q}, 16, v{40+q}")
                k(f"v_and_b32 v{9+2*q}, 0xffff0000, v{40+q}")
                k(f"v_lshlrev_b32 v16, 16, v{44+q}")
                k(f"v_and_b32 v17, 0xffff0000, v{44+q}")
                k(f"v_add_f32 v{8+2*q}, v{8+2*q}, v16")
                k(f"v_add_f32 v{9+2*q}, v{9+2*q}, v17")
            for mode in ["row_shr:1", "row_shr:2", "row_shr:4", "row_shr:8", "row_bcast:15 row_mask:0xa", "row_bcast:31 row_mask:0xc"]:
                k("s_nop 1")
                for r in range(8):
                    m = mode if "row_mask" in mode else mode + " row_mask:0xf"
                    k(f"v_add_f32_dpp v{8+r}, v{8+r}, v{8+r} {m} bank_mask:0xf")
            k("s_lshl_b32 s40, s41, 5")
            k("s_lshl_b32 s42, s23, 13"); k("s_add_u32 s40, s40, s42")
            k(f"s_add_u32 s40, s40, {WS_CS1}")
            k("s_mov_b32 s18, %d" % WS_END); k("s_mov_b32 s19, 0x00020000")
            k("v_mov_b32 v2, 0")
            k("s_mov_b32 exec_lo, 0")
            k("s_mov_b32 exec_hi, 0x80000000")
            k("buffer_store_dwordx4 v[8:11], v2, s[16:19], s40 offen")
            k("buffer_store_dwordx4 v[12:15], v2, s[16:19], s40 offen offset:16")
            k("s_mov_b64 exec, -1")
            k(f"{lab}:")
        hk.update(prod_late=prod_late, prod_post=prod_post)
        cfg["NLATE"] = 2
    gemm_core(k, name, cfg, hk)
    assert cfg["FREE"] <= EP
    k(f"{name}_done:")
    k("s_endpgm")
    return k

def colsum_chunk(k, addr_regs, slot, kstride, second, acc):
    for s_ in range(4):
        off = slot + s_*kstride
        hi = off >> 16; lo = off & 0xffff
        if lo + second > 65535: hi += 1; lo -= 65536
        assert lo >= 0
        k(f"ds_read_b64_tr_b16 {vr(32+4*s_,2)}, v{addr_regs[hi]} offset:{lo}")
        k(f"ds_read_b64_tr_b16 {vr(34+4*s_,2)}, v{addr_regs[hi]} offset:{lo+second}")
    for s_ in range(4):
        k(f"s_waitcnt lgkmcnt({2*(3-s_)})")
        for q in range(4):
            r = 32 + 4*s_ + q; t = 48 + 2*(q & 1)
            k(f"v_lshlrev_b32 v{t}, 16, v{r}")
            k(f"v_and_b32 v{t+1}, 0xffff0000, v{r}")
            k(f"v_pk_add_f32 v[{acc}:{acc+1}], v[{acc}:{acc+1}], v[{t}:{t+1}]")

def make_mlp1(ST=False):
    name = "mlp1_kernel"
    NS = 4; SZ = 32768; CSB = NS*SZ; STB = CSB + 1024
    k = Kern(name, 224, 768, CSB + 1024 + 1024, 128)
    common_head(k, name, 224, ST)
    k("s_load_dwordx2 s[16:17], s[0:1], 80")
    k("s_load_dwordx4 s[4:7], s[0:1], 32")
    k("s_and_b32 s24, s2, 7")
    k("s_lshr_b32 s25, s2, 3")
    k("s_lshr_b32 s20, s24, 1")
    k("s_lshl_b32 s20, s20, 2")
    k("s_and_b32 s26, s25, 3")
    k("s_add_u32 s20, s20, s26")
    k("s_and_b32 s21, s24, 1")
    k("s_mul_i32 s21, s21, 7")
    k("s_lshr_b32 s29, s25, 2")
    k("s_add_u32 s21, s21, s29")
    if ROT[2] == "0": k("s_mov_b32 s29, 0")
    ids(k)
    k("s_lshl_b32 s30, s20, 17")
    k(f"s_add_u32 s30, s30, {WS_H}")
    k("s_lshl_b32 s32, s21, 8")
    cfg = dict(NTT=4, NG=4, KC=4, NCH=8, NS=NS, AHEAD=2, a_mode="frag", a_srd=16, w_srd=8, w_stride=3584, perm="pi",
               a_tile_stride=32768, wave_ntt=2, wave_ng=2, NSET=2, ST=ST)
    def srds_a(k):
        k("s_mov_b32 s18, %d" % WS_END); k("s_mov_b32 s19, 0x00020000")
    def srds_w(k):
        k.srd(8, 4, 512*3584)
    def aprod_pre(k):
        k("v_and_b32 v3, 31, v1")
        k("v_lshrrev_b32 v4, 5, v1")
        k("v_lshlrev_b32 v6, 7, v3")
        k("v_lshl_add_u32 v6, v4, 6, v6")
        k("s_lshl_b32 s27, s20, 2")
        k("s_add_u32 s27, s27, s23")
        k("s_lshl_b32 s31, s27, 12")
        k(f"s_add_u32 s31, s31, {WS_ST}")
        for q in range(4):
            k(f"buffer_load_dwordx4 {vr(64+4*q,4)}, v6, s[16:19], s31 offen offset:{q*16}")
    def aprod_post(k):
        b = 64
        for q in range(1, 8):
            k(f"v_add_f32 v{b}, v{b}, v{b+2*q}")
            k(f"v_add_f32 v{b+1}, v{b+1}, v{b+1+2*q}")
        k(f"v_mov_b32 v{b+2}, v{b}")
        k(f"v_mov_b32 v{b+3}, v{b+1}")
        k("s_nop 1")
        k(f"v_permlane32_swap_b32 v{b}, v{b+2}")
        k(f"v_permlane32_swap_b32 v{b+1}, v{b+3}")
        k("s_nop 0")
        k(f"v_add_f32 v{b}, v{b}, v{b+2}")
        k(f"v_add_f32 v{b+1}, v{b+1}, v{b+3}")
        k(f"v_mul_f32 v{b}, {f32(1/512)}, v{b}")
        k(f"v_mul_f32 v{b+1}, {f32(1/512)}, v{b+1}")
        k(f"v_fma_f32 v{b+1}, -v{b}, v{b}, v{b+1}")
        k(f"v_max_f32 v{b+1}, 0, v{b+1}")
        k(f"v_add_f32 v{b+2}, {f32(1e-5)}, v{b+1}")
        k(f"v_rsq_f32 v{b+2}, v{b+2}")
        k("s_nop 0")
        k(f"v_mul_f32 v{b+3}, v{b+2}, v{b+2}")
        k(f"v_mul_f32 v{b+3}, v{b+3}, v{b+1}")
        k(f"v_add_f32 v{b+3}, {f32(1e-5)}, v{b+3}")
        k(f"v_rsq_f32 v{b+3}, v{b+3}")
        k("s_nop 0")
        k(f"v_mul_f32 v{b+4}, v{b+2}, v{b+3}")
        k(f"v_mul_f32 v{b+5}, v{b}, v{b+4}")
        k(f"v_sub_f32 v{b+5}, 0, v{b+5}")
        k("v_lshlrev_b32 v5, 3, v3")
        k("s_lshl_b32 s26, s23, 8")
        k(f"s_add_u32 s26, s26, {STB}")
        k("v_add_u32 v5, s26, v5")
        k(f"ds_write_b64 v5, v[{b+4}:{b+5}]")
        k("s_waitcnt lgkmcnt(0)")
        k("s_barrier")
    def prod_pre(k):
        k("v_and_b32 v9, 31, v1")
        k("v_lshlrev_b32 v10, 1, v9")
        k("v_lshlrev_b32 v11, 2, v9")
        k("s_mov_b32 s18, %d" % WS_END); k("s_mov_b32 s19, 0x00020000")
        k.srd(12, 6, 3584)
        k("s_lshl_b32 s26, s21, 8")
        k("s_lshl_b32 s27, s23, 6")
        k("s_add_u32 s26, s26, s27")
        k("buffer_load_ushort v20, v10, s[12:15], s26 offen")
        k("s_lshl_b32 s26, s26, 1")
        k(f"s_add_u32 s26, s26, {WS_CS1}")
        for q in range(4):
            k(f"buffer_load_dword v{24+q}, v11, s[16:19], s26 offen")
            if q < 3: k("s_add_u32 s26, s26, 8192")
    def prod_post(k):
        k("v_add_f32 v24, v24, v25")
        k("v_add_f32 v26, v26, v27")
        k("v_add_f32 v24, v24, v26")
        k("v_lshlrev_b32 v20, 16, v20")
        k("s_lshl_b32 s26, s23, 7")
        k(f"s_add_u32 s26, s26, {CSB}")
        k("v_add_u32 v5, s26, v11")
        k("ds_write_b32 v5, v20 offset:512")
        k("ds_write_b32 v5, v24")
        k("s_waitcnt lgkmcnt(0)")
        k("s_barrier")
    def cons_pre(k):
        k("s_and_b32 s23, s22, 2")
        k("s_and_b32 s24, s22, 1")
        k("s_lshl_b32 s24, s24, 1")
        k("v_and_b32 v3, 31, v1")
        k("v_lshrrev_b32 v4, 5, v1")
        k("v_lshlrev_b32 v2, 4, v1")
        k("s_lshl_b32 s27, s20, 2")
        k("s_add_u32 s27, s27, s23")
        k("s_waitcnt lgkmcnt(0)")
        k("s_mov_b32 s18, %d" % WS_END); k("s_mov_b32 s19, 0x00020000")
    def epilogue(k, cfg):
        ACC = cfg["ACC"]
        C0 = -2.0 * 1.4426950408889634 * 0.7978845608028654
        C1 = C0 * 0.044715
        KC_ = 16
        k(f"v_mov_b32 v{KC_}, {f32(C0)}"); k(f"v_mov_b32 v{KC_+1}, {f32(C0)}")
        k(f"v_mov_b32 v{KC_+2}, {f32(C1)}"); k(f"v_mov_b32 v{KC_+3}, {f32(C1)}")
        k(f"v_mov_b32 v{KC_+4}, 1.0"); k(f"v_mov_b32 v{KC_+5}, 1.0")
        k("v_lshlrev_b32 v5, 4, v4")
        k("s_lshl_b32 s26, s24, 7")
        k(f"s_add_u32 s26, s26, {CSB}")
        k("v_add_u32 v5, s26, v5")
        k("v_lshlrev_b32 v6, 3, v3")
        k("s_lshl_b32 s26, s23, 8")
        k(f"s_add_u32 s26, s26, {STB}")
        k("v_add_u32 v6, s26, v6")
        k(f"s_mul_i32 s30, s27, {112*1024}")
        k("s_lshl_b32 s26, s21, 13")
        k("s_add_u32 s30, s30, s26")
        k("s_lshl_b32 s26, s24, 11")
        k("s_add_u32 s30, s30, s26")
        k(f"s_add_u32 s30, s30, {WS_G}")
        k("s_barrier")
        k("ds_read_b64 v[22:23], v6")
        k("ds_read_b64 v[24:25], v6 offset:256")
        CS = 28; B1 = 36; T = 44
        def ldcs(g, hf):
            for rr in range(2):
                k(f"ds_read_b128 {vr(CS+4*rr,4)}, v5 offset:{g*128+(2*hf+rr)*32}")
                k(f"ds_read_b128 {vr(B1+4*rr,4)}, v5 offset:{512+g*128+(2*hf+rr)*32}")
        ldcs(0, 0)
        k("s_waitcnt lgkmcnt(4)")
        for i in range(2):
            k(f"v_mov_b32 v{8+4*i}, v{22+2*i}")
            k(f"v_mov_b32 v{9+4*i}, v{22+2*i}")
            k(f"v_mov_b32 v{10+4*i}, v{23+2*i}")
            k(f"v_mov_b32 v{11+4*i}, v{23+2*i}")
        P2 = lambda b, r: vr(b+2*r, 2)
        U = 52
        for g in range(2):
            for hf in range(2):
                k("s_waitcnt lgkmcnt(0)")
                for i in range(2):
                    for r in range(4): k(f"v_pk_fma_f32 {P2(T if i == 0 else U,r)}, {vr(10+4*i,2)}, {P2(CS,r)}, {P2(B1,r)}")
                nxt = (g, 1) if hf == 0 else ((1, 0) if g == 0 else None)
                for i in range(2):
                    acc = ACC + 16*(i*2 + g) + 8*hf
                    TT = T if i == 0 else U
                    for r in range(4): k(f"v_pk_fma_f32 {P2(acc,r)}, {P2(acc,r)}, {vr(8+4*i,2)}, {P2(TT,r)}")
                if nxt: ldcs(*nxt)
                for i in range(2):
                    acc = ACC + 16*(i*2 + g) + 8*hf
                    TT = T if i == 0 else U
                    for r in range(4): k(f"v_pk_mul_f32 {P2(TT,r)}, {P2(acc,r)}, {P2(acc,r)}")
                    for r in range(4): k(f"v_pk_fma_f32 {P2(TT,r)}, {P2(TT,r)}, {vr(KC_+2,2)}, {vr(KC_,2)}")
                    for r in range(4): k(f"v_pk_mul_f32 {P2(TT,r)}, {P2(TT,r)}, {P2(acc,r)}")
                for i in range(2):
                    TT = T if i == 0 else U
                    for r in range(8): k(f"v_exp_f32 v{TT+r}, v{TT+r}")
                for i in range(2):
                    TT = T if i == 0 else U
                    for r in range(4): k(f"v_pk_add_f32 {P2(TT,r)}, {P2(TT,r)}, {vr(KC_+4,2)}")
                for i in range(2):
                    TT = T if i == 0 else U
                    for r in range(8): k(f"v_rcp_f32 v{TT+r}, v{TT+r}")
                for i in range(2):
                    acc = ACC + 16*(i*2 + g) + 8*hf
                    TT = T if i == 0 else U
                    for r in range(4): k(f"v_pk_mul_f32 {P2(acc,r)}, {P2(acc,r)}, {P2(TT,r)}")
                    for r in range(4): k(f"v_cvt_pk_bf16_f32 v{acc+r}, v{acc+2*r}, v{acc+2*r+1}")
                    k(f"s_add_u32 s26, s30, {i*112*1024 + g*2048 + hf*1024}")
                    k(f"buffer_store_dwordx4 {vr(acc,4)}, v2, s[16:19], s26 offen")
    gemm_core(k, name, cfg, dict(srds_a=srds_a, srds_w=srds_w, aprod_pre=aprod_pre, aprod_post=aprod_post, prod_pre=prod_pre, prod_post=prod_post,
                                 cons_pre=cons_pre, epilogue=epilogue))
    assert cfg["FREE"] <= 128 and cfg["ACC"] == 60
    k(f"{name}_done:")
    k("s_endpgm")
    return k

def make_qkv(ST=False):
    name = "qkv_kernel"
    NS = 5; SZ = 16384 + 12288
    SCR = NS*SZ; CSB = SCR + 16384; STB = CSB + 512
    ONES = 10; CSA = 112
    k = Kern(name, 256, 1024, 163840, 128)
    common_head(k, name, 256, ST)
    k("s_load_dwordx4 s[4:7], s[0:1], 0")
    k("s_load_dwordx2 s[16:17], s[0:1], 80")
    k("s_and_b32 s24, s2, 7")
    k("s_lshr_b32 s25, s2, 3")
    k("s_lshr_b32 s20, s24, 1")
    k("s_lshl_b32 s20, s20, 2")
    k("s_and_b32 s26, s25, 3")
    k("s_add_u32 s20, s20, s26")
    k("s_and_b32 s21, s24, 1")
    k("s_lshl_b32 s21, s21, 3")
    k("s_lshr_b32 s27, s25, 2")
    k("s_add_u32 s21, s21, s27")
    k("s_lshl_b32 s26, s26, 1")
    k("s_add_u32 s29, s26, s27")
    k("s_and_b32 s29, s29, 7")
    if ROT[0] == "0": k("s_mov_b32 s29, 0")
    ids(k)
    k("s_lshl_b32 s30, s20, 17")
    k("s_mul_i32 s32, s21, 192")
    cfg = dict(NTT=4, NG=3, KC=4, NCH=8, NS=NS, AHEAD=3, a_mode="rows", a_srd=8, w_srd=12, w_stride=3072, perm="nat",
               wave_ntt=1, wave_ng=3, NSET=2, ST=ST, NVAR=3)
    def srds_a(k):
        k.srd(8, 4, 2048*1024)
    def srds_w(k):
        k.srd(12, 6, 512*3072)
    def helper_pre(k):
        k("v_lshrrev_b32 v4, 5, v1")
        k("v_and_b32 v5, 31, v1")
        k("v_bfe_u32 v6, v1, 1, 3")
        k("v_xor_b32 v6, v6, v4")
        k("v_lshlrev_b32 v6, 4, v6")
        k("v_lshl_add_u32 v6, v5, 7, v6")
        k("s_lshl_b32 s26, s23, 12")
        k("v_add_u32 v20, s26, v6")
        for s_ in range(1, 4): k(f"v_xor_b32 v{20+s_}, {s_*32}, v20")
        for s_ in range(4): k(f"v_add_u32 v{24+s_}, 0x10000, v{20+s_}")
        for r in range(28, 32): k(f"v_mov_b32 v{r}, 0")
    def stat_ops(k, base):
        for s_ in range(4):
            for q in range(4):
                r = base + 4*s_ + q
                t = 64 + 2*(q & 1)
                k(f"v_lshlrev_b32 v{t}, 16, v{r}")
                k(f"v_and_b32 v{t+1}, 0xffff0000, v{r}")
                k(f"v_add_f32 v28, v28, v{t}")
                k(f"v_add_f32 v29, v29, v{t+1}")
                k(f"v_fmac_f32 v30, v{t}, v{t}")
                k(f"v_fmac_f32 v31, v{t+1}, v{t+1}")
    def helper_chunk(k, c, slot):
        base = 32 + 16*(c & 1)
        for s_ in range(4):
            if slot >= 65536: k(f"ds_read_b128 {vr(base+4*s_,4)}, v{24+s_} offset:{slot-65536}")
            else: k(f"ds_read_b128 {vr(base+4*s_,4)}, v{20+s_} offset:{slot}")
        if c > 0: stat_ops(k, 32 + 16*((c-1) & 1))
        k("s_waitcnt lgkmcnt(0)")
        if c == 7: stat_ops(k, base)
    def helper_post(k):
        k("v_add_f32 v28, v28, v29")
        k("v_add_f32 v30, v30, v31")
        k("v_mov_b32 v29, v28")
        k("v_mov_b32 v31, v30")
        k("s_nop 1")
        k("v_permlane32_swap_b32 v28, v29")
        k("v_permlane32_swap_b32 v30, v31")
        k("s_nop 0")
        k("v_add_f32 v28, v28, v29")
        k("v_add_f32 v30, v30, v31")
        k(f"v_mul_f32 v28, {f32(1/512)}, v28")
        k(f"v_mul_f32 v30, {f32(1/512)}, v30")
        k("v_fma_f32 v30, -v28, v28, v30")
        k("v_max_f32 v30, 0, v30")
        k(f"v_add_f32 v30, {f32(1e-5)}, v30")
        k("v_rsq_f32 v30, v30")
        k("v_lshlrev_b32 v5, 3, v1")
        k("v_mul_f32 v31, v28, v30")
        k("v_sub_f32 v31, 0, v31")
        k("s_lshl_b32 s26, s23, 9")
        k(f"s_add_u32 s26, s26, {STB}")
        k("v_add_u32 v5, s26, v5")
        k("ds_write_b64 v5, v[30:31]")
        k("s_waitcnt lgkmcnt(0)")
        k("s_barrier")
    def cons_pre(k):
        k("s_mov_b32 s23, s22")
        k("s_mov_b32 s24, 0")
        k("v_and_b32 v3, 31, v1")
        k("v_lshrrev_b32 v4, 5, v1")
        k("v_lshlrev_b32 v2, 4, v1")
        for r in range(4): k(f"v_mov_b32 v{ONES+r}, 0x3f803f80")
        for r in range(16): k(f"v_mov_b32 v{CSA+r}, 0")
        k("s_min_u32 s36, s22, 2")
        k("s_waitcnt lgkmcnt(0)")
        k("s_mov_b32 s18, %d" % (6 << 20)); k("s_mov_b32 s19, 0x00020000")
    def after_step(k, s_, fwf):
        k(f"v_mfma_f32_32x32x16_bf16 {vr(CSA,16)}, {vr(fwf(cfg['VAR']),4)}, {vr(ONES,4)}, {vr(CSA,16)}")
    def epilogue(k, cfg):
        ACC = cfg["ACC"]
        k("v_lshlrev_b32 v5, 4, v4")
        k("s_lshl_b32 s26, s36, 7")
        k(f"s_add_u32 s26, s26, {CSB}")
        k("v_add_u32 v11, s26, v5")
        k("s_mov_b32 exec_lo, 1")
        k("s_mov_b32 exec_hi, 1")
        k("s_nop 4")
        for rr in range(4):
            k(f"ds_write_b128 v11, {vr(CSA+4*rr,4)} offset:{rr*32}")
        k("s_mov_b64 exec, -1")
        k("s_lshl_b32 s27, s20, 2")
        k("s_add_u32 s27, s27, s22")
        k("s_lshl_b32 s27, s27, 10")
        k("s_mul_i32 s28, s21, 3")
        QS = 0.25 * 1.4426950408889634
        k("s_lshl_b32 s31, s22, 12")
        k(f"s_add_u32 s31, s31, {SCR}")
        k("v_lshlrev_b32 v6, 6, v3")
        k("v_lshl_add_u32 v6, v4, 3, v6")
        k("v_add_u32 v6, s31, v6")
        k("v_bfe_u32 v7, v1, 2, 2")
        k("v_lshl_add_u32 v8, v4, 2, v7")
        k("v_lshlrev_b32 v8, 6, v8")
        k("v_bfe_u32 v7, v1, 4, 1")
        k("v_lshl_add_u32 v8, v7, 5, v8")
        k("v_and_b32 v7, 3, v1")
        k("v_lshl_add_u32 v8, v7, 3, v8")
        k("v_add_u32 v8, s31, v8")
        k("v_bfe_u32 v9, v1, 4, 1")
        k("v_lshlrev_b32 v9, 16, v9")
        k("v_lshl_add_u32 v9, v4, 8, v9")
        k("v_and_b32 v7, 15, v1")
        k("v_lshl_add_u32 v9, v7, 4, v9")
        k("v_lshlrev_b32 v5, 4, v4")
        k(f"v_add_u32 v5, {CSB}, v5")
        k("v_lshlrev_b32 v10, 3, v1")
        k("s_lshl_b32 s26, s22, 9")
        k(f"s_add_u32 s26, s26, {STB}")
        k("v_add_u32 v10, s26, v10")
        k("s_waitcnt lgkmcnt(0)")
        k("s_barrier")
        k("ds_read_b64 v[12:13], v10")
        CSR = [16, 32, 48]
        for g in range(3):
            for rr in range(4):
                k(f"ds_read_b128 {vr(CSR[g]+4*rr,4)}, v5 offset:{g*128+rr*32}")
        P2 = lambda b, r: vr(b+2*r, 2)
        for g in range(3):
            acc = ACC + 16*g; cs = CSR[g]
            lq = k.label("q"); lv = k.label("v"); le = k.label("e")
            k(f"s_add_u32 s33, s28, {g}")
            k(f"s_waitcnt lgkmcnt({8-4*g})")
            k("v_mov_b32 v114, v12")
            k("v_mov_b32 v116, v13")
            k("s_cmp_ge_u32 s33, 16")
            k(f"s_cbranch_scc1 {lq}")
            k(f"v_mul_f32 v114, {f32(QS)}, v114")
            k(f"v_mul_f32 v116, {f32(QS)}, v116")
            k(f"{lq}:")
            k("v_mov_b32 v115, v114")
            k("v_mov_b32 v117, v116")
            for r in range(8): k(f"v_pk_mul_f32 {P2(cs,r)}, {P2(cs,r)}, v[116:117]")
            for r in range(8): k(f"v_pk_fma_f32 {P2(acc,r)}, {P2(acc,r)}, v[114:115], {P2(cs,r)}")
            for r in range(8): k(f"v_cvt_pk_bf16_f32 v{acc+r}, v{acc+2*r}, v{acc+2*r+1}")
            k("s_lshr_b32 s34, s33, 4")
            k("s_lshl_b32 s34, s34, 21")
            k("s_and_b32 s35, s33, 15")
            k("s_lshl_b32 s35, s35, 17")
            k("s_add_u32 s34, s34, s35")
            k("s_add_u32 s34, s34, s27")
            k("s_cmp_ge_u32 s33, 32")
            k(f"s_cbranch_scc1 {lv}")
            k(f"buffer_store_dwordx4 {vr(acc,4)}, v2, s[16:19], s34 offen")
            k("s_add_u32 s34, s34, 65536")
            k(f"buffer_store_dwordx4 {vr(acc+4,4)}, v2, s[16:19], s34 offen")
            k(f"s_branch {le}")
            k(f"{lv}:")
            for rr in range(4):
                k(f"ds_write_b64 v6, {vr(acc+2*rr,2)} offset:{rr*16}")
            k("s_waitcnt lgkmcnt(0)")
            for j in range(2):
                k(f"ds_read_b64_tr_b16 {vr(acc+8+4*j,2)}, v8 offset:{j*1024}")
                k(f"ds_read_b64_tr_b16 {vr(acc+8+4*j+2,2)}, v8 offset:{j*1024+512}")
            k("s_waitcnt lgkmcnt(0)")
            k(f"buffer_store_dwordx4 {vr(acc+8,4)}, v9, s[16:19], s34 offen")
            k(f"buffer_store_dwordx4 {vr(acc+12,4)}, v9, s[16:19], s34 offen offset:512")
            k(f"{le}:")
    gemm_core(k, name, cfg, dict(srds_a=srds_a, srds_w=srds_w,
                                 helper_pre=helper_pre, helper_chunk=helper_chunk, helper_post=helper_post,
                                 cons_pre=cons_pre, pre_step=after_step, epilogue=epilogue))
    assert cfg["FREE"] <= 112 and cfg["ACC"] == 64
    k(f"{name}_done:")
    k("s_endpgm")
    return k
```

```python
from dsl import *

import os
def make_att(ST=False, PF=(1,1,1), ZROWS=True, PRIO=os.environ.get("PRIO","")):
    UNR = 8
    MRG = 131072 + 2048
    k = Kern("att_kernel", 256, 1024, MRG + 8*2560, 128)
    Q=4; KF=[8,12]; VF0=[16,20]; VF1=[24,28]; P=32; S=[40,56]; O=72; NM=88
    k("s_cmp_ge_u32 s2, 256")
    k("s_cbranch_scc1 att_done")
    if ST: stamp_rt(k, 0)
    stamp(k, 1, ST)
    k("s_load_dwordx2 s[16:17], s[0:1], 80")
    k("s_load_dwordx2 s[44:45], s[0:1], 16")
    k("s_load_dwordx2 s[48:49], s[0:1], 32")
    k("s_load_dwordx2 s[52:53], s[0:1], 48")
    k("s_and_b32 s24, s2, 7")
    k("s_lshr_b32 s25, s2, 3")
    k("s_lshl_b32 s20, s24, 2")
    k("s_and_b32 s26, s25, 3")
    k("s_add_u32 s20, s20, s26")
    k("s_lshr_b32 s21, s25, 2")
    k("v_lshrrev_b32 v2, 6, v0")
    k("v_and_b32 v1, 63, v0")
    k("v_readfirstlane_b32 s22, v2")
    k("v_lshlrev_b32 v2, 4, v1")
    k("s_and_b32 s30, s22, 7")
    k("s_lshr_b32 s31, s22, 3")
    k("s_lshl_b32 s23, s20, 16")
    k("s_lshl_b32 s26, s21, 3")
    k("s_add_u32 s27, s26, s30")
    k("s_lshl_b32 s26, s27, 10")
    k("s_add_u32 s39, s26, s23")
    k("s_and_b32 s26, s30, 3")
    k("s_lshl_b32 s26, s26, 10")
    k("s_lshl_b32 s28, s31, 15")
    k("s_add_u32 s26, s26, s28")
    k("s_lshr_b32 s28, s30, 2")
    k("s_lshl_b32 s29, s28, 16")
    k("s_add_u32 s29, s29, s26")
    k("s_lshl_b32 s28, s28, 21")
    k(f"s_add_u32 s28, s28, {WS_K}")
    k("s_add_u32 s28, s28, s23")
    k("s_add_u32 s28, s28, s26")
    k("s_waitcnt lgkmcnt(0)")
    k("s_mov_b32 s18, %d" % (8 << 20))
    k("s_mov_b32 s19, 0x00020000")
    def dma(c):
        k(f"s_add_u32 s26, s21, {c}")
        k("s_and_b32 s26, s26, 7")
        k("s_lshl_b32 s26, s26, 12")
        k("s_add_u32 s26, s26, s28")
        k(f"s_add_u32 m0, s29, {c*4096}")
        k("s_nop 0")
        k(f"buffer_load_dwordx4 v2, s[16:19], s26 offen lds")
    dma(0)
    k(f"buffer_load_dwordx4 {vr(Q,4)}, v2, s[16:19], s39 offen")
    dma(1); dma(2)
    stamp(k, 2, ST)
    k("s_lshl_b32 s26, s31, 15")
    k("v_add_u32 v106, s26, v2")
    k("v_lshrrev_b32 v3, 5, v1")
    k("v_lshlrev_b32 v3, 8, v3")
    k("v_and_b32 v104, 15, v1")
    k("v_lshl_add_u32 v3, v104, 4, v3")
    k("v_add_u32 v3, 0x10000, v3")
    k("v_add_u32 v107, s26, v3")
    k("v_lshlrev_b32 v111, 4, v1")
    if ZROWS:
        k("v_and_b32 v104, 27, v1")
        k("v_cmp_eq_u32 vcc, 16, v104")
        k("v_mov_b32 v105, 0x3f803f80")
        k("v_mov_b32 v104, 0")
        k("v_cndmask_b32 v104, v104, v105, vcc")
        for r in range(16, 32): k(f"v_mov_b32 v{r}, v104")
    else:
        for r in range(16, 32): k(f"v_mov_b32 v{r}, 0x3f803f80")
    k("s_mov_b32 s34, 0x0000ffff")
    k("s_mov_b32 s35, 0x0000ffff")
    k("s_mov_b32 s36, 0")
    k("s_mov_b32 s37, 1")
    k("s_waitcnt vmcnt(0)")
    k("s_barrier")
    stamp(k, 3, ST)
    k("att_retry:")
    k("v_mov_b32 v104, 0xff800000")
    k("v_mov_b32 v105, v106")
    k("s_mov_b32 s38, 0")
    k("att_maxloop:")
    k(f"ds_read_b128 {vr(KF[0],4)}, v105")
    k("v_add_u32 v105, 1024, v105")
    k("s_waitcnt lgkmcnt(0)")
    k(f"v_mfma_f32_32x32x16_bf16 {vr(S[0],16)}, {vr(KF[0],4)}, {vr(Q,4)}, 0")
    k("s_nop 15")
    for r in range(0, 16, 2):
        k(f"v_max3_f32 v104, v{S[0]+r}, v{S[0]+r+1}, v104")
    k("s_add_u32 s38, s38, 1")
    k("s_cmp_lt_u32 s38, s37")
    k("s_cbranch_scc1 att_maxloop")
    k("v_mov_b32 v105, v104")
    k("s_nop 1")
    k("v_permlane32_swap_b32 v104, v105")
    k("v_mov_b32 v2, v106")
    k("v_mov_b32 v3, v107")
    k("v_max_f32 v104, v104, v105")
    k(f"ds_read_b128 {vr(KF[1],4)}, v2 offset:1024")
    k("s_mov_b64 exec, s[34:35]")
    k(f"ds_read_b128 {vr(VF0[0],4)}, v3")
    k("s_mov_b64 exec, -1")
    k(f"ds_read_b128 {vr(KF[0],4)}, v2")
    for r in range(16):
        k(f"v_sub_f32 v{NM+r}, 0, v104")
    for r in range(16):
        k(f"v_mov_b32 v{O+r}, 0")
    for r in range(4):
        k(f"v_mov_b32 v{P+4+r}, 0")
    k("s_waitcnt lgkmcnt(0)")
    k(f"v_mfma_f32_32x32x16_bf16 {vr(S[0],16)}, {vr(KF[0],4)}, {vr(Q,4)}, {vr(NM,16)}")
    k("s_nop 7")
    def body(extra=None):
        for u in range(UNR):
            b = u & 1; nb = b ^ 1
            Sc = S[b]; Sn = S[nb]
            if PRIO == "cyc": k(f"s_setprio {3 - (u & 3)}")
            if PRIO == "cyc2": k(f"s_setprio {3 - ((u >> 1) & 3)}")
            k("s_waitcnt lgkmcnt(0)")
            k(f"v_mfma_f32_32x32x16_bf16 {vr(Sn,16)}, {vr(KF[nb],4)}, {vr(Q,4)}, {vr(NM,16)}")
            k(f"ds_read_b128 {vr(KF[b],4)}, v2 offset:{(u+2)*1024}")
            k("s_mov_b64 exec, s[34:35]")
            k(f"ds_read_b128 {vr(VF0[nb],4)}, v3 offset:{(u+1)*1024}")
            k(f"ds_read_b128 {vr(VF1[b],4)}, v3 offset:{u*1024+512}")
            k("s_mov_b64 exec, -1")
            for r in range(6):
                k(f"v_exp_f32 v{Sc+r}, v{Sc+r}")
            k(f"v_mfma_f32_32x32x16_bf16 {vr(O,16)}, {vr(VF1[nb],4)}, {vr(P+4,4)}, {vr(O,16)}")
            for r in range(6, 8):
                k(f"v_exp_f32 v{Sc+r}, v{Sc+r}")
            for r in range(4):
                k(f"v_cvt_pk_bf16_f32 v{P+r}, v{Sc+2*r}, v{Sc+2*r+1}")
            for r in range(8, 11):
                k(f"v_exp_f32 v{Sc+r}, v{Sc+r}")
            k(f"v_mfma_f32_32x32x16_bf16 {vr(O,16)}, {vr(VF0[b],4)}, {vr(P,4)}, {vr(O,16)}")
            for r in range(11, 16):
                k(f"v_exp_f32 v{Sc+r}, v{Sc+r}")
            for r in range(4):
                k(f"v_cvt_pk_bf16_f32 v{P+4+r}, v{Sc+8+2*r}, v{Sc+8+2*r+1}")
            if extra: extra(u)
        k(f"v_add_u32 v2, {UNR*1024}, v2")
        k(f"v_add_u32 v3, {UNR*1024}, v3")
    NIT = 32 // UNR
    k("s_mov_b32 s38, 0")
    k("s_cmp_lg_u32 s36, 0")
    k("s_cbranch_scc1 att_loop")
    def extra(u):
        c = 3 + u
        if c < 8:
            k(f"s_add_u32 s26, s21, {c}")
            k("s_and_b32 s26, s26, 7")
            k("s_lshl_b32 s26, s26, 12")
            k("s_add_u32 s26, s26, s28")
            k(f"s_add_u32 m0, s29, {c*4096}")
            k("s_nop 0")
            k(f"buffer_load_dwordx4 v111, s[16:19], s26 offen lds")
    body(extra)
    k("s_waitcnt vmcnt(0)")
    k("s_barrier")
    k("v_lshlrev_b32 v108, 7, v1")
    if PF[0]:
        lab = k.label("pf")
        k("s_cmp_ge_u32 s22, 2")
        k(f"s_cbranch_scc1 {lab}")
        k("s_mov_b32 s46, %d" % (512*1024)); k("s_mov_b32 s47, 0x00020000")
        k("s_lshl_b32 s26, s25, 1"); k("s_add_u32 s26, s26, s22"); k("s_lshl_b32 s26, s26, 13")
        k("buffer_load_dword v110, v108, s[44:47], s26 offen")
        k(f"{lab}:")
    if PF[1]:
        lab = k.label("pf")
        k("s_sub_u32 s40, s22, 2")
        k("s_cmp_ge_u32 s40, 4")
        k(f"s_cbranch_scc1 {lab}")
        k("s_mov_b32 s50, %d" % (512*3584)); k("s_mov_b32 s51, 0x00020000")
        k("v_and_b32 v109, 15, v1")
        k("v_min_u32 v109, 13, v109")
        k("v_lshlrev_b32 v109, 7, v109")
        k("v_lshrrev_b32 v110, 4, v1")
        k("v_mul_u32_u24 v110, 3584, v110")
        k("v_add_u32 v109, v109, v110")
        k("s_lshl_b32 s26, s25, 2"); k("s_add_u32 s26, s26, s40"); k("s_mul_i32 s26, s26, %d" % (4*3584))
        k("s_and_b32 s40, s24, 1"); k("s_mul_i32 s40, s40, 1792"); k("s_add_u32 s26, s26, s40")
        k("buffer_load_dword v110, v109, s[48:51], s26 offen")
        k(f"{lab}:")
    if PF[2]:
        lab = k.label("pf")
        k("s_sub_u32 s40, s22, 8")
        k("s_cmp_ge_u32 s40, 7")
        k(f"s_cbranch_scc1 {lab}")
        k("s_mov_b32 s54, %d" % (1792*1024)); k("s_mov_b32 s55, 0x00020000")
        k("s_mul_i32 s26, s25, 7"); k("s_add_u32 s26, s26, s40"); k("s_lshl_b32 s26, s26, 13")
        k("buffer_load_dword v110, v108, s[52:55], s26 offen")
        k(f"{lab}:")
    k("s_mov_b32 s38, 1")
    k("att_loop:")
    body()
    k("s_add_u32 s38, s38, 1")
    k(f"s_cmp_lt_u32 s38, {NIT}")
    k("s_cbranch_scc1 att_loop")
    stamp(k, 4, ST)
    k("s_waitcnt lgkmcnt(0)")
    k(f"v_mfma_f32_32x32x16_bf16 {vr(O,16)}, {vr(VF1[(UNR-1)&1],4)}, {vr(P+4,4)}, {vr(O,16)}")
    k("s_nop 15")
    k(f"v_add_f32 v104, |v{O}|, |v{O+1}|")
    k(f"v_add_f32 v105, |v{O+2}|, |v{O+3}|")
    k(f"v_add_f32 v108, |v{O+4}|, |v{O+5}|")
    k(f"v_add_f32 v109, |v{O+6}|, |v{O+7}|")
    k("v_add_f32 v104, v104, v105")
    k("v_add_f32 v108, v108, v109")
    k("v_add_f32 v104, v104, v108")
    k(f"v_mul_f32 v104, {f32(2.0**-20)}, v104")
    k(f"v_add_f32 v104, v104, v{O+8}")
    k(f"v_mov_b32 v108, {f32(2.0**100)}")
    k("v_cmp_nlt_f32 vcc, v104, v108")
    k("s_nop 3")
    k("s_cmp_eq_u64 vcc, 0")
    k("s_cbranch_scc1 att_ok")
    k("s_cmp_lg_u32 s36, 0")
    k("s_cbranch_scc1 att_ok")
    k("s_mov_b32 s36, 1")
    k("s_mov_b32 s37, 32")
    k("s_branch att_retry")
    k("att_ok:")
    k("s_lshl_b32 s26, s30, 11"); k("s_lshl_b32 s28, s30, 9"); k("s_add_u32 s26, s26, s28")
    k(f"s_add_u32 s26, s26, {MRG}")
    k("v_add_u32 v104, s26, v111")
    k("v_lshlrev_b32 v105, 3, v1")
    k("v_add_u32 v105, s26, v105")
    k(f"v_mov_b32 v{O+9}, v{NM}")
    lab = k.label("m")
    k("s_cmp_eq_u32 s31, 0")
    k(f"s_cbranch_scc1 {lab}")
    k(f"ds_write_b128 v104, {vr(O,4)}")
    k(f"ds_write_b128 v104, {vr(O+4,4)} offset:1024")
    k(f"ds_write_b64 v105, {vr(O+8,2)} offset:2048")
    k("s_waitcnt lgkmcnt(0)")
    k("s_barrier")
    k("s_branch att_fin")
    k(f"{lab}:")
    k("s_barrier")
    k(f"ds_read_b128 {vr(S[0],4)}, v104")
    k(f"ds_read_b128 {vr(S[0]+4,4)}, v104 offset:1024")
    k(f"ds_read_b64 {vr(S[0]+8,2)}, v105 offset:2048")
    k("s_waitcnt lgkmcnt(0)")
    k(f"v_min_f32 v104, v{O+9}, v{S[0]+9}")
    k(f"v_sub_f32 v105, v104, v{O+9}")
    k(f"v_sub_f32 v108, v104, v{S[0]+9}")
    k("v_exp_f32 v105, v105")
    k("v_exp_f32 v108, v108")
    k("s_nop 0")
    for r in range(9):
        k(f"v_mul_f32 v{O+r}, v{O+r}, v105")
    for r in range(9):
        k(f"v_fmac_f32 v{O+r}, v{S[0]+r}, v108")
    k(f"v_rcp_f32 v104, v{O+8}")
    k("s_nop 0")
    for r in range(8):
        k(f"v_mul_f32 v{O+r}, v{O+r}, v104")
    for r in range(4):
        k(f"v_cvt_pk_bf16_f32 v{P+r}, v{O+2*r}, v{O+2*r+1}")
    k("s_lshl_b32 s26, s27, 15")
    k("s_lshl_b32 s28, s20, 10")
    k("s_add_u32 s26, s26, s28")
    k(f"s_add_u32 s26, s26, {WS_O}")
    k(f"buffer_store_dwordx4 {vr(P,4)}, v111, s[16:19], s26 offen")
    k("s_branch att_fin")
    k("att_fin:")
    stamp(k, 5, ST)
    if ST:
        k("s_waitcnt vmcnt(0)")
        stamp(k, 6, ST)
        k("s_waitcnt lgkmcnt(0)")
        stamp_rt(k, 7)
        stamp_flush(k, 8, 16, 22, 16)
    k("att_done:")
    k("s_endpgm")
    return k
```

```python
import sys
from dsl import *
from k_att import make_att
from k2 import make_g64, make_mlp1, make_qkv
def kernels(ST=False):
    return [make_qkv(ST), make_att(ST), make_g64("wo", ST), make_mlp1(ST), make_g64("mlp2", ST)]
if __name__ == "__main__":
    ks = kernels()
    out = sys.argv[1] if len(sys.argv) > 1 else "sequential_preLN__mha_block__mixer_channel_mlp__prompt.s"
    build(ks, out)
    import json
    json.dump([(k.name, k.grid, k.block, k.lds) for k in ks], open("all.json", "w"))
    build(kernels(True), "all_st.s")
```

```python
import struct
def v(n): return f"v{n}"
def vr(n, c): return f"v[{n}:{n+c-1}]"
def a(n): return f"a{n}"
def ar(n, c): return f"a[{n}:{n+c-1}]"
def s(n): return f"s{n}"
def sr(n, c): return f"s[{n}:{n+c-1}]"
def f32(x): return "0x%08x" % struct.unpack("<I", struct.pack("<f", x))[0]

class Kern:
    def __init__(self, name, grid, block, lds, nvgpr, nsgpr=96, accum=None):
        self.name = name; self.grid = grid; self.block = block; self.lds = lds
        self.nvgpr = nvgpr; self.nsgpr = nsgpr
        self.accum = accum if accum is not None else ((nvgpr + 3) // 4 * 4)
        self.L = []
        self.lab = 0
    def __call__(self, line):
        for l in line.split("\n"):
            l = l.strip()
            if l: self.L.append("    " + l if not l.endswith(":") else l)
    def label(self, base="L"):
        self.lab += 1
        return f"{self.name}_{base}{self.lab}"
    def srd(self, sreg, ptr_lo, nbytes):
        self(f"s_mov_b32 s{sreg}, s{ptr_lo}")
        self(f"s_mov_b32 s{sreg+1}, s{ptr_lo+1}")
        self(f"s_mov_b32 s{sreg+2}, {nbytes}")
        self(f"s_mov_b32 s{sreg+3}, 0x00020000")
    def text(self):
        h = f".globl {self.name}\n.p2align 8\n.type {self.name},@function\n{self.name}:\n"
        return h + "\n".join(self.L) + "\n"
    def desc(self):
        return f""".amdhsa_kernel {self.name}
  .amdhsa_next_free_vgpr {self.nvgpr}
  .amdhsa_next_free_sgpr {self.nsgpr}
  .amdhsa_accum_offset {self.accum}
  .amdhsa_group_segment_fixed_size 0
  .amdhsa_kernarg_size 88
  .amdhsa_user_sgpr_count 2
  .amdhsa_user_sgpr_kernarg_segment_ptr 1
  .amdhsa_system_sgpr_workgroup_id_x 1
.end_amdhsa_kernel
"""
    def launch_line(self):
        g = self.grid; b = self.block
        return f"; @launch kernel={self.name} grid=({g},1,1) block=({b},1,1) lds={self.lds}\n"

HEADER = """; Kernarg layout for this problem (88 bytes, ptrs only, base s[0:1]):
"""
import os, re
STORE_FLAGS = os.environ.get("SC", "sc1")
def build(kernels, path):
    if STORE_FLAGS:
        for k in kernels:
            if k.name in os.environ.get("SCK", "qkv_kernel,att_kernel,wo_kernel,mlp1_kernel").split(","):
                k.L = [(l + " " + STORE_FLAGS) if ("buffer_store_dwordx4" in l and "s[56:59]" not in l) else l for l in k.L]
    src = HEADER
    for k in kernels: src += k.launch_line()
    src += '.amdgcn_target "amdgcn-amd-amdhsa--gfx950"\n.text\n'
    for k in kernels: src += k.text()
    src += '.section .rodata,"a"\n.p2align 6\n'
    for k in kernels: src += k.desc()
    open(path, "w").write(src)
    return src

WS_Q = 0
WS_K = 2 << 20
WS_V = 4 << 20
WS_O = 6 << 20
WS_H = 8 << 20
WS_G = 10 << 20
WS_END = 18 << 20

STAMP_BASE = 64 << 20
def stamp(k, idx, on=True):
    if not on: return
    k(f"s_memtime s[{60+2*idx}:{61+2*idx}]")
def stamp_rt(k, idx):
    k(f"s_memrealtime s[{60+2*idx}:{61+2*idx}]")
KIDX = {"qkv_kernel":0, "att_kernel":1, "wo_kernel":2, "mlp1_kernel":3, "mlp2_kernel":4}
def stamp_flush(k, n, ws_lo, wave_sgpr, nwaves):
    k("s_waitcnt lgkmcnt(0)")
    k(f"s_add_u32 s56, s{ws_lo}, {STAMP_BASE + KIDX.get(k.name, 0)*(1<<20)}")
    k(f"s_addc_u32 s57, s{ws_lo+1}, 0")
    k("s_mov_b32 s58, 0x1000000")
    k("s_mov_b32 s59, 0x00020000")
    k(f"s_mul_i32 s55, s2, {nwaves}")
    k(f"s_add_u32 s55, s55, s{wave_sgpr}")
    k("s_lshl_b32 s55, s55, 6")
    k("v_mov_b32 v1, s55")
    k("s_mov_b64 exec, 1")
    for i in range(n):
        k(f"v_mov_b32 v2, s{60+2*i}")
        k(f"buffer_store_dword v2, v1, s[56:59], 0 offen offset:{4*i}")
    k("s_waitcnt vmcnt(0)")
WS_ST = 17 << 20
WS_CS1 = (17 << 20) + (512 << 10)
```

```python
from dsl import *

class G:
    pass

def gemm_core(k, name, cfg, hooks):
    NTT, NG, KC, NCH, NS, AHEAD = (cfg[x] for x in ("NTT", "NG", "KC", "NCH", "NS", "AHEAD"))
    ABYTES = NTT*KC*1024
    WROW = NG*64
    WBYTES = KC*16*WROW
    SZ = ABYTES + WBYTES
    ST = cfg.get("ST", False)
    cfg["NWAVES"] = 16 if ("helper_chunk" in hooks or "free_helper" in hooks) else 12
    k("s_cmp_lt_u32 s22, 4")
    k(f"s_cbranch_scc1 {name}_cons")
    if "helper_chunk" in hooks or "free_helper" in hooks:
        k("s_cmp_ge_u32 s22, 12")
        k(f"s_cbranch_scc1 {name}_help")
    k("s_cmp_ge_u32 s22, 8")
    k(f"s_cbranch_scc1 {name}_wprod")
    ASRD, WSRD = cfg["a_srd"], cfg["w_srd"]
    wst = cfg["w_stride"]
    def prod_loop(per, dma, pre_chunk, post_chunk, post, late=None, nlate=0, init=None):
        issued = 0; extra = 0
        for c in range(min(AHEAD, NCH)):
            dma(c); issued += 1
            if init is not None and c == 0: init(k, per*issued)
        stamp(k, 2, ST)
        for c in range(NCH):
            k(f"s_waitcnt vmcnt({per*(issued - 1 - c) + extra})")
            k("s_barrier")
            pre_chunk(k, c, (c % NS)*SZ)
            if issued < NCH:
                assert issued - NS <= c - 2
                dma(issued); issued += 1
                if issued == NCH and late is not None:
                    late(k); extra = nlate
            post_chunk(k, c, (c % NS)*SZ)
        post(k)
        if ST:
            stamp(k, 3, ST); stamp(k, 4, ST); stamp(k, 5, ST); stamp(k, 6, ST)
            k("s_waitcnt lgkmcnt(0)")
            stamp_rt(k, 7)
            stamp_flush(k, 8, 16, 22, cfg["NWAVES"])
        k("s_endpgm")
    nop2 = lambda k, c, slot: None
    k("s_sub_u32 s23, s22, 4")
    nA = NTT*KC//4
    if cfg["a_mode"] == "frag":
        k("v_lshlrev_b32 v2, 4, v1")
        if NTT == 4:
            k(f"s_mul_i32 s34, s23, {cfg['a_tile_stride']}")
        else:
            k("s_lshr_b32 s26, s23, 1")
            k(f"s_mul_i32 s34, s26, {cfg['a_tile_stride']}")
            k("s_and_b32 s26, s23, 1")
            k(f"s_mul_i32 s26, s26, {nA*1024}")
            k("s_add_u32 s34, s34, s26")
        k("s_add_u32 s34, s34, s30")
        a_chunk_stride = KC*1024
        a_voffs = ["v2"]*nA
        a_soffs = [n*1024 for n in range(nA)]
    else:
        assert KC == 4 and NTT == 4
        k("v_lshrrev_b32 v6, 3, v1")
        k("v_and_b32 v7, 7, v1")
        for n in range(4):
            k(f"v_lshrrev_b32 v8, 1, v6")
            k(f"v_add_u32 v8, {4*n}, v8")
            k(f"v_and_b32 v8, 7, v8")
            k(f"v_xor_b32 v8, v8, v7")
            k(f"v_lshlrev_b32 v8, 4, v8")
            k(f"v_lshl_add_u32 v{10+n}, v6, 10, v8")
        k("s_lshl_b32 s34, s23, 15")
        k("s_add_u32 s34, s34, s30")
        a_chunk_stride = KC*32
        a_voffs = [f"v{10+n}" for n in range(4)]
        a_soffs = [n*8192 for n in range(4)]
    k(f"s_mul_i32 s35, s23, {nA*1024}")
    k(f"s_mul_i32 s38, s29, {a_chunk_stride}")
    k("s_add_u32 s34, s34, s38")
    k(f"s_sub_u32 s38, {NCH}, s29")
    k("s_waitcnt lgkmcnt(0)")
    hooks["srds_a"](k)
    def dma_a(c):
        slot = (c % NS)*SZ
        for n in range(nA):
            k(f"s_add_u32 m0, s35, {slot + n*1024}")
            if a_soffs[n]:
                k(f"s_add_u32 s26, s34, {a_soffs[n]}")
                k(f"buffer_load_dwordx4 {a_voffs[n]}, s[{ASRD}:{ASRD+3}], s26 offen lds")
            else:
                k("s_nop 0")
                k(f"buffer_load_dwordx4 {a_voffs[n]}, s[{ASRD}:{ASRD+3}], s34 offen lds")
        k(f"s_add_u32 s34, s34, {a_chunk_stride}")
        k("s_sub_u32 s38, s38, 1")
        k("s_cmp_eq_u32 s38, 0")
        k(f"s_cselect_b32 s26, {NCH*a_chunk_stride}, 0")
        k("s_sub_u32 s34, s34, s26")
    hooks.get("aprod_pre", lambda k: None)(k)
    prod_loop(nA, dma_a, hooks.get("aprod_chunk_pre", nop2), hooks.get("aprod_chunk_post", nop2), hooks.get("aprod_post", lambda k: None), init=hooks.get("aprod_init"))
    k(f"{name}_wprod:")
    k("s_sub_u32 s23, s22, 8")
    nW = KC*NG//4
    rows_per_p = KC*4
    if NG == 2:
        k("v_lshrrev_b32 v3, 3, v1")
        k("v_and_b32 v4, 7, v1")
        k("v_bfe_u32 v5, v1, 4, 1")
        k("v_lshlrev_b32 v5, 2, v5")
        k("v_xor_b32 v4, v4, v5")
        k("v_lshlrev_b32 v4, 4, v4")
        k(f"s_mov_b32 s26, {wst}")
        k("v_mul_lo_u32 v3, v3, s26")
        k("v_add_u32 v3, v3, v4")
        w_voffs = ["v3"]*nW; w_soffs = [n*8*wst for n in range(nW)]
    elif NG == 4:
        k("v_lshrrev_b32 v3, 4, v1")
        k("v_and_b32 v5, 15, v1")
        k("v_lshlrev_b32 v4, 2, v3")
        k("v_xor_b32 v5, v5, v4")
        k(f"s_mov_b32 s26, {wst}")
        k("v_mul_lo_u32 v3, v3, s26")
        k("v_lshl_add_u32 v3, v5, 4, v3")
        w_voffs = ["v3"]*nW; w_soffs = [n*4*wst for n in range(nW)]
    else:
        assert nW == 3
        k(f"s_mov_b32 s26, {wst}")
        k("s_mov_b32 s27, 0x15555556")
        for n in range(3):
            k(f"v_add_u32 v4, {64*n}, v1")
            k("v_mul_hi_u32 v5, v4, s27")
            k("v_mul_u32_u24 v6, 12, v5")
            k("v_sub_u32 v4, v4, v6")
            k("v_mul_lo_u32 v5, v5, s26")
            k(f"v_lshl_add_u32 v{14+n}, v4, 4, v5")
        w_voffs = [f"v{14+n}" for n in range(3)]; w_soffs = [0, 0, 0]
    k(f"s_mul_i32 s36, s23, {rows_per_p*wst}")
    k("s_add_u32 s36, s36, s32")
    k(f"s_mul_i32 s37, s23, {nW*1024}")
    k(f"s_add_u32 s37, s37, {ABYTES}")
    w_chunk_stride = KC*16*wst
    k(f"s_mul_i32 s39, s29, {w_chunk_stride}")
    k("s_add_u32 s36, s36, s39")
    k(f"s_sub_u32 s38, {NCH}, s29")
    k("s_waitcnt lgkmcnt(0)")
    hooks["srds_w"](k)
    def dma_w(c):
        slot = (c % NS)*SZ
        for n in range(nW):
            k(f"s_add_u32 m0, s37, {slot + n*1024}")
            if w_soffs[n]:
                k(f"s_add_u32 s26, s36, {w_soffs[n]}")
                k(f"buffer_load_dwordx4 {w_voffs[n]}, s[{WSRD}:{WSRD+3}], s26 offen lds")
            else:
                k("s_nop 0")
                k(f"buffer_load_dwordx4 {w_voffs[n]}, s[{WSRD}:{WSRD+3}], s36 offen lds")
        k(f"s_add_u32 s36, s36, {w_chunk_stride}")
        k("s_sub_u32 s38, s38, 1")
        k("s_cmp_eq_u32 s38, 0")
        k(f"s_cselect_b32 s27, {NCH*w_chunk_stride}, 0")
        k("s_sub_u32 s36, s36, s27")
    hooks.get("prod_pre", lambda k: None)(k)
    prod_loop(nW, dma_w, hooks.get("prod_chunk_pre", nop2), hooks.get("prod_chunk_post", nop2), hooks.get("prod_post", lambda k: None), hooks.get("prod_late"), cfg.get("NLATE", 0), init=hooks.get("prod_init"))
    if "helper_chunk" in hooks:
        k(f"{name}_help:")
        k("s_sub_u32 s23, s22, 12")
        hooks["helper_pre"](k)
        stamp(k, 2, ST)
        for c in range(NCH):
            k("s_barrier")
            hooks["helper_chunk"](k, c, (c % NS)*SZ)
        hooks["helper_post"](k)
        if ST:
            stamp(k, 3, ST); stamp(k, 4, ST); stamp(k, 5, ST); stamp(k, 6, ST)
            k("s_waitcnt lgkmcnt(0)")
            stamp_rt(k, 7)
            stamp_flush(k, 8, 16, 22, cfg["NWAVES"])
        k("s_endpgm")
    if "free_helper" in hooks:
        k(f"{name}_help:")
        k("s_sub_u32 s23, s22, 12")
        hooks["free_helper"](k)
        if ST:
            stamp(k, 2, ST); stamp(k, 3, ST); stamp(k, 4, ST); stamp(k, 5, ST); stamp(k, 6, ST)
            k("s_mov_b64 exec, -1")
            k("s_waitcnt lgkmcnt(0)")
            stamp_rt(k, 7)
            stamp_flush(k, 8, 16, 22, cfg["NWAVES"])
        k("s_endpgm")
    k(f"{name}_cons:")
    hooks["cons_pre"](k)
    stamp(k, 2, ST)
    tts, gs = cfg["wave_ntt"], cfg["wave_ng"]
    k("v_lshrrev_b32 v4, 5, v1")
    if cfg["a_mode"] == "frag":
        k("v_lshlrev_b32 v5, 4, v1")
        k(f"s_mul_i32 s26, s23, {KC*1024}")
        k("v_add_u32 v14, s26, v5")
        a_addr_regs = None
    else:
        k("v_and_b32 v5, 31, v1")
        k("v_bfe_u32 v6, v1, 1, 3")
        k("v_xor_b32 v6, v6, v4")
        k("v_lshlrev_b32 v6, 4, v6")
        k("v_lshl_add_u32 v6, v5, 7, v6")
        k("s_lshl_b32 s26, s23, 12")
        k("v_add_u32 v14, s26, v6")
    k("v_bfe_u32 v7, v1, 2, 2")
    if cfg["perm"] == "pi":
        k("v_lshl_add_u32 v8, v4, 2, v7")
        second = 8*WROW
    else:
        k("v_lshl_add_u32 v8, v4, 3, v7")
        second = 4*WROW
    k(f"v_mul_u32_u24 v8, {WROW}, v8")
    if NG == 2:
        k("v_lshrrev_b32 v7, 1, v7")
        k("v_lshl_add_u32 v8, v7, 6, v8")
    elif NG == 4:
        k("v_lshl_add_u32 v8, v7, 6, v8")
    k("v_bfe_u32 v7, v1, 4, 1")
    k("v_lshl_add_u32 v8, v7, 5, v8")
    k("v_and_b32 v7, 3, v1")
    k("v_lshl_add_u32 v8, v7, 3, v8")
    k(f"v_add_u32 v8, {ABYTES}, v8")
    k("s_lshl_b32 s26, s24, 6")
    if NG == 3:
        k("v_add_u32 v15, s26, v8")
    else:
        k("v_xor_b32 v15, s26, v8")
    nAreg = 1 if cfg["a_mode"] == "frag" else KC
    nWreg = 1 if NG == 3 else gs
    BA = 16; BW = BA + nAreg; CUR = BW + nWreg; NXT = CUR + nAreg + nWreg; FR = NXT + nAreg + nWreg
    FR = (FR + 3)//4*4
    for i in range(nAreg):
        if i == 0: k(f"v_mov_b32 v{BA}, v14")
        else: k(f"v_xor_b32 v{BA+i}, {i*32}, v14")
    for i in range(nWreg):
        if i == 0: k(f"v_mov_b32 v{BW}, v15")
        else: k(f"v_xor_b32 v{BW+i}, {i*64}, v15")
    for i in range(nAreg + nWreg):
        k(f"v_mov_b32 v{CUR+i}, v{BA+i}")
    FSZ = 4*(tts + gs)
    NSET = cfg["NSET"]
    ACC = FR + NSET*FSZ
    ACC = (ACC + 3)//4*4
    cfg["ACC"] = ACC
    cfg["FREE"] = ACC + 16*tts*gs
    if "acc_init" in hooks: hooks["acc_init"](k, cfg)
    else:
        for r in range(ACC, ACC + 16*tts*gs): k(f"v_mov_b32 v{r}, 0")
    def fa(S, i): return FR + (S % NSET)*FSZ + 4*i
    def fw(S, g): return FR + (S % NSET)*FSZ + 4*tts + 4*g
    def rd_a(S_set, s_, i, base):
        if cfg["a_mode"] == "frag":
            k(f"ds_read_b128 {vr(fa(S_set,i),4)}, v{base} offset:{s_*1024 + i*KC*1024}")
        else:
            k(f"ds_read_b128 {vr(fa(S_set,i),4)}, v{base+s_} offset:{i*4096}")
    def rd_w(S_set, s_, g, base):
        if NG == 3:
            ad = base + nAreg; off = s_*16*WROW + g*64
        else:
            ad = base + nAreg + g; off = s_*16*WROW
        k(f"ds_read_b64_tr_b16 {vr(fw(S_set,g),2)}, v{ad} offset:{off}")
        k(f"ds_read_b64_tr_b16 {vr(fw(S_set,g)+2,2)}, v{ad} offset:{off+second}")
    nrd = tts + 2*gs
    D = NSET
    assert KC % NSET == 0 or NSET <= KC
    k("s_mov_b32 s34, 0")
    k("s_mov_b32 s35, 0")
    k("s_barrier")
    stamp(k, 3, ST)
    for S in range(D):
        for i in range(tts): rd_a(S, S, i, CUR)
        for g in range(gs): rd_w(S, S, g, CUR)
    def chunk_body(last, cidx=None):
        for s_ in range(KC):
            nx = s_ + D
            in_next = nx >= KC
            if nx == KC and not last:
                k(f"s_add_u32 s34, s34, {SZ}")
                k(f"s_cmp_eq_u32 s34, {NS*SZ}")
                k("s_cselect_b32 s34, 0, s34")
                for i in range(nAreg + nWreg):
                    k(f"v_add_u32 v{NXT+i}, s34, v{BA+i}")
                k("s_barrier")
            do_rd = not (last and in_next)
            if do_rd: allowed = nrd*(D-1)
            else: allowed = nrd*(KC-1-s_)
            k(f"s_waitcnt lgkmcnt({min(15, allowed)})")
            base = NXT if in_next else CUR
            sn = nx - KC if in_next else nx
            hooks.get("pre_step", lambda *a: None)(k, s_, lambda g: fw(s_, g))
            for i in range(tts):
                for g in range(gs):
                    acc = ACC + 16*(i*gs + g)
                    k(f"v_mfma_f32_32x32x16_bf16 {vr(acc,16)}, {vr(fw(s_,g),4)}, {vr(fa(s_,i),4)}, {vr(acc,16)}")
                    hooks.get("after_mfma", lambda *a: None)(k, s_, i, g, fa(s_, i), fw(s_, g))
                    if do_rd:
                        if i == tts - 1: rd_w(s_, sn, g, base)
                        if g == gs - 1: rd_a(s_, sn, i, base)
        if not last:
            for i in range(nAreg + nWreg):
                k(f"v_mov_b32 v{CUR+i}, v{NXT+i}")
    nvar = cfg.get("NVAR", 1)
    if nvar > 1:
        for v_ in range(1, nvar):
            k(f"s_cmp_eq_u32 s36, {v_}")
            k(f"s_cbranch_scc1 {name}_var{v_}")
    for v_ in range(nvar):
        cfg["VAR"] = v_
        lab = f"{name}_loop{v_}"
        k(f"{name}_var{v_}:")
        k(f"{lab}:")
        chunk_body(False)
        k("s_add_u32 s35, s35, 1")
        k(f"s_cmp_lt_u32 s35, {NCH-1}")
        k(f"s_cbranch_scc1 {lab}")
        chunk_body(True)
        if v_ < nvar - 1: k(f"s_branch {name}_epi")
    k(f"{name}_epi:")
    stamp(k, 4, ST)
    hooks["epilogue"](k, cfg)
    stamp(k, 5, ST)
    if ST:
        k("s_waitcnt vmcnt(0)")
        k("s_mov_b64 exec, -1")
        stamp(k, 6, ST)
        k("s_waitcnt lgkmcnt(0)")
        stamp_rt(k, 7)
        stamp_flush(k, 8, 16, 22, cfg["NWAVES"])
```

```python
from dsl import *
from gemm import gemm_core
import os
ROT = os.environ.get("ROT", "0110")

def common_head(k, name, nwg, ST):
    k(f"s_cmp_ge_u32 s2, {nwg}")
    k(f"s_cbranch_scc1 {name}_done")
    if ST: stamp_rt(k, 0)
    stamp(k, 1, ST)

def ids(k):
    k("v_lshrrev_b32 v2, 6, v0")
    k("v_and_b32 v1, 63, v0")
    k("v_readfirstlane_b32 s22, v2")

def make_g64(kind, ST=False):
    name = kind + "_kernel"
    KS = 32 if kind == "wo" else 112
    NCH = KS // 4
    NS = 8
    SZ = 16384
    k = Kern(name, 256, 768, NS*SZ + 256, 128)
    A_WS = WS_O if kind == "wo" else WS_G
    common_head(k, name, 256, ST)
    k("s_load_dwordx2 s[16:17], s[0:1], 80")
    if kind == "wo":
        k("s_load_dwordx2 s[4:5], s[0:1], 16")
        k("s_load_dwordx2 s[6:7], s[0:1], 0")
        k("s_load_dwordx2 s[48:49], s[0:1], 32")
        k("s_load_dwordx2 s[52:53], s[0:1], 40")
    else:
        k("s_load_dwordx2 s[4:5], s[0:1], 48")
        k("s_load_dwordx4 s[40:43], s[0:1], 56")
    k("s_and_b32 s24, s2, 7")
    k("s_lshr_b32 s25, s2, 3")
    k("s_lshl_b32 s20, s24, 2")
    k("s_and_b32 s26, s25, 3")
    k("s_add_u32 s20, s20, s26")
    k("s_lshr_b32 s21, s25, 2")
    ids(k)
    k(f"s_mul_i32 s29, s21, {NCH}")
    k("s_lshr_b32 s29, s29, 3")
    if ROT[1 if kind == "wo" else 3] == "0": k("s_mov_b32 s29, 0")
    k(f"s_mul_i32 s30, s20, {2*KS*1024}")
    k(f"s_add_u32 s30, s30, {A_WS}")
    k("s_lshl_b32 s32, s21, 7")
    cfg = dict(NTT=2, NG=2, KC=4, NCH=NCH, NS=NS, AHEAD=3, a_mode="frag", a_srd=16, w_srd=8, w_stride=1024, perm="pi",
               a_tile_stride=KS*1024, wave_ntt=1, wave_ng=1, NSET=4, ST=ST)
    def srds_a(k):
        k("s_mov_b32 s18, %d" % WS_END); k("s_mov_b32 s19, 0x00020000")
    def srds_w(k):
        k.srd(8, 4, KS*16*1024)
    EP = 96
    def cons_pre(k):
        k("s_lshr_b32 s23, s22, 1")
        k("s_and_b32 s24, s22, 1")
        k("v_and_b32 v3, 31, v1")
        k("v_lshrrev_b32 v4, 5, v1")
        k("v_lshlrev_b32 v2, 4, v1")
        k("s_lshl_b32 s27, s20, 1")
        k("s_add_u32 s27, s27, s23")
        k("s_waitcnt lgkmcnt(0)")
        k("s_mov_b32 s18, %d" % WS_END); k("s_mov_b32 s19, 0x00020000")
        if kind == "wo": code_prefetch(k, "mlp1_kernel", 1, 120, 80)
        if os.environ.get("TOUCHA", "0") == "1":
            SH = 2*KS*1024//8
            k("v_lshlrev_b32 v9, 7, v1")
            k(f"s_mul_i32 s26, s21, {SH}")
            k(f"s_mul_i32 s28, s22, {SH//4}")
            k("s_add_u32 s26, s26, s28")
            k("s_add_u32 s26, s26, s30")
            nl = SH//4//128
            if nl < 64:
                k(f"v_min_u32 v9, {(nl-1)*128}, v9")
            k("buffer_load_dword v10, v9, s[16:19], s26 offen")
        if kind == "wo":
            k.srd(12, 6, 2048*1024)
            k("v_lshlrev_b32 v5, 10, v3")
            k("v_lshl_add_u32 v5, v4, 3, v5")
            k("s_lshl_b32 s28, s27, 15")
            k("s_lshl_b32 s26, s21, 7")
            k("s_add_u32 s28, s28, s26")
            k("s_lshl_b32 s26, s24, 6")
            k("s_add_u32 s28, s28, s26")
            for rr in range(4):
                k(f"buffer_load_dwordx2 {vr(EP+2*rr,2)}, v5, s[12:15], s28 offen offset:{rr*16}")
        else:
            k.srd(12, 40, 1024)
            k.srd(44, 42, 2048*1024)
            k("s_lshl_b32 s28, s27, 15")
            k("s_lshl_b32 s26, s21, 12")
            k("s_add_u32 s28, s28, s26")
            k("s_lshl_b32 s26, s24, 11")
            k("s_add_u32 s28, s28, s26")
            k(f"s_add_u32 s28, s28, {WS_H}")
            k(f"buffer_load_dwordx4 {vr(EP,4)}, v2, s[16:19], s28 offen")
            k(f"buffer_load_dwordx4 {vr(EP+4,4)}, v2, s[16:19], s28 offen offset:1024")
            k("v_lshlrev_b32 v5, 3, v4")
            k("s_lshl_b32 s28, s21, 7")
            k("s_lshl_b32 s26, s24, 6")
            k("s_add_u32 s28, s28, s26")
            for rr in range(4):
                k(f"buffer_load_dwordx2 {vr(EP+8+2*rr,2)}, v5, s[12:15], s28 offen offset:{rr*16}")
    def epilogue(k, cfg):
        A0 = cfg["ACC"]; T = 112; PK = 116
        k("s_waitcnt vmcnt(0)")
        k("s_nop 7")
        if kind == "wo":
            for r in range(8):
                d = EP + r
                k(f"v_lshlrev_b32 v{T}, 16, v{d}")
                k(f"v_and_b32 v{T+1}, 0xffff0000, v{d}")
                k(f"v_add_f32 v{A0+2*r}, v{A0+2*r}, v{T}")
                k(f"v_add_f32 v{A0+2*r+1}, v{A0+2*r+1}, v{T+1}")
            for r in range(8):
                k(f"v_cvt_pk_bf16_f32 v{PK+r}, v{A0+2*r}, v{A0+2*r+1}")
            k("s_lshl_b32 s28, s27, 15")
            k("s_lshl_b32 s26, s21, 12")
            k("s_add_u32 s28, s28, s26")
            k("s_lshl_b32 s26, s24, 11")
            k("s_add_u32 s28, s28, s26")
            k(f"s_add_u32 s28, s28, {WS_H}")
            k(f"buffer_store_dwordx4 {vr(PK,4)}, v2, s[16:19], s28 offen")
            k(f"buffer_store_dwordx4 {vr(PK+4,4)}, v2, s[16:19], s28 offen offset:1024")
            k(f"v_add_f32 v{T}, v{A0}, v{A0+1}")
            k(f"v_mul_f32 v{T+1}, v{A0}, v{A0}")
            k(f"v_fmac_f32 v{T+1}, v{A0+1}, v{A0+1}")
            k(f"v_add_f32 v{T+2}, v{A0+2}, v{A0+3}")
            k(f"v_mul_f32 v{T+3}, v{A0+2}, v{A0+2}")
            k(f"v_fmac_f32 v{T+3}, v{A0+3}, v{A0+3}")
            for r in range(4, 16, 2):
                k(f"v_add_f32 v{T+(r&2)}, v{T+(r&2)}, v{A0+r}")
                k(f"v_fmac_f32 v{T+1+(r&2)}, v{A0+r}, v{A0+r}")
                k(f"v_add_f32 v{T+(r&2)}, v{T+(r&2)}, v{A0+r+1}")
                k(f"v_fmac_f32 v{T+1+(r&2)}, v{A0+r+1}, v{A0+r+1}")
            k(f"v_add_f32 v{T}, v{T}, v{T+2}")
            k(f"v_add_f32 v{T+1}, v{T+1}, v{T+3}")
            k(f"v_mov_b32 v{T+2}, v{T}")
            k(f"v_mov_b32 v{T+3}, v{T+1}")
            k("v_lshlrev_b32 v5, 7, v3")
            k("s_lshl_b32 s28, s27, 12")
            k(f"v_permlane32_swap_b32 v{T}, v{T+2}")
            k(f"v_permlane32_swap_b32 v{T+1}, v{T+3}")
            k("s_lshl_b32 s26, s21, 4")
            k("s_add_u32 s28, s28, s26")
            k(f"v_add_f32 v{T}, v{T}, v{T+2}")
            k(f"v_add_f32 v{T+1}, v{T+1}, v{T+3}")
            k("s_lshl_b32 s26, s24, 3")
            k("s_add_u32 s28, s28, s26")
            k(f"s_add_u32 s28, s28, {WS_ST}")
            k("s_mov_b32 exec_hi, 0")
            k(f"buffer_store_dwordx2 v[{T}:{T+1}], v5, s[16:19], s28 offen")
        else:
            for r in range(8):
                k(f"v_lshlrev_b32 v{T}, 16, v{EP+r}")
                k(f"v_and_b32 v{T+1}, 0xffff0000, v{EP+r}")
                k(f"v_lshlrev_b32 v{T+2}, 16, v{EP+8+r}")
                k(f"v_and_b32 v{T+3}, 0xffff0000, v{EP+8+r}")
                k(f"v_add_f32 v{A0+2*r}, v{A0+2*r}, v{T+2}")
                k(f"v_add_f32 v{A0+2*r+1}, v{A0+2*r+1}, v{T+3}")
                k(f"v_add_f32 v{A0+2*r}, v{A0+2*r}, v{T}")
                k(f"v_add_f32 v{A0+2*r+1}, v{A0+2*r+1}, v{T+1}")
            for r in range(8):
                k(f"v_cvt_pk_bf16_f32 v{PK+r}, v{A0+2*r}, v{A0+2*r+1}")
            k("v_lshlrev_b32 v5, 10, v3")
            k("v_lshl_add_u32 v5, v4, 4, v5")
            for pr in range(2):
                k(f"v_permlane32_swap_b32 v{PK+4*pr}, v{PK+2+4*pr}")
                k(f"v_permlane32_swap_b32 v{PK+1+4*pr}, v{PK+3+4*pr}")
            k("s_lshl_b32 s28, s27, 15")
            k("s_lshl_b32 s26, s21, 7")
            k("s_add_u32 s28, s28, s26")
            k("s_lshl_b32 s26, s24, 6")
            k("s_add_u32 s28, s28, s26")
            k(f"buffer_store_dwordx4 {vr(PK,4)}, v5, s[44:47], s28 offen")
            k(f"buffer_store_dwordx4 {vr(PK+4,4)}, v5, s[44:47], s28 offen offset:32")
    hk = dict(srds_a=srds_a, srds_w=srds_w, cons_pre=cons_pre, epilogue=epilogue)
    if kind == "wo":
        XB = NS*SZ
        def prod_pre(k):
            k("v_mov_b32 v28, 0")
            k(f"v_mov_b32 v29, {XB + 128}")
            k("ds_write_b32 v29, v28")
            k("s_waitcnt lgkmcnt(0)")
        def prod_late(k):
            k("s_mov_b32 s50, %d" % (512*3584)); k("s_mov_b32 s51, 0x00020000")
            k("s_and_b32 s40, s2, 7")
            k("s_lshr_b32 s41, s40, 1"); k("s_mul_i32 s41, s41, 28"); k("s_add_u32 s41, s41, s25")
            k("s_and_b32 s40, s40, 1"); k("s_mul_i32 s40, s40, 112"); k("s_add_u32 s41, s41, s40")
            k("s_min_u32 s41, s41, 223")
            k("s_lshl_b32 s43, s41, 4")
            k("s_mul_i32 s42, s23, %d" % (128*3584)); k("s_add_u32 s40, s43, s42")
            k("v_mul_u32_u24 v30, 3584, v1")
            k("buffer_load_dwordx4 v[40:43], v30, s[48:51], s40 offen")
            k("s_add_u32 s40, s40, %d" % (64*3584))
            k("buffer_load_dwordx4 v[44:47], v30, s[48:51], s40 offen")
            k("s_mov_b32 s54, 3584"); k("s_mov_b32 s55, 0x00020000")
            k("v_mov_b32 v31, 0")
            k("buffer_load_dwordx4 v[72:75], v31, s[52:55], s43 offen")
        def prod_post(k):
            lab = k.label("cs")
            k("s_cmp_ge_u32 s25, 28")
            k(f"s_cbranch_scc1 {lab}")
            k("s_waitcnt vmcnt(1)")
            for q in range(4):
                k(f"v_lshlrev_b32 v{8+2*q}, 16, v{40+q}")
                k(f"v_and_b32 v{9+2*q}, 0xffff0000, v{40+q}")
                k(f"v_lshlrev_b32 v16, 16, v{44+q}")
                k(f"v_and_b32 v17, 0xffff0000, v{44+q}")
                k(f"v_add_f32 v{8+2*q}, v{8+2*q}, v16")
                k(f"v_add_f32 v{9+2*q}, v{9+2*q}, v17")
            for mode in ["row_shr:1", "row_shr:2", "row_shr:4", "row_shr:8", "row_bcast:15 row_mask:0xa", "row_bcast:31 row_mask:0xc"]:
                k("s_nop 1")
                for r in range(8):
                    m = mode if "row_mask" in mode else mode + " row_mask:0xf"
                    k(f"v_add_f32_dpp v{8+r}, v{8+r}, v{8+r} {m} bank_mask:0xf")
            k("s_lshl_b32 s40, s23, 5")
            k(f"s_add_u32 s40, s40, {XB}")
            k("v_mov_b32 v2, s40")
            k("v_mov_b32 v18, 1")
            k("s_mov_b32 exec_lo, 0")
            k("s_mov_b32 exec_hi, 0x80000000")
            k("ds_write_b128 v2, v[8:11]")
            k("ds_write_b128 v2, v[12:15] offset:16")
            k("s_waitcnt lgkmcnt(0)")
            k("ds_add_rtn_u32 v19, v29, v18")
            k("s_waitcnt lgkmcnt(0)")
            k("v_readlane_b32 s42, v19, 63")
            k("s_nop 3")
            k("s_cmp_lg_u32 s42, 3")
            lab2 = k.label("cs")
            k(f"s_cbranch_scc1 {lab2}")
            k(f"v_mov_b32 v2, {XB}")
            for p_ in range(4):
                k(f"ds_read_b128 {vr(40+8*p_,4)}, v2 offset:{p_*32}")
                k(f"ds_read_b128 {vr(44+8*p_,4)}, v2 offset:{p_*32+16}")
            k("s_waitcnt vmcnt(0) lgkmcnt(0)")
            for r in range(8):
                k(f"v_add_f32 v{40+r}, v{40+r}, v{48+r}")
                k(f"v_add_f32 v{56+r}, v{56+r}, v{64+r}")
                k(f"v_add_f32 v{40+r}, v{40+r}, v{56+r}")
            for q in range(4):
                k(f"v_lshlrev_b32 v{16+2*q}, 16, v{72+q}")
                k(f"v_and_b32 v{17+2*q}, 0xffff0000, v{72+q}")
            k("s_lshl_b32 s40, s41, 5")
            k(f"s_add_u32 s40, s40, {WS_CS1}")
            k("s_mov_b32 s18, %d" % WS_END); k("s_mov_b32 s19, 0x00020000")
            k("v_mov_b32 v2, 0")
            k("buffer_store_dwordx4 v[40:43], v2, s[16:19], s40 offen")
            k("buffer_store_dwordx4 v[44:47], v2, s[16:19], s40 offen offset:16")
            k("s_add_u32 s40, s40, 8192")
            k("buffer_store_dwordx4 v[16:19], v2, s[16:19], s40 offen")
            k("buffer_store_dwordx4 v[20:23], v2, s[16:19], s40 offen offset:16")
            k(f"{lab2}:")
            k("s_mov_b64 exec, -1")
            k(f"{lab}:")
        hk.update(prod_pre=prod_pre, prod_late=prod_late, prod_post=prod_post)
        cfg["NLATE"] = 3
    gemm_core(k, name, cfg, hk)
    assert cfg["FREE"] <= EP
    k(f"{name}_done:")
    k("s_endpgm")
    return k

def colsum_chunk(k, addr_regs, slot, kstride, second, acc):
    for s_ in range(4):
        off = slot + s_*kstride
        hi = off >> 16; lo = off & 0xffff
        if lo + second > 65535: hi += 1; lo -= 65536
        assert lo >= 0
        k(f"ds_read_b64_tr_b16 {vr(32+4*s_,2)}, v{addr_regs[hi]} offset:{lo}")
        k(f"ds_read_b64_tr_b16 {vr(34+4*s_,2)}, v{addr_regs[hi]} offset:{lo+second}")
    for s_ in range(4):
        k(f"s_waitcnt lgkmcnt({2*(3-s_)})")
        for q in range(4):
            r = 32 + 4*s_ + q; t = 48 + 2*(q & 1)
            k(f"v_lshlrev_b32 v{t}, 16, v{r}")
            k(f"v_and_b32 v{t+1}, 0xffff0000, v{r}")
            k(f"v_pk_add_f32 v[{acc}:{acc+1}], v[{acc}:{acc+1}], v[{t}:{t+1}]")

def make_mlp1(ST=False):
    name = "mlp1_kernel"
    NS = 4; SZ = 32768; CSB = NS*SZ; STB = CSB + 1024
    k = Kern(name, 224, 768, CSB + 1024 + 2048, 128)
    common_head(k, name, 224, ST)
    k("s_load_dwordx2 s[16:17], s[0:1], 80")
    k("s_load_dwordx4 s[4:7], s[0:1], 32")
    k("s_load_dwordx2 s[44:45], s[0:1], 48")
    k("s_and_b32 s24, s2, 7")
    k("s_lshr_b32 s25, s2, 3")
    k("s_lshr_b32 s20, s24, 1")
    k("s_lshl_b32 s20, s20, 2")
    k("s_and_b32 s26, s25, 3")
    k("s_add_u32 s20, s20, s26")
    k("s_and_b32 s21, s24, 1")
    k("s_mul_i32 s21, s21, 7")
    k("s_lshr_b32 s29, s25, 2")
    k("s_add_u32 s21, s21, s29")
    if ROT[2] == "0": k("s_mov_b32 s29, 0")
    ids(k)
    k("s_lshl_b32 s30, s20, 17")
    k(f"s_add_u32 s30, s30, {WS_H}")
    k("s_lshl_b32 s32, s21, 8")
    cfg = dict(NTT=4, NG=4, KC=4, NCH=8, NS=NS, AHEAD=2, a_mode="frag", a_srd=16, w_srd=8, w_stride=3584, perm="pi",
               a_tile_stride=32768, wave_ntt=2, wave_ng=2, NSET=2, ST=ST)
    def srds_a(k):
        k("s_mov_b32 s18, %d" % WS_END); k("s_mov_b32 s19, 0x00020000")
    def srds_w(k):
        k.srd(8, 4, 512*3584)
    C0 = -2.0 * 1.4426950408889634 * 0.7978845608028654
    C1 = C0 * 0.044715
    def aprod_pre(k):
        k("v_and_b32 v3, 31, v1")
        k("v_lshrrev_b32 v4, 5, v1")
        k("v_lshlrev_b32 v6, 7, v3")
        k("v_lshl_add_u32 v6, v4, 6, v6")
        k("s_lshl_b32 s27, s20, 2")
        k("s_add_u32 s27, s27, s23")
        k("s_lshl_b32 s31, s27, 12")
        k(f"s_add_u32 s31, s31, {WS_ST}")
        for q in range(4):
            k(f"buffer_load_dwordx4 {vr(64+4*q,4)}, v6, s[16:19], s31 offen offset:{q*16}")
    def aprod_init(k, nafter):
        b = 64
        k(f"s_waitcnt vmcnt({nafter})")
        for q in range(1, 8):
            k(f"v_add_f32 v{b}, v{b}, v{b+2*q}")
            k(f"v_add_f32 v{b+1}, v{b+1}, v{b+1+2*q}")
        k(f"v_mov_b32 v{b+2}, v{b}")
        k(f"v_mov_b32 v{b+3}, v{b+1}")
        k("s_nop 1")
        k(f"v_permlane32_swap_b32 v{b}, v{b+2}")
        k(f"v_permlane32_swap_b32 v{b+1}, v{b+3}")
        k("s_nop 0")
        k(f"v_add_f32 v{b}, v{b}, v{b+2}")
        k(f"v_add_f32 v{b+1}, v{b+1}, v{b+3}")
        k(f"v_mul_f32 v{b}, {f32(1/512)}, v{b}")
        k(f"v_mul_f32 v{b+1}, {f32(1/512)}, v{b+1}")
        k(f"v_fma_f32 v{b+1}, -v{b}, v{b}, v{b+1}")
        k(f"v_max_f32 v{b+1}, 0, v{b+1}")
        k(f"v_add_f32 v{b+2}, {f32(1e-5)}, v{b+1}")
        k(f"v_rsq_f32 v{b+3}, v{b+2}")
        k(f"v_sub_f32 v{b+9}, 0, v{b}")
        k(f"v_mul_f32 v{b+4}, v{b+3}, v{b+3}")
        k(f"v_mul_f32 v{b+4}, v{b+4}, v{b+1}")
        k(f"v_add_f32 v{b+4}, {f32(1e-5)}, v{b+4}")
        k(f"v_rsq_f32 v{b+4}, v{b+4}")
        k("s_nop 0")
        k(f"v_mul_f32 v{b+5}, v{b+3}, v{b+4}")
        k(f"v_rcp_f32 v{b+8}, v{b+5}")
        k(f"v_mul_f32 v{b+10}, {f32(C0)}, v{b+5}")
        k(f"v_mul_f32 v{b+11}, v{b+5}, v{b+5}")
        k(f"v_mul_f32 v{b+11}, v{b+11}, v{b+5}")
        k(f"v_mul_f32 v{b+11}, {f32(C1)}, v{b+11}")
        k("v_lshlrev_b32 v5, 4, v3")
        k("s_lshl_b32 s26, s23, 9")
        k(f"s_add_u32 s26, s26, {STB}")
        k("v_add_u32 v5, s26, v5")
        k(f"ds_write_b128 v5, {vr(b+8,4)}")
        k("s_waitcnt lgkmcnt(0)")
        k("s_barrier")
    def aprod_post(k):
        if os.environ.get("PFW2", "1") == "1":
            k("s_mov_b32 s46, %d" % (1792*1024)); k("s_mov_b32 s47, 0x00020000")
            k("v_lshlrev_b32 v7, 7, v1")
            k("s_lshl_b32 s26, s25, 2"); k("s_add_u32 s26, s26, s23"); k("s_lshl_b32 s26, s26, 14")
            k("buffer_load_dword v8, v7, s[44:47], s26 offen")
            k("s_add_u32 s26, s26, 8192")
            k("buffer_load_dword v8, v7, s[44:47], s26 offen")
    def prod_pre(k):
        k("v_and_b32 v9, 31, v1")
        k("v_lshlrev_b32 v11, 2, v9")
        k("s_mov_b32 s18, %d" % WS_END); k("s_mov_b32 s19, 0x00020000")
        k("s_lshl_b32 s26, s21, 9")
        k("s_lshl_b32 s27, s23, 7")
        k("s_add_u32 s26, s26, s27")
        k(f"s_add_u32 s26, s26, {WS_CS1}")
        k("buffer_load_dword v24, v11, s[16:19], s26 offen")
        k("s_add_u32 s26, s26, 8192")
        k("buffer_load_dword v20, v11, s[16:19], s26 offen")
    def prod_init(k, nafter):
        k(f"s_waitcnt vmcnt({nafter})")
        k("s_lshl_b32 s26, s23, 7")
        k(f"s_add_u32 s26, s26, {CSB}")
        k("v_add_u32 v5, s26, v11")
        k("ds_write_b32 v5, v20 offset:512")
        k("ds_write_b32 v5, v24")
        k("s_waitcnt lgkmcnt(0)")
        k("s_barrier")
    def cons_pre(k):
        k("s_and_b32 s23, s22, 2")
        k("s_and_b32 s24, s22, 1")
        k("s_lshl_b32 s24, s24, 1")
        k("v_and_b32 v3, 31, v1")
        k("v_lshrrev_b32 v4, 5, v1")
        k("v_lshlrev_b32 v2, 4, v1")
        k("s_lshl_b32 s27, s20, 2")
        k("s_add_u32 s27, s27, s23")
        k("s_waitcnt lgkmcnt(0)")
        k("s_mov_b32 s18, %d" % WS_END); k("s_mov_b32 s19, 0x00020000")
        code_prefetch(k, "mlp2_kernel", 1, 124, 80)
    def acc_init(k, cfg):
        ACC = cfg["ACC"]
        k("v_lshlrev_b32 v5, 4, v4")
        k("s_lshl_b32 s26, s24, 7")
        k(f"s_add_u32 s26, s26, {CSB}")
        k("v_add_u32 v5, s26, v5")
        k("v_lshlrev_b32 v6, 4, v3")
        k("s_lshl_b32 s26, s23, 9")
        k(f"s_add_u32 s26, s26, {STB}")
        k("v_add_u32 v6, s26, v6")
        k("s_barrier")
        F = 28
        k(f"ds_read_b128 v[8:11], v6")
        k(f"ds_read_b128 v[12:15], v6 offset:512")
        P2 = lambda b, r: vr(b+2*r, 2)
        for g in range(2):
            for rr in range(4):
                k(f"ds_read_b128 {vr(ACC+16*g+4*rr,4)}, v5 offset:{512+g*128+rr*32}")
                k(f"ds_read_b128 {vr(ACC+32+16*g+4*rr,4)}, v5 offset:{g*128+rr*32}")
        k("s_waitcnt lgkmcnt(15)")
        k("s_waitcnt lgkmcnt(8)")
        for i in range(2):
            k(f"v_mov_b32 v{F+8+4*i}, v{8+4*i}")
            k(f"v_mov_b32 v{F+9+4*i}, v{8+4*i}")
            k(f"v_mov_b32 v{F+10+4*i}, v{9+4*i}")
            k(f"v_mov_b32 v{F+11+4*i}, v{9+4*i}")
        T = F + 16
        for g in range(2):
            if g == 1: k("s_waitcnt lgkmcnt(0)")
            B = ACC + 16*g; C = ACC + 32 + 16*g
            for r in range(8): k(f"v_pk_mul_f32 {P2(T,r)}, {P2(B,r)}, {vr(F+12,2)}")
            for r in range(8): k(f"v_pk_mul_f32 {P2(B,r)}, {P2(B,r)}, {vr(F+8,2)}")
            for r in range(8): k(f"v_pk_fma_f32 {P2(B,r)}, {P2(C,r)}, {vr(F+10,2)}, {P2(B,r)}")
            for r in range(8): k(f"v_pk_fma_f32 {P2(C,r)}, {P2(C,r)}, {vr(F+14,2)}, {P2(T,r)}")
    def epilogue(k, cfg):
        ACC = cfg["ACC"]
        k(f"s_mul_i32 s30, s27, {112*1024}")
        k("s_lshl_b32 s26, s21, 13")
        k("s_add_u32 s30, s30, s26")
        k("s_lshl_b32 s26, s24, 11")
        k("s_add_u32 s30, s30, s26")
        k(f"s_add_u32 s30, s30, {WS_G}")
        for i in range(2):
            for j, src in enumerate([8+4*i, 10+4*i, 11+4*i]):
                k(f"v_mov_b32 v{16+6*i+2*j}, v{src}")
                k(f"v_mov_b32 v{17+6*i+2*j}, v{src}")
        P2 = lambda b, r: vr(b+2*r, 2)
        T = [28, 44]
        order = [(0,0), (1,0), (0,1), (1,1)]
        def stage1(n):
            i, g = order[n]; acc = ACC + 16*(i*2+g); TT = T[n & 1]; c = 16 + 6*i
            for r in range(8): k(f"v_pk_mul_f32 {P2(TT,r)}, {P2(acc,r)}, {P2(acc,r)}")
            for r in range(8): k(f"v_pk_fma_f32 {P2(TT,r)}, {P2(TT,r)}, {vr(c+4,2)}, {vr(c+2,2)}")
            for r in range(8): k(f"v_pk_mul_f32 {P2(TT,r)}, {P2(TT,r)}, {P2(acc,r)}")
        def stage2(n):
            i, g = order[n]; acc = ACC + 16*(i*2+g); TT = T[n & 1]; c = 16 + 6*i
            for r in range(16): k(f"v_exp_f32 v{TT+r}, v{TT+r}")
            for r in range(8): k(f"v_pk_fma_f32 {P2(TT,r)}, {P2(TT,r)}, {vr(c,2)}, {vr(c,2)}")
            for r in range(16): k(f"v_rcp_f32 v{TT+r}, v{TT+r}")
            for r in range(8): k(f"v_pk_mul_f32 {P2(acc,r)}, {P2(acc,r)}, {P2(TT,r)}")
            for r in range(8): k(f"v_cvt_pk_bf16_f32 v{acc+r}, v{acc+2*r}, v{acc+2*r+1}")
            k(f"s_add_u32 s26, s30, {i*112*1024 + g*2048}")
            k(f"buffer_store_dwordx4 {vr(acc,4)}, v2, s[16:19], s26 offen")
            k(f"buffer_store_dwordx4 {vr(acc+4,4)}, v2, s[16:19], s26 offen offset:1024")
        for n in range(4):
            stage1(n); stage2(n)
    gemm_core(k, name, cfg, dict(srds_a=srds_a, srds_w=srds_w, aprod_pre=aprod_pre, aprod_init=aprod_init, aprod_post=aprod_post, prod_pre=prod_pre, prod_init=prod_init,
                                 cons_pre=cons_pre, acc_init=acc_init, epilogue=epilogue))
    assert cfg["FREE"] <= 128 and cfg["ACC"] == 60
    k(f"{name}_done:")
    k("s_endpgm")
    return k

def make_qkv(ST=False):
    name = "qkv_kernel"
    NS = 5; SZ = 16384 + 12288
    SCR = NS*SZ; CSB = SCR + 16384; STB = CSB + 512
    ONES = 10; CSA = 112
    k = Kern(name, 256, 1024, 163840, 128)
    common_head(k, name, 256, ST)
    k("s_load_dwordx4 s[4:7], s[0:1], 0")
    k("s_load_dwordx2 s[16:17], s[0:1], 80")
    k("s_and_b32 s24, s2, 7")
    k("s_lshr_b32 s25, s2, 3")
    k("s_lshr_b32 s20, s24, 1")
    k("s_lshl_b32 s20, s20, 2")
    k("s_and_b32 s26, s25, 3")
    k("s_add_u32 s20, s20, s26")
    k("s_and_b32 s21, s24, 1")
    k("s_lshl_b32 s21, s21, 3")
    k("s_lshr_b32 s27, s25, 2")
    k("s_add_u32 s21, s21, s27")
    k("s_lshl_b32 s26, s26, 1")
    k("s_add_u32 s29, s26, s27")
    k("s_and_b32 s29, s29, 7")
    if ROT[0] == "0": k("s_mov_b32 s29, 0")
    ids(k)
    k("s_lshl_b32 s30, s20, 17")
    k("s_mul_i32 s32, s21, 192")
    cfg = dict(NTT=4, NG=3, KC=4, NCH=8, NS=NS, AHEAD=3, a_mode="rows", a_srd=8, w_srd=12, w_stride=3072, perm="nat",
               wave_ntt=1, wave_ng=3, NSET=2, ST=ST, NVAR=3)
    def srds_a(k):
        k.srd(8, 4, 2048*1024)
    def srds_w(k):
        k.srd(12, 6, 512*3072)
    def helper_pre(k):
        code_prefetch(k, "att_kernel", 2, 100, 80)
        if os.environ.get("TOUCH", "0") == "1":
            k("s_waitcnt lgkmcnt(0)")
            k.srd(8, 4, 2048*1024)
            k.srd(12, 6, 512*3072)
            k("s_and_b32 s40, s25, 3")
            k("s_lshr_b32 s41, s25, 2")
            lab = k.label("t"); lab2 = k.label("t")
            k("s_cmp_ge_u32 s23, 2")
            k(f"s_cbranch_scc1 {lab}")
            k("v_lshlrev_b32 v40, 7, v1")
            k("s_lshl_b32 s42, s41, 14"); k("s_lshl_b32 s43, s23, 13"); k("s_add_u32 s42, s42, s43"); k("s_add_u32 s42, s42, s30")
            k("buffer_load_dword v41, v40, s[8:11], s42 offen")
            k(f"{lab}:")
            k("v_lshrrev_b32 v40, 1, v1")
            k("v_mul_u32_u24 v40, 3072, v40")
            k("v_and_b32 v42, 1, v1")
            k("v_lshl_add_u32 v40, v42, 7, v40")
            k("s_lshl_b32 s42, s40, 7"); k("s_lshl_b32 s43, s23, 5"); k("s_add_u32 s42, s42, s43"); k("s_mul_i32 s42, s42, 3072"); k("s_add_u32 s42, s42, s32")
            k("buffer_load_dword v41, v40, s[12:15], s42 offen")
        k("v_lshrrev_b32 v4, 5, v1")
        k("v_and_b32 v5, 31, v1")
        k("v_bfe_u32 v6, v1, 1, 3")
        k("v_xor_b32 v6, v6, v4")
        k("v_lshlrev_b32 v6, 4, v6")
        k("v_lshl_add_u32 v6, v5, 7, v6")
        k("s_lshl_b32 s26, s23, 12")
        k("v_add_u32 v20, s26, v6")
        for s_ in range(1, 4): k(f"v_xor_b32 v{20+s_}, {s_*32}, v20")
        for s_ in range(4): k(f"v_add_u32 v{24+s_}, 0x10000, v{20+s_}")
        for r in range(28, 32): k(f"v_mov_b32 v{r}, 0")
    def stat_ops(k, base):
        for s_ in range(4):
            for q in range(4):
                r = base + 4*s_ + q
                t = 64 + 2*(q & 1)
                k(f"v_lshlrev_b32 v{t}, 16, v{r}")
                k(f"v_and_b32 v{t+1}, 0xffff0000, v{r}")
                k(f"v_add_f32 v28, v28, v{t}")
                k(f"v_add_f32 v29, v29, v{t+1}")
                k(f"v_fmac_f32 v30, v{t}, v{t}")
                k(f"v_fmac_f32 v31, v{t+1}, v{t+1}")
    def helper_chunk(k, c, slot):
        base = 32 + 16*(c & 1)
        for s_ in range(4):
            if slot >= 65536: k(f"ds_read_b128 {vr(base+4*s_,4)}, v{24+s_} offset:{slot-65536}")
            else: k(f"ds_read_b128 {vr(base+4*s_,4)}, v{20+s_} offset:{slot}")
        if c > 0: stat_ops(k, 32 + 16*((c-1) & 1))
        k("s_waitcnt lgkmcnt(0)")
        if c == 7: stat_ops(k, base)
    def helper_post(k):
        k("v_add_f32 v28, v28, v29")
        k("v_add_f32 v30, v30, v31")
        k("v_mov_b32 v29, v28")
        k("v_mov_b32 v31, v30")
        k("s_nop 1")
        k("v_permlane32_swap_b32 v28, v29")
        k("v_permlane32_swap_b32 v30, v31")
        k("s_nop 0")
        k("v_add_f32 v28, v28, v29")
        k("v_add_f32 v30, v30, v31")
        k(f"v_mul_f32 v28, {f32(1/512)}, v28")
        k(f"v_mul_f32 v30, {f32(1/512)}, v30")
        k("v_fma_f32 v30, -v28, v28, v30")
        k("v_max_f32 v30, 0, v30")
        k(f"v_add_f32 v30, {f32(1e-5)}, v30")
        k("v_rsq_f32 v30, v30")
        k("v_lshlrev_b32 v5, 3, v1")
        k("v_mul_f32 v31, v28, v30")
        k("v_sub_f32 v31, 0, v31")
        k("s_lshl_b32 s26, s23, 9")
        k(f"s_add_u32 s26, s26, {STB}")
        k("v_add_u32 v5, s26, v5")
        k("ds_write_b64 v5, v[30:31]")
        k("s_waitcnt lgkmcnt(0)")
        k("s_barrier")
    def cons_pre(k):
        k("s_mov_b32 s23, s22")
        k("s_mov_b32 s24, 0")
        k("v_and_b32 v3, 31, v1")
        k("v_lshrrev_b32 v4, 5, v1")
        k("v_lshlrev_b32 v2, 4, v1")
        for r in range(4): k(f"v_mov_b32 v{ONES+r}, 0x3f803f80")
        for r in range(16): k(f"v_mov_b32 v{CSA+r}, 0")
        k("s_min_u32 s36, s22, 2")
        k("s_waitcnt lgkmcnt(0)")
        k("s_mov_b32 s18, %d" % (6 << 20)); k("s_mov_b32 s19, 0x00020000")
    def after_step(k, s_, fwf):
        k(f"v_mfma_f32_32x32x16_bf16 {vr(CSA,16)}, {vr(fwf(cfg['VAR']),4)}, {vr(ONES,4)}, {vr(CSA,16)}")
    def epilogue(k, cfg):
        ACC = cfg["ACC"]
        k("v_lshlrev_b32 v5, 4, v4")
        k("s_lshl_b32 s26, s36, 7")
        k(f"s_add_u32 s26, s26, {CSB}")
        k("v_add_u32 v11, s26, v5")
        k("s_mov_b32 exec_lo, 1")
        k("s_mov_b32 exec_hi, 1")
        k("s_nop 4")
        for rr in range(4):
            k(f"ds_write_b128 v11, {vr(CSA+4*rr,4)} offset:{rr*32}")
        k("s_mov_b64 exec, -1")
        k("s_lshl_b32 s27, s20, 2")
        k("s_add_u32 s27, s27, s22")
        k("s_lshl_b32 s27, s27, 10")
        k("s_mul_i32 s28, s21, 3")
        QS = 0.25 * 1.4426950408889634
        k("s_lshl_b32 s31, s22, 13")
        k("v_mul_u32_u24 v6, 72, v3")
        k("v_lshl_add_u32 v6, v4, 3, v6")
        k("v_add_u32 v6, s31, v6")
        k("v_bfe_u32 v7, v1, 2, 2")
        k("v_lshl_add_u32 v8, v4, 2, v7")
        k("v_mul_u32_u24 v8, 72, v8")
        k("v_bfe_u32 v7, v1, 4, 1")
        k("v_lshl_add_u32 v8, v7, 5, v8")
        k("v_and_b32 v7, 3, v1")
        k("v_lshl_add_u32 v8, v7, 3, v8")
        k("v_add_u32 v8, s31, v8")
        k("v_bfe_u32 v9, v1, 4, 1")
        k("v_lshlrev_b32 v9, 16, v9")
        k("v_lshl_add_u32 v9, v4, 8, v9")
        k("v_and_b32 v7, 15, v1")
        k("v_lshl_add_u32 v9, v7, 4, v9")
        k("v_lshlrev_b32 v5, 4, v4")
        k(f"v_add_u32 v5, {CSB}, v5")
        k("v_lshlrev_b32 v10, 3, v1")
        k("s_lshl_b32 s26, s22, 9")
        k(f"s_add_u32 s26, s26, {STB}")
        k("v_add_u32 v10, s26, v10")
        k("s_waitcnt lgkmcnt(0)")
        k("s_barrier")
        k("ds_read_b64 v[12:13], v10")
        CSR = [16, 32, 48]
        for g in range(3):
            for rr in range(4):
                k(f"ds_read_b128 {vr(CSR[g]+4*rr,4)}, v5 offset:{g*128+rr*32}")
        P2 = lambda b, r: vr(b+2*r, 2)
        for g in range(3):
            acc = ACC + 16*g; cs = CSR[g]
            lq = k.label("q"); lv = k.label("v"); le = k.label("e")
            k(f"s_add_u32 s33, s28, {g}")
            k(f"s_waitcnt lgkmcnt({8-4*g})")
            k("v_mov_b32 v114, v12")
            k("v_mov_b32 v116, v13")
            k("s_cmp_ge_u32 s33, 16")
            k(f"s_cbranch_scc1 {lq}")
            k(f"v_mul_f32 v114, {f32(QS)}, v114")
            k(f"v_mul_f32 v116, {f32(QS)}, v116")
            k(f"{lq}:")
            k("v_mov_b32 v115, v114")
            k("v_mov_b32 v117, v116")
            for r in range(8): k(f"v_pk_mul_f32 {P2(cs,r)}, {P2(cs,r)}, v[116:117]")
            for r in range(8): k(f"v_pk_fma_f32 {P2(acc,r)}, {P2(acc,r)}, v[114:115], {P2(cs,r)}")
            for r in range(8): k(f"v_cvt_pk_bf16_f32 v{acc+r}, v{acc+2*r}, v{acc+2*r+1}")
            k("s_lshr_b32 s34, s33, 4")
            k("s_lshl_b32 s34, s34, 21")
            k("s_and_b32 s35, s33, 15")
            k("s_lshl_b32 s35, s35, 17")
            k("s_add_u32 s34, s34, s35")
            k("s_add_u32 s34, s34, s27")
            k(f"s_mov_b32 s{40+g}, s34")
            k("s_cmp_ge_u32 s33, 32")
            k(f"s_cbranch_scc1 {lv}")
            k(f"buffer_store_dwordx4 {vr(acc,4)}, v2, s[16:19], s34 offen")
            k("s_add_u32 s34, s34, 65536")
            k(f"buffer_store_dwordx4 {vr(acc+4,4)}, v2, s[16:19], s34 offen")
            k(f"s_branch {le}")
            k(f"{lv}:")
            for rr in range(4):
                k(f"ds_write_b64 v6, {vr(acc+2*rr,2)} offset:{g*2304+rr*16}")
            k(f"{le}:")
        lend = k.label("ve")
        k("s_add_u32 s33, s28, 2")
        k("s_cmp_lt_u32 s33, 32")
        k(f"s_cbranch_scc1 {lend}")
        k("s_waitcnt lgkmcnt(0)")
        for g in range(3):
            acc = ACC + 16*g
            for j in range(2):
                k(f"ds_read_b64_tr_b16 {vr(acc+8+4*j,2)}, v8 offset:{g*2304+j*16*72}")
                k(f"ds_read_b64_tr_b16 {vr(acc+8+4*j+2,2)}, v8 offset:{g*2304+j*16*72+8*72}")
        for g in range(3):
            acc = ACC + 16*g
            ls = k.label("vs")
            k(f"s_waitcnt lgkmcnt({8-4*g})")
            k(f"s_add_u32 s33, s28, {g}")
            k("s_cmp_lt_u32 s33, 32")
            k(f"s_cbranch_scc1 {ls}")
            k(f"buffer_store_dwordx4 {vr(acc+8,4)}, v9, s[16:19], s{40+g} offen")
            k(f"buffer_store_dwordx4 {vr(acc+12,4)}, v9, s[16:19], s{40+g} offen offset:512")
            k(f"{ls}:")
        k(f"{lend}:")
    gemm_core(k, name, cfg, dict(srds_a=srds_a, srds_w=srds_w,
                                 helper_pre=helper_pre, helper_chunk=helper_chunk, helper_post=helper_post,
                                 cons_pre=cons_pre, pre_step=after_step, epilogue=epilogue))
    assert cfg["FREE"] <= 112 and cfg["ACC"] == 64
    k(f"{name}_done:")
    k("s_endpgm")
    return k
```

```python
from dsl import *

import os
def make_att(ST=False, PF=(1,1,1), ZROWS=True, PRIO=os.environ.get("PRIO","prog2")):
    UNR = 8
    MRG = 131072 + 2048
    k = Kern("att_kernel", 256, 1024, MRG + 8*2560, 128)
    Q=4; KF=[8,12]; VF0=[16,20]; VF1=[24,28]; P=32; S=[40,56]; O=72; NM=88
    k("s_cmp_ge_u32 s2, 256")
    k("s_cbranch_scc1 att_done")
    if ST: stamp_rt(k, 0)
    stamp(k, 1, ST)
    k("s_load_dwordx2 s[16:17], s[0:1], 80")
    k("s_load_dwordx2 s[44:45], s[0:1], 16")
    k("s_load_dwordx2 s[48:49], s[0:1], 32")
    k("s_load_dwordx2 s[52:53], s[0:1], 48")
    k("s_and_b32 s24, s2, 7")
    k("s_lshr_b32 s25, s2, 3")
    k("s_lshl_b32 s20, s24, 2")
    k("s_and_b32 s26, s25, 3")
    k("s_add_u32 s20, s20, s26")
    k("s_lshr_b32 s21, s25, 2")
    k("v_lshrrev_b32 v2, 6, v0")
    k("v_and_b32 v1, 63, v0")
    k("v_readfirstlane_b32 s22, v2")
    k("v_lshlrev_b32 v2, 4, v1")
    k("s_and_b32 s30, s22, 7")
    k("s_lshr_b32 s31, s22, 3")
    k("s_lshl_b32 s23, s20, 16")
    k("s_lshl_b32 s26, s21, 3")
    k("s_add_u32 s27, s26, s30")
    k("s_lshl_b32 s26, s27, 10")
    k("s_add_u32 s39, s26, s23")
    k("s_and_b32 s26, s30, 3")
    k("s_lshl_b32 s26, s26, 10")
    k("s_lshl_b32 s28, s31, 15")
    k("s_add_u32 s26, s26, s28")
    k("s_lshr_b32 s28, s30, 2")
    k("s_lshl_b32 s29, s28, 16")
    k("s_add_u32 s29, s29, s26")
    k("s_lshl_b32 s28, s28, 21")
    k(f"s_add_u32 s28, s28, {WS_K}")
    k("s_add_u32 s28, s28, s23")
    k("s_add_u32 s28, s28, s26")
    k("s_waitcnt lgkmcnt(0)")
    k("s_mov_b32 s18, %d" % (8 << 20))
    k("s_mov_b32 s19, 0x00020000")
    def dma(c):
        k(f"s_add_u32 s26, s21, {c}")
        k("s_and_b32 s26, s26, 7")
        k("s_lshl_b32 s26, s26, 12")
        k("s_add_u32 s26, s26, s28")
        k(f"s_add_u32 m0, s29, {c*4096}")
        k("s_nop 0")
        k(f"buffer_load_dwordx4 v2, s[16:19], s26 offen lds")
    dma(0)
    k(f"buffer_load_dwordx4 {vr(Q,4)}, v2, s[16:19], s39 offen")
    dma(1); dma(2)
    stamp(k, 2, ST)
    k("s_lshl_b32 s26, s31, 15")
    k("v_add_u32 v106, s26, v2")
    k("v_lshrrev_b32 v3, 5, v1")
    k("v_lshlrev_b32 v3, 8, v3")
    k("v_and_b32 v104, 15, v1")
    k("v_lshl_add_u32 v3, v104, 4, v3")
    k("v_add_u32 v3, 0x10000, v3")
    k("v_add_u32 v107, s26, v3")
    k("v_lshlrev_b32 v111, 4, v1")
    if ZROWS:
        k("v_and_b32 v104, 27, v1")
        k("v_cmp_eq_u32 vcc, 16, v104")
        k("v_mov_b32 v105, 0x3f803f80")
        k("v_mov_b32 v104, 0")
        k("v_cndmask_b32 v104, v104, v105, vcc")
        for r in range(16, 32): k(f"v_mov_b32 v{r}, v104")
    else:
        for r in range(16, 32): k(f"v_mov_b32 v{r}, 0x3f803f80")
    k("s_mov_b32 s34, 0x0000ffff")
    k("s_mov_b32 s35, 0x0000ffff")
    k("s_mov_b32 s36, 0")
    k("s_mov_b32 s37, 1")
    k("s_waitcnt vmcnt(0)")
    k("s_barrier")
    stamp(k, 3, ST)
    k("att_retry:")
    k("v_mov_b32 v104, 0xff800000")
    k("v_mov_b32 v105, v106")
    k("s_mov_b32 s38, 0")
    k("att_maxloop:")
    k(f"ds_read_b128 {vr(KF[0],4)}, v105")
    k("v_add_u32 v105, 1024, v105")
    k("s_waitcnt lgkmcnt(0)")
    k(f"v_mfma_f32_32x32x16_bf16 {vr(S[0],16)}, {vr(KF[0],4)}, {vr(Q,4)}, 0")
    k("s_nop 15")
    for r in range(0, 16, 2):
        k(f"v_max3_f32 v104, v{S[0]+r}, v{S[0]+r+1}, v104")
    k("s_add_u32 s38, s38, 1")
    k("s_cmp_lt_u32 s38, s37")
    k("s_cbranch_scc1 att_maxloop")
    k("v_mov_b32 v105, v104")
    k("s_nop 1")
    k("v_permlane32_swap_b32 v104, v105")
    k("v_mov_b32 v2, v106")
    k("v_mov_b32 v3, v107")
    k("v_max_f32 v104, v104, v105")
    k(f"ds_read_b128 {vr(KF[1],4)}, v2 offset:1024")
    k("s_mov_b64 exec, s[34:35]")
    k(f"ds_read_b128 {vr(VF0[0],4)}, v3")
    k("s_mov_b64 exec, -1")
    k(f"ds_read_b128 {vr(KF[0],4)}, v2")
    for r in range(16):
        k(f"v_sub_f32 v{NM+r}, 0, v104")
    for r in range(16):
        k(f"v_mov_b32 v{O+r}, 0")
    for r in range(4):
        k(f"v_mov_b32 v{P+4+r}, 0")
    k("s_waitcnt lgkmcnt(0)")
    k(f"v_mfma_f32_32x32x16_bf16 {vr(S[0],16)}, {vr(KF[0],4)}, {vr(Q,4)}, {vr(NM,16)}")
    k("s_nop 7")
    def body(extra=None, it=None):
        for u in range(UNR):
            b = u & 1; nb = b ^ 1
            Sc = S[b]; Sn = S[nb]
            if PRIO == "cyc": k(f"s_setprio {3 - (u & 3)}")
            if PRIO == "cyc2": k(f"s_setprio {3 - ((u >> 1) & 3)}")
            if PRIO.startswith("prog") and it is not None:
                t = it*8 + u
                lv = {"prog": [0, 8, 16, 24], "prog2": [0, 16, 24, 28], "prog3": [0, 20, 26, 30]}[PRIO]
                if t in lv: k(f"s_setprio {3 - lv.index(t)}")
            k("s_waitcnt lgkmcnt(0)")
            cop = "0" if os.environ.get("C0", "0") == "1" else vr(NM,16)
            k(f"v_mfma_f32_32x32x16_bf16 {vr(Sn,16)}, {vr(KF[nb],4)}, {vr(Q,4)}, {cop}")
            k(f"ds_read_b128 {vr(KF[b],4)}, v2 offset:{(u+2)*1024}")
            k("s_mov_b64 exec, s[34:35]")
            k(f"ds_read_b128 {vr(VF0[nb],4)}, v3 offset:{(u+1)*1024}")
            k(f"ds_read_b128 {vr(VF1[b],4)}, v3 offset:{u*1024+512}")
            k("s_mov_b64 exec, -1")
            for r in range(6):
                k(f"v_exp_f32 v{Sc+r}, v{Sc+r}")
            k(f"v_mfma_f32_32x32x16_bf16 {vr(O,16)}, {vr(VF1[nb],4)}, {vr(P+4,4)}, {vr(O,16)}")
            for r in range(6, 8):
                k(f"v_exp_f32 v{Sc+r}, v{Sc+r}")
            for r in range(4):
                k(f"v_cvt_pk_bf16_f32 v{P+r}, v{Sc+2*r}, v{Sc+2*r+1}")
            for r in range(8, 11):
                k(f"v_exp_f32 v{Sc+r}, v{Sc+r}")
            k(f"v_mfma_f32_32x32x16_bf16 {vr(O,16)}, {vr(VF0[b],4)}, {vr(P,4)}, {vr(O,16)}")
            for r in range(11, 16):
                k(f"v_exp_f32 v{Sc+r}, v{Sc+r}")
            for r in range(4):
                k(f"v_cvt_pk_bf16_f32 v{P+4+r}, v{Sc+8+2*r}, v{Sc+8+2*r+1}")
            if extra: extra(u)
        k(f"v_add_u32 v2, {UNR*1024}, v2")
        k(f"v_add_u32 v3, {UNR*1024}, v3")
    NIT = 32 // UNR
    k("s_mov_b32 s38, 0")
    k("s_cmp_lg_u32 s36, 0")
    k("s_cbranch_scc1 att_loop")
    def extra(u):
        c = 3 + u
        if c < 8:
            k(f"s_add_u32 s26, s21, {c}")
            k("s_and_b32 s26, s26, 7")
            k("s_lshl_b32 s26, s26, 12")
            k("s_add_u32 s26, s26, s28")
            k(f"s_add_u32 m0, s29, {c*4096}")
            k("s_nop 0")
            k(f"buffer_load_dwordx4 v111, s[16:19], s26 offen lds")
    body(extra, 0)
    k("s_waitcnt vmcnt(0)")
    k("s_barrier")
    k("v_lshlrev_b32 v108, 7, v1")
    code_prefetch(k, "wo_kernel", 1, 112, 80)
    if PF[0]:
        lab = k.label("pf")
        k("s_cmp_ge_u32 s22, 2")
        k(f"s_cbranch_scc1 {lab}")
        k("s_mov_b32 s46, %d" % (512*1024)); k("s_mov_b32 s47, 0x00020000")
        k("s_lshl_b32 s26, s25, 1"); k("s_add_u32 s26, s26, s22"); k("s_lshl_b32 s26, s26, 13")
        k("buffer_load_dword v110, v108, s[44:47], s26 offen")
        k(f"{lab}:")
    if PF[1]:
        lab = k.label("pf")
        k("s_sub_u32 s40, s22, 2")
        k("s_cmp_ge_u32 s40, 4")
        k(f"s_cbranch_scc1 {lab}")
        k("s_mov_b32 s50, %d" % (512*3584)); k("s_mov_b32 s51, 0x00020000")
        k("v_and_b32 v109, 15, v1")
        k("v_min_u32 v109, 13, v109")
        k("v_lshlrev_b32 v109, 7, v109")
        k("v_lshrrev_b32 v110, 4, v1")
        k("v_mul_u32_u24 v110, 3584, v110")
        k("v_add_u32 v109, v109, v110")
        k("s_lshl_b32 s26, s25, 2"); k("s_add_u32 s26, s26, s40"); k("s_mul_i32 s26, s26, %d" % (4*3584))
        k("s_and_b32 s40, s24, 1"); k("s_mul_i32 s40, s40, 1792"); k("s_add_u32 s26, s26, s40")
        k("buffer_load_dword v110, v109, s[48:51], s26 offen")
        k(f"{lab}:")
    if PF[2]:
        lab = k.label("pf")
        k("s_sub_u32 s40, s22, 8")
        k("s_cmp_ge_u32 s40, 7")
        k(f"s_cbranch_scc1 {lab}")
        k("s_mov_b32 s54, %d" % (1792*1024)); k("s_mov_b32 s55, 0x00020000")
        k("s_mul_i32 s26, s25, 7"); k("s_add_u32 s26, s26, s40"); k("s_lshl_b32 s26, s26, 13")
        k("buffer_load_dword v110, v108, s[52:55], s26 offen")
        k(f"{lab}:")
    if PRIO.startswith("prog"):
        for it in range(1, NIT): body(None, it)
        k("s_branch att_loop_end")
    k("s_mov_b32 s38, 1")
    k("att_loop:")
    body()
    k("s_add_u32 s38, s38, 1")
    k(f"s_cmp_lt_u32 s38, {NIT}")
    k("s_cbranch_scc1 att_loop")
    k("att_loop_end:")
    stamp(k, 4, ST)
    k("s_waitcnt lgkmcnt(0)")
    k(f"v_mfma_f32_32x32x16_bf16 {vr(O,16)}, {vr(VF1[(UNR-1)&1],4)}, {vr(P+4,4)}, {vr(O,16)}")
    k("s_nop 15")
    k(f"v_add_f32 v104, |v{O}|, |v{O+1}|")
    k(f"v_add_f32 v105, |v{O+2}|, |v{O+3}|")
    k(f"v_add_f32 v108, |v{O+4}|, |v{O+5}|")
    k(f"v_add_f32 v109, |v{O+6}|, |v{O+7}|")
    k("v_add_f32 v104, v104, v105")
    k("v_add_f32 v108, v108, v109")
    k("v_add_f32 v104, v104, v108")
    k(f"v_mul_f32 v104, {f32(2.0**-20)}, v104")
    k(f"v_add_f32 v104, v104, v{O+8}")
    k(f"v_mov_b32 v108, {f32(2.0**100)}")
    k("v_cmp_nlt_f32 vcc, v104, v108")
    k("s_nop 3")
    k("s_cmp_eq_u64 vcc, 0")
    k("s_cbranch_scc1 att_ok")
    k("s_cmp_lg_u32 s36, 0")
    k("s_cbranch_scc1 att_ok")
    k("s_mov_b32 s36, 1")
    k("s_mov_b32 s37, 32")
    k("s_branch att_retry")
    k("att_ok:")
    k("s_lshl_b32 s26, s30, 11"); k("s_lshl_b32 s28, s30, 9"); k("s_add_u32 s26, s26, s28")
    k(f"s_add_u32 s26, s26, {MRG}")
    k("v_add_u32 v104, s26, v111")
    k("v_lshlrev_b32 v105, 3, v1")
    k("v_add_u32 v105, s26, v105")
    k(f"v_mov_b32 v{O+9}, v{NM}")
    lab = k.label("m")
    k("s_cmp_eq_u32 s31, 1")
    k(f"s_cbranch_scc1 {lab}")
    k(f"ds_write_b128 v104, {vr(O,4)}")
    k(f"ds_write_b128 v104, {vr(O+4,4)} offset:1024")
    k(f"ds_write_b64 v105, {vr(O+8,2)} offset:2048")
    k("s_waitcnt lgkmcnt(0)")
    k("s_barrier")
    k("s_branch att_fin")
    k(f"{lab}:")
    k("s_barrier")
    k(f"ds_read_b128 {vr(S[0],4)}, v104")
    k(f"ds_read_b128 {vr(S[0]+4,4)}, v104 offset:1024")
    k(f"ds_read_b64 {vr(S[0]+8,2)}, v105 offset:2048")
    k("s_waitcnt lgkmcnt(0)")
    k(f"v_min_f32 v104, v{O+9}, v{S[0]+9}")
    k(f"v_sub_f32 v105, v104, v{O+9}")
    k(f"v_sub_f32 v108, v104, v{S[0]+9}")
    k("v_exp_f32 v105, v105")
    k("v_exp_f32 v108, v108")
    k("s_nop 0")
    for r in range(9):
        k(f"v_mul_f32 v{O+r}, v{O+r}, v105")
    for r in range(9):
        k(f"v_fmac_f32 v{O+r}, v{S[0]+r}, v108")
    k(f"v_rcp_f32 v104, v{O+8}")
    k("s_nop 0")
    for r in range(8):
        k(f"v_mul_f32 v{O+r}, v{O+r}, v104")
    for r in range(4):
        k(f"v_cvt_pk_bf16_f32 v{P+r}, v{O+2*r}, v{O+2*r+1}")
    k("s_lshl_b32 s26, s27, 15")
    k("s_lshl_b32 s28, s20, 10")
    k("s_add_u32 s26, s26, s28")
    k(f"s_add_u32 s26, s26, {WS_O}")
    k(f"buffer_store_dwordx4 {vr(P,4)}, v111, s[16:19], s26 offen")
    k("s_branch att_fin")
    k("att_fin:")
    stamp(k, 5, ST)
    if ST:
        k("s_waitcnt vmcnt(0)")
        stamp(k, 6, ST)
        k("s_waitcnt lgkmcnt(0)")
        stamp_rt(k, 7)
        stamp_flush(k, 8, 16, 22, 16)
    k("att_done:")
    k("s_endpgm")
    return k
```

```python
import struct
def v(n): return f"v{n}"
def vr(n, c): return f"v[{n}:{n+c-1}]"
def a(n): return f"a{n}"
def ar(n, c): return f"a[{n}:{n+c-1}]"
def s(n): return f"s{n}"
def sr(n, c): return f"s[{n}:{n+c-1}]"
def f32(x): return "0x%08x" % struct.unpack("<I", struct.pack("<f", x))[0]

class Kern:
    def __init__(self, name, grid, block, lds, nvgpr, nsgpr=96, accum=None):
        self.name = name; self.grid = grid; self.block = block; self.lds = lds
        self.nvgpr = nvgpr; self.nsgpr = nsgpr
        self.accum = accum if accum is not None else ((nvgpr + 3) // 4 * 4)
        self.L = []
        self.lab = 0
    def __call__(self, line):
        for l in line.split("\n"):
            l = l.strip()
            if l: self.L.append("    " + l if not l.endswith(":") else l)
    def label(self, base="L"):
        self.lab += 1
        return f"{self.name}_{base}{self.lab}"
    def srd(self, sreg, ptr_lo, nbytes):
        self(f"s_mov_b32 s{sreg}, s{ptr_lo}")
        self(f"s_mov_b32 s{sreg+1}, s{ptr_lo+1}")
        self(f"s_mov_b32 s{sreg+2}, {nbytes}")
        self(f"s_mov_b32 s{sreg+3}, 0x00020000")
    def text(self):
        h = f".globl {self.name}\n.p2align 8\n.type {self.name},@function\n{self.name}:\n"
        return h + "\n".join(self.L) + f"\n{self.name}_end:\n"
    def desc(self):
        return f""".amdhsa_kernel {self.name}
  .amdhsa_next_free_vgpr {self.nvgpr}
  .amdhsa_next_free_sgpr {self.nsgpr}
  .amdhsa_accum_offset {self.accum}
  .amdhsa_group_segment_fixed_size 0
  .amdhsa_kernarg_size 88
  .amdhsa_user_sgpr_count 2
  .amdhsa_user_sgpr_kernarg_segment_ptr 1
  .amdhsa_system_sgpr_workgroup_id_x 1
.end_amdhsa_kernel
"""
    def launch_line(self):
        g = self.grid; b = self.block
        return f"; @launch kernel={self.name} grid=({g},1,1) block=({b},1,1) lds={self.lds}\n"

HEADER = """; Kernarg layout for this problem (88 bytes, ptrs only, base s[0:1]):
"""
import os, re
STORE_FLAGS = os.environ.get("SC", "sc1")
def build(kernels, path):
    if STORE_FLAGS:
        for k in kernels:
            if k.name in os.environ.get("SCK", "qkv_kernel,att_kernel,wo_kernel,mlp1_kernel").split(","):
                k.L = [(l + " " + STORE_FLAGS) if ("buffer_store_dwordx4" in l and "s[56:59]" not in l) else l for l in k.L]
    src = HEADER
    for k in kernels: src += k.launch_line()
    src += '.amdgcn_target "amdgcn-amd-amdhsa--gfx950"\n.text\n'
    for k in kernels: src += k.text()
    src += '.section .rodata,"a"\n.p2align 6\n'
    for k in kernels: src += k.desc()
    open(path, "w").write(src)
    return src

WS_Q = 0
WS_K = 2 << 20
WS_V = 4 << 20
WS_O = 6 << 20
WS_H = 8 << 20
WS_G = 10 << 20
WS_END = 18 << 20

STAMP_BASE = 64 << 20
def stamp(k, idx, on=True):
    if not on: return
    k(f"s_memtime s[{60+2*idx}:{61+2*idx}]")
def stamp_rt(k, idx):
    k(f"s_memrealtime s[{60+2*idx}:{61+2*idx}]")
KIDX = {"qkv_kernel":0, "att_kernel":1, "wo_kernel":2, "mlp1_kernel":3, "mlp2_kernel":4}
def stamp_flush(k, n, ws_lo, wave_sgpr, nwaves):
    k("s_waitcnt lgkmcnt(0)")
    k(f"s_add_u32 s56, s{ws_lo}, {STAMP_BASE + KIDX.get(k.name, 0)*(1<<20)}")
    k(f"s_addc_u32 s57, s{ws_lo+1}, 0")
    k("s_mov_b32 s58, 0x1000000")
    k("s_mov_b32 s59, 0x00020000")
    k(f"s_mul_i32 s55, s2, {nwaves}")
    k(f"s_add_u32 s55, s55, s{wave_sgpr}")
    k("s_lshl_b32 s55, s55, 6")
    k("v_mov_b32 v1, s55")
    k("s_mov_b64 exec, 1")
    for i in range(n):
        k(f"v_mov_b32 v2, s{60+2*i}")
        k(f"buffer_store_dword v2, v1, s[56:59], 0 offen offset:{4*i}")
    k("s_waitcnt vmcnt(0)")
WS_ST = 17 << 20
WS_CS1 = (17 << 20) + (512 << 10)

def code_prefetch(k, target, ninstr, v0_=100, s0_=70, lane="v1"):
    if os.environ.get("CPF", "0") != "1": return
    lab = k.label("pc")
    k(f"s_getpc_b64 s[{s0_}:{s0_+1}]")
    k(f"{lab}:")
    k(f"s_add_u32 s{s0_}, s{s0_}, {target}-{lab}")
    k(f"s_addc_u32 s{s0_+1}, s{s0_+1}, 0")
    for i in range(ninstr):
        k(f"v_lshlrev_b32 v{v0_+3}, 7, {lane}")
        if i: k(f"v_add_u32 v{v0_+3}, {i*8192}, v{v0_+3}")
        k(f"v_min_u32 v{v0_+3}, {target}_end-{target}-4, v{v0_+3}")
        k(f"v_mov_b32 v{v0_+1}, s{s0_+1}")
        k(f"v_add_co_u32 v{v0_}, vcc, s{s0_}, v{v0_+3}")
        k("s_nop 1")
        k(f"v_addc_co_u32 v{v0_+1}, vcc, 0, v{v0_+1}, vcc")
        k(f"global_load_dword v{v0_+2}, v[{v0_}:{v0_+1}], off")
```

```python
from dsl import *
from gemm import gemm_core
import os
ROT = os.environ.get("ROT", "0110")

def common_head(k, name, nwg, ST):
    k(f"s_cmp_ge_u32 s2, {nwg}")
    k(f"s_cbranch_scc1 {name}_done")
    if ST: stamp_rt(k, 0)
    stamp(k, 1, ST)

def ids(k):
    k("v_lshrrev_b32 v2, 6, v0")
    k("v_and_b32 v1, 63, v0")
    k("v_readfirstlane_b32 s22, v2")

def make_g64(kind, ST=False):
    name = kind + "_kernel"
    KS = 32 if kind == "wo" else 112
    NCH = KS // 4
    NS = 8
    SZ = 16384
    k = Kern(name, 256, 768, NS*SZ + 256, 128)
    A_WS = WS_O if kind == "wo" else WS_G
    common_head(k, name, 256, ST)
    k("s_load_dwordx2 s[16:17], s[0:1], 80")
    if kind == "wo":
        k("s_load_dwordx2 s[4:5], s[0:1], 16")
        k("s_load_dwordx2 s[6:7], s[0:1], 0")
        k("s_load_dwordx2 s[48:49], s[0:1], 32")
        k("s_load_dwordx2 s[52:53], s[0:1], 40")
    else:
        k("s_load_dwordx2 s[4:5], s[0:1], 48")
        k("s_load_dwordx4 s[40:43], s[0:1], 56")
    k("s_and_b32 s24, s2, 7")
    k("s_lshr_b32 s25, s2, 3")
    k("s_lshl_b32 s20, s24, 2")
    k("s_and_b32 s26, s25, 3")
    k("s_add_u32 s20, s20, s26")
    k("s_lshr_b32 s21, s25, 2")
    ids(k)
    k(f"s_mul_i32 s29, s21, {NCH}")
    k("s_lshr_b32 s29, s29, 3")
    if ROT[1 if kind == "wo" else 3] == "0": k("s_mov_b32 s29, 0")
    k(f"s_mul_i32 s30, s20, {2*KS*1024}")
    k(f"s_add_u32 s30, s30, {A_WS}")
    k("s_lshl_b32 s32, s21, 7")
    cfg = dict(NTT=2, NG=2, KC=4, NCH=NCH, NS=NS, AHEAD=3, a_mode="frag", a_srd=16, w_srd=8, w_stride=1024, perm="pi",
               a_tile_stride=KS*1024, wave_ntt=1, wave_ng=1, NSET=4, ST=ST)
    def srds_a(k):
        k("s_mov_b32 s18, %d" % WS_END); k("s_mov_b32 s19, 0x00020000")
    def srds_w(k):
        k.srd(8, 4, KS*16*1024)
    EP = 96
    def cons_pre(k):
        k("s_lshr_b32 s23, s22, 1")
        k("s_and_b32 s24, s22, 1")
        k("v_and_b32 v3, 31, v1")
        k("v_lshrrev_b32 v4, 5, v1")
        k("v_lshlrev_b32 v2, 4, v1")
        k("s_lshl_b32 s27, s20, 1")
        k("s_add_u32 s27, s27, s23")
        k("s_waitcnt lgkmcnt(0)")
        k("s_mov_b32 s18, %d" % WS_END); k("s_mov_b32 s19, 0x00020000")
        if kind == "wo": code_prefetch(k, "mlp1_kernel", 1, 120, 80)
        if os.environ.get("TOUCHA", "0") == "1":
            SH = 2*KS*1024//8
            k("v_lshlrev_b32 v9, 7, v1")
            k(f"s_mul_i32 s26, s21, {SH}")
            k(f"s_mul_i32 s28, s22, {SH//4}")
            k("s_add_u32 s26, s26, s28")
            k("s_add_u32 s26, s26, s30")
            nl = SH//4//128
            if nl < 64:
                k(f"v_min_u32 v9, {(nl-1)*128}, v9")
            k("buffer_load_dword v10, v9, s[16:19], s26 offen")
        if kind == "wo":
            k.srd(12, 6, 2048*1024)
            k("v_lshlrev_b32 v5, 10, v3")
            k("v_lshl_add_u32 v5, v4, 3, v5")
            k("s_lshl_b32 s28, s27, 15")
            k("s_lshl_b32 s26, s21, 7")
            k("s_add_u32 s28, s28, s26")
            k("s_lshl_b32 s26, s24, 6")
            k("s_add_u32 s28, s28, s26")
            for rr in range(4):
                k(f"buffer_load_dwordx2 {vr(EP+2*rr,2)}, v5, s[12:15], s28 offen offset:{rr*16}")
        else:
            k.srd(12, 40, 1024)
            k.srd(44, 42, 2048*1024)
            k("s_lshl_b32 s28, s27, 15")
            k("s_lshl_b32 s26, s21, 12")
            k("s_add_u32 s28, s28, s26")
            k("s_lshl_b32 s26, s24, 11")
            k("s_add_u32 s28, s28, s26")
            k(f"s_add_u32 s28, s28, {WS_H}")
            k(f"buffer_load_dwordx4 {vr(EP,4)}, v2, s[16:19], s28 offen")
            k(f"buffer_load_dwordx4 {vr(EP+4,4)}, v2, s[16:19], s28 offen offset:1024")
            k("v_lshlrev_b32 v5, 3, v4")
            k("s_lshl_b32 s28, s21, 7")
            k("s_lshl_b32 s26, s24, 6")
            k("s_add_u32 s28, s28, s26")
            for rr in range(4):
                k(f"buffer_load_dwordx2 {vr(EP+8+2*rr,2)}, v5, s[12:15], s28 offen offset:{rr*16}")
    def epilogue(k, cfg):
        A0 = cfg["ACC"]; T = 112; PK = 116
        k("s_waitcnt vmcnt(0)")
        k("s_nop 7")
        if kind == "wo":
            for r in range(8):
                d = EP + r
                k(f"v_lshlrev_b32 v{T}, 16, v{d}")
                k(f"v_and_b32 v{T+1}, 0xffff0000, v{d}")
                k(f"v_add_f32 v{A0+2*r}, v{A0+2*r}, v{T}")
                k(f"v_add_f32 v{A0+2*r+1}, v{A0+2*r+1}, v{T+1}")
            for r in range(8):
                k(f"v_cvt_pk_bf16_f32 v{PK+r}, v{A0+2*r}, v{A0+2*r+1}")
            k("s_lshl_b32 s28, s27, 15")
            k("s_lshl_b32 s26, s21, 12")
            k("s_add_u32 s28, s28, s26")
            k("s_lshl_b32 s26, s24, 11")
            k("s_add_u32 s28, s28, s26")
            k(f"s_add_u32 s28, s28, {WS_H}")
            k(f"buffer_store_dwordx4 {vr(PK,4)}, v2, s[16:19], s28 offen")
            k(f"buffer_store_dwordx4 {vr(PK+4,4)}, v2, s[16:19], s28 offen offset:1024")
            k(f"v_add_f32 v{T}, v{A0}, v{A0+1}")
            k(f"v_mul_f32 v{T+1}, v{A0}, v{A0}")
            k(f"v_fmac_f32 v{T+1}, v{A0+1}, v{A0+1}")
            k(f"v_add_f32 v{T+2}, v{A0+2}, v{A0+3}")
            k(f"v_mul_f32 v{T+3}, v{A0+2}, v{A0+2}")
            k(f"v_fmac_f32 v{T+3}, v{A0+3}, v{A0+3}")
            for r in range(4, 16, 2):
                k(f"v_add_f32 v{T+(r&2)}, v{T+(r&2)}, v{A0+r}")
                k(f"v_fmac_f32 v{T+1+(r&2)}, v{A0+r}, v{A0+r}")
                k(f"v_add_f32 v{T+(r&2)}, v{T+(r&2)}, v{A0+r+1}")
                k(f"v_fmac_f32 v{T+1+(r&2)}, v{A0+r+1}, v{A0+r+1}")
            k(f"v_add_f32 v{T}, v{T}, v{T+2}")
            k(f"v_add_f32 v{T+1}, v{T+1}, v{T+3}")
            k(f"v_mov_b32 v{T+2}, v{T}")
            k(f"v_mov_b32 v{T+3}, v{T+1}")
            k("v_lshlrev_b32 v5, 7, v3")
            k("s_lshl_b32 s28, s27, 12")
            k(f"v_permlane32_swap_b32 v{T}, v{T+2}")
            k(f"v_permlane32_swap_b32 v{T+1}, v{T+3}")
            k("s_lshl_b32 s26, s21, 4")
            k("s_add_u32 s28, s28, s26")
            k(f"v_add_f32 v{T}, v{T}, v{T+2}")
            k(f"v_add_f32 v{T+1}, v{T+1}, v{T+3}")
            k("s_lshl_b32 s26, s24, 3")
            k("s_add_u32 s28, s28, s26")
            k(f"s_add_u32 s28, s28, {WS_ST}")
            k("s_mov_b32 exec_hi, 0")
            k(f"buffer_store_dwordx2 v[{T}:{T+1}], v5, s[16:19], s28 offen")
        else:
            for r in range(8):
                k(f"v_lshlrev_b32 v{T}, 16, v{EP+r}")
                k(f"v_and_b32 v{T+1}, 0xffff0000, v{EP+r}")
                k(f"v_lshlrev_b32 v{T+2}, 16, v{EP+8+r}")
                k(f"v_and_b32 v{T+3}, 0xffff0000, v{EP+8+r}")
                k(f"v_add_f32 v{A0+2*r}, v{A0+2*r}, v{T+2}")
                k(f"v_add_f32 v{A0+2*r+1}, v{A0+2*r+1}, v{T+3}")
                k(f"v_add_f32 v{A0+2*r}, v{A0+2*r}, v{T}")
                k(f"v_add_f32 v{A0+2*r+1}, v{A0+2*r+1}, v{T+1}")
            for r in range(8):
                k(f"v_cvt_pk_bf16_f32 v{PK+r}, v{A0+2*r}, v{A0+2*r+1}")
            k("v_lshlrev_b32 v5, 10, v3")
            k("v_lshl_add_u32 v5, v4, 4, v5")
            for pr in range(2):
                k(f"v_permlane32_swap_b32 v{PK+4*pr}, v{PK+2+4*pr}")
                k(f"v_permlane32_swap_b32 v{PK+1+4*pr}, v{PK+3+4*pr}")
            k("s_lshl_b32 s28, s27, 15")
            k("s_lshl_b32 s26, s21, 7")
            k("s_add_u32 s28, s28, s26")
            k("s_lshl_b32 s26, s24, 6")
            k("s_add_u32 s28, s28, s26")
            k(f"buffer_store_dwordx4 {vr(PK,4)}, v5, s[44:47], s28 offen")
            k(f"buffer_store_dwordx4 {vr(PK+4,4)}, v5, s[44:47], s28 offen offset:32")
    hk = dict(srds_a=srds_a, srds_w=srds_w, cons_pre=cons_pre, epilogue=epilogue)
    if kind == "wo":
        XB = NS*SZ
        def prod_pre(k):
            k("v_mov_b32 v28, 0")
            k(f"v_mov_b32 v29, {XB + 128}")
            k("ds_write_b32 v29, v28")
            k("s_waitcnt lgkmcnt(0)")
        def prod_late(k):
            k("s_mov_b32 s50, %d" % (512*3584)); k("s_mov_b32 s51, 0x00020000")
            k("s_and_b32 s40, s2, 7")
            k("s_lshr_b32 s41, s40, 1"); k("s_mul_i32 s41, s41, 28"); k("s_add_u32 s41, s41, s25")
            k("s_and_b32 s40, s40, 1"); k("s_mul_i32 s40, s40, 112"); k("s_add_u32 s41, s41, s40")
            k("s_min_u32 s41, s41, 223")
            k("s_lshl_b32 s43, s41, 4")
            k("s_mul_i32 s42, s23, %d" % (128*3584)); k("s_add_u32 s40, s43, s42")
            k("v_mul_u32_u24 v30, 3584, v1")
            k("buffer_load_dwordx4 v[40:43], v30, s[48:51], s40 offen")
            k("s_add_u32 s40, s40, %d" % (64*3584))
            k("buffer_load_dwordx4 v[44:47], v30, s[48:51], s40 offen")
            k("s_mov_b32 s54, 3584"); k("s_mov_b32 s55, 0x00020000")
            k("v_mov_b32 v31, 0")
            k("buffer_load_dwordx4 v[72:75], v31, s[52:55], s43 offen")
        def prod_post(k):
            lab = k.label("cs")
            k("s_cmp_ge_u32 s25, 28")
            k(f"s_cbranch_scc1 {lab}")
            k("s_waitcnt vmcnt(1)")
            for q in range(4):
                k(f"v_lshlrev_b32 v{8+2*q}, 16, v{40+q}")
                k(f"v_and_b32 v{9+2*q}, 0xffff0000, v{40+q}")
                k(f"v_lshlrev_b32 v16, 16, v{44+q}")
                k(f"v_and_b32 v17, 0xffff0000, v{44+q}")
                k(f"v_add_f32 v{8+2*q}, v{8+2*q}, v16")
                k(f"v_add_f32 v{9+2*q}, v{9+2*q}, v17")
            for mode in ["row_shr:1", "row_shr:2", "row_shr:4", "row_shr:8", "row_bcast:15 row_mask:0xa", "row_bcast:31 row_mask:0xc"]:
                k("s_nop 1")
                for r in range(8):
                    m = mode if "row_mask" in mode else mode + " row_mask:0xf"
                    k(f"v_add_f32_dpp v{8+r}, v{8+r}, v{8+r} {m} bank_mask:0xf")
            k("s_lshl_b32 s40, s23, 5")
            k(f"s_add_u32 s40, s40, {XB}")
            k("v_mov_b32 v2, s40")
            k("v_mov_b32 v18, 1")
            k("s_mov_b32 exec_lo, 0")
            k("s_mov_b32 exec_hi, 0x80000000")
            k("ds_write_b128 v2, v[8:11]")
            k("ds_write_b128 v2, v[12:15] offset:16")
            k("s_waitcnt lgkmcnt(0)")
            k("ds_add_rtn_u32 v19, v29, v18")
            k("s_waitcnt lgkmcnt(0)")
            k("v_readlane_b32 s42, v19, 63")
            k("s_nop 3")
            k("s_cmp_lg_u32 s42, 3")
            lab2 = k.label("cs")
            k(f"s_cbranch_scc1 {lab2}")
            k(f"v_mov_b32 v2, {XB}")
            for p_ in range(4):
                k(f"ds_read_b128 {vr(40+8*p_,4)}, v2 offset:{p_*32}")
                k(f"ds_read_b128 {vr(44+8*p_,4)}, v2 offset:{p_*32+16}")
            k("s_waitcnt vmcnt(0) lgkmcnt(0)")
            for r in range(8):
                k(f"v_add_f32 v{40+r}, v{40+r}, v{48+r}")
                k(f"v_add_f32 v{56+r}, v{56+r}, v{64+r}")
                k(f"v_add_f32 v{40+r}, v{40+r}, v{56+r}")
            for q in range(4):
                k(f"v_lshlrev_b32 v{16+2*q}, 16, v{72+q}")
                k(f"v_and_b32 v{17+2*q}, 0xffff0000, v{72+q}")
            k("s_lshl_b32 s40, s41, 5")
            k(f"s_add_u32 s40, s40, {WS_CS1}")
            k("s_mov_b32 s18, %d" % WS_END); k("s_mov_b32 s19, 0x00020000")
            k("v_mov_b32 v2, 0")
            k("buffer_store_dwordx4 v[40:43], v2, s[16:19], s40 offen")
            k("buffer_store_dwordx4 v[44:47], v2, s[16:19], s40 offen offset:16")
            k("s_add_u32 s40, s40, 8192")
            k("buffer_store_dwordx4 v[16:19], v2, s[16:19], s40 offen")
            k("buffer_store_dwordx4 v[20:23], v2, s[16:19], s40 offen offset:16")
            k(f"{lab2}:")
            k("s_mov_b64 exec, -1")
            k(f"{lab}:")
        hk.update(prod_pre=prod_pre, prod_late=prod_late, prod_post=prod_post)
        cfg["NLATE"] = 3
    gemm_core(k, name, cfg, hk)
    assert cfg["FREE"] <= EP
    k(f"{name}_done:")
    k("s_endpgm")
    return k

def colsum_chunk(k, addr_regs, slot, kstride, second, acc):
    for s_ in range(4):
        off = slot + s_*kstride
        hi = off >> 16; lo = off & 0xffff
        if lo + second > 65535: hi += 1; lo -= 65536
        assert lo >= 0
        k(f"ds_read_b64_tr_b16 {vr(32+4*s_,2)}, v{addr_regs[hi]} offset:{lo}")
        k(f"ds_read_b64_tr_b16 {vr(34+4*s_,2)}, v{addr_regs[hi]} offset:{lo+second}")
    for s_ in range(4):
        k(f"s_waitcnt lgkmcnt({2*(3-s_)})")
        for q in range(4):
            r = 32 + 4*s_ + q; t = 48 + 2*(q & 1)
            k(f"v_lshlrev_b32 v{t}, 16, v{r}")
            k(f"v_and_b32 v{t+1}, 0xffff0000, v{r}")
            k(f"v_pk_add_f32 v[{acc}:{acc+1}], v[{acc}:{acc+1}], v[{t}:{t+1}]")

def make_mlp1(ST=False):
    name = "mlp1_kernel"
    NS = 4; SZ = 32768; CSB = NS*SZ; STB = CSB + 1024
    k = Kern(name, 224, 768, CSB + 1024 + 2048, 128)
    common_head(k, name, 224, ST)
    k("s_load_dwordx2 s[16:17], s[0:1], 80")
    k("s_load_dwordx4 s[4:7], s[0:1], 32")
    k("s_load_dwordx2 s[44:45], s[0:1], 48")
    k("s_and_b32 s24, s2, 7")
    k("s_lshr_b32 s25, s2, 3")
    k("s_lshr_b32 s20, s24, 1")
    k("s_lshl_b32 s20, s20, 2")
    k("s_and_b32 s26, s25, 3")
    k("s_add_u32 s20, s20, s26")
    k("s_and_b32 s21, s24, 1")
    k("s_mul_i32 s21, s21, 7")
    k("s_lshr_b32 s29, s25, 2")
    k("s_add_u32 s21, s21, s29")
    if ROT[2] == "0": k("s_mov_b32 s29, 0")
    ids(k)
    k("s_lshl_b32 s30, s20, 17")
    k(f"s_add_u32 s30, s30, {WS_H}")
    k("s_lshl_b32 s32, s21, 8")
    cfg = dict(NTT=4, NG=4, KC=4, NCH=8, NS=NS, AHEAD=2, a_mode="frag", a_srd=16, w_srd=8, w_stride=3584, perm="pi",
               a_tile_stride=32768, wave_ntt=2, wave_ng=2, NSET=2, ST=ST)
    def srds_a(k):
        k("s_mov_b32 s18, %d" % WS_END); k("s_mov_b32 s19, 0x00020000")
    def srds_w(k):
        k.srd(8, 4, 512*3584)
    C0 = -2.0 * 1.4426950408889634 * 0.7978845608028654
    C1 = C0 * 0.044715
    def aprod_pre(k):
        k("v_and_b32 v3, 31, v1")
        k("v_lshrrev_b32 v4, 5, v1")
        k("v_lshlrev_b32 v6, 7, v3")
        k("v_lshl_add_u32 v6, v4, 6, v6")
        k("s_lshl_b32 s27, s20, 2")
        k("s_add_u32 s27, s27, s23")
        k("s_lshl_b32 s31, s27, 12")
        k(f"s_add_u32 s31, s31, {WS_ST}")
        for q in range(4):
            k(f"buffer_load_dwordx4 {vr(64+4*q,4)}, v6, s[16:19], s31 offen offset:{q*16}")
    def aprod_init(k, nafter):
        b = 64
        k(f"s_waitcnt vmcnt({nafter})")
        for q in range(1, 8):
            k(f"v_add_f32 v{b}, v{b}, v{b+2*q}")
            k(f"v_add_f32 v{b+1}, v{b+1}, v{b+1+2*q}")
        k(f"v_mov_b32 v{b+2}, v{b}")
        k(f"v_mov_b32 v{b+3}, v{b+1}")
        k("s_nop 1")
        k(f"v_permlane32_swap_b32 v{b}, v{b+2}")
        k(f"v_permlane32_swap_b32 v{b+1}, v{b+3}")
        k("s_nop 0")
        k(f"v_add_f32 v{b}, v{b}, v{b+2}")
        k(f"v_add_f32 v{b+1}, v{b+1}, v{b+3}")
        k(f"v_mul_f32 v{b}, {f32(1/512)}, v{b}")
        k(f"v_mul_f32 v{b+1}, {f32(1/512)}, v{b+1}")
        k(f"v_fma_f32 v{b+1}, -v{b}, v{b}, v{b+1}")
        k(f"v_max_f32 v{b+1}, 0, v{b+1}")
        k(f"v_add_f32 v{b+2}, {f32(1e-5)}, v{b+1}")
        k(f"v_rsq_f32 v{b+3}, v{b+2}")
        k(f"v_sub_f32 v{b+9}, 0, v{b}")
        k(f"v_mul_f32 v{b+4}, v{b+3}, v{b+3}")
        k(f"v_mul_f32 v{b+4}, v{b+4}, v{b+1}")
        k(f"v_add_f32 v{b+4}, {f32(1e-5)}, v{b+4}")
        k(f"v_rsq_f32 v{b+4}, v{b+4}")
        k("s_nop 0")
        k(f"v_mul_f32 v{b+5}, v{b+3}, v{b+4}")
        k(f"v_rcp_f32 v{b+8}, v{b+5}")
        k(f"v_mul_f32 v{b+10}, {f32(C0)}, v{b+5}")
        k(f"v_mul_f32 v{b+11}, v{b+5}, v{b+5}")
        k(f"v_mul_f32 v{b+11}, v{b+11}, v{b+5}")
        k(f"v_mul_f32 v{b+11}, {f32(C1)}, v{b+11}")
        k("v_lshlrev_b32 v5, 4, v3")
        k("s_lshl_b32 s26, s23, 9")
        k(f"s_add_u32 s26, s26, {STB}")
        k("v_add_u32 v5, s26, v5")
        k(f"ds_write_b128 v5, {vr(b+8,4)}")
        k("s_waitcnt lgkmcnt(0)")
        k("s_barrier")
    def aprod_post(k):
        if os.environ.get("PFW2", "1") == "1":
            k("s_mov_b32 s46, %d" % (1792*1024)); k("s_mov_b32 s47, 0x00020000")
            k("v_lshlrev_b32 v7, 7, v1")
            k("s_lshl_b32 s26, s25, 2"); k("s_add_u32 s26, s26, s23"); k("s_lshl_b32 s26, s26, 14")
            k("buffer_load_dword v8, v7, s[44:47], s26 offen")
            k("s_add_u32 s26, s26, 8192")
            k("buffer_load_dword v8, v7, s[44:47], s26 offen")
    def prod_pre(k):
        k("v_and_b32 v9, 31, v1")
        k("v_lshlrev_b32 v11, 2, v9")
        k("s_mov_b32 s18, %d" % WS_END); k("s_mov_b32 s19, 0x00020000")
        k("s_lshl_b32 s26, s21, 9")
        k("s_lshl_b32 s27, s23, 7")
        k("s_add_u32 s26, s26, s27")
        k(f"s_add_u32 s26, s26, {WS_CS1}")
        k("buffer_load_dword v24, v11, s[16:19], s26 offen")
        k("s_add_u32 s26, s26, 8192")
        k("buffer_load_dword v20, v11, s[16:19], s26 offen")
    def prod_init(k, nafter):
        k(f"s_waitcnt vmcnt({nafter})")
        k("s_lshl_b32 s26, s23, 7")
        k(f"s_add_u32 s26, s26, {CSB}")
        k("v_add_u32 v5, s26, v11")
        k("ds_write_b32 v5, v20 offset:512")
        k("ds_write_b32 v5, v24")
        k("s_waitcnt lgkmcnt(0)")
        k("s_barrier")
    def cons_pre(k):
        k("s_and_b32 s23, s22, 2")
        k("s_and_b32 s24, s22, 1")
        k("s_lshl_b32 s24, s24, 1")
        k("v_and_b32 v3, 31, v1")
        k("v_lshrrev_b32 v4, 5, v1")
        k("v_lshlrev_b32 v2, 4, v1")
        k("s_lshl_b32 s27, s20, 2")
        k("s_add_u32 s27, s27, s23")
        k("s_waitcnt lgkmcnt(0)")
        k("s_mov_b32 s18, %d" % WS_END); k("s_mov_b32 s19, 0x00020000")
        code_prefetch(k, "mlp2_kernel", 1, 124, 80)
    def acc_init(k, cfg):
        ACC = cfg["ACC"]
        k("v_lshlrev_b32 v5, 4, v4")
        k("s_lshl_b32 s26, s24, 7")
        k(f"s_add_u32 s26, s26, {CSB}")
        k("v_add_u32 v5, s26, v5")
        k("v_lshlrev_b32 v6, 4, v3")
        k("s_lshl_b32 s26, s23, 9")
        k(f"s_add_u32 s26, s26, {STB}")
        k("v_add_u32 v6, s26, v6")
        k("s_barrier")
        F = 28
        k(f"ds_read_b128 v[8:11], v6")
        k(f"ds_read_b128 v[12:15], v6 offset:512")
        P2 = lambda b, r: vr(b+2*r, 2)
        for g in range(2):
            for rr in range(4):
                k(f"ds_read_b128 {vr(ACC+16*g+4*rr,4)}, v5 offset:{512+g*128+rr*32}")
                k(f"ds_read_b128 {vr(ACC+32+16*g+4*rr,4)}, v5 offset:{g*128+rr*32}")
        k("s_waitcnt lgkmcnt(15)")
        k("s_waitcnt lgkmcnt(8)")
        for i in range(2):
            k(f"v_mov_b32 v{F+8+4*i}, v{8+4*i}")
            k(f"v_mov_b32 v{F+9+4*i}, v{8+4*i}")
            k(f"v_mov_b32 v{F+10+4*i}, v{9+4*i}")
            k(f"v_mov_b32 v{F+11+4*i}, v{9+4*i}")
        T = F + 16
        for g in range(2):
            if g == 1: k("s_waitcnt lgkmcnt(0)")
            B = ACC + 16*g; C = ACC + 32 + 16*g
            for r in range(8): k(f"v_pk_mul_f32 {P2(T,r)}, {P2(B,r)}, {vr(F+12,2)}")
            for r in range(8): k(f"v_pk_mul_f32 {P2(B,r)}, {P2(B,r)}, {vr(F+8,2)}")
            for r in range(8): k(f"v_pk_fma_f32 {P2(B,r)}, {P2(C,r)}, {vr(F+10,2)}, {P2(B,r)}")
            for r in range(8): k(f"v_pk_fma_f32 {P2(C,r)}, {P2(C,r)}, {vr(F+14,2)}, {P2(T,r)}")
    def epilogue(k, cfg):
        ACC = cfg["ACC"]
        k(f"s_mul_i32 s30, s27, {112*1024}")
        k("s_lshl_b32 s26, s21, 13")
        k("s_add_u32 s30, s30, s26")
        k("s_lshl_b32 s26, s24, 11")
        k("s_add_u32 s30, s30, s26")
        k(f"s_add_u32 s30, s30, {WS_G}")
        for i in range(2):
            for j, src in enumerate([8+4*i, 10+4*i, 11+4*i]):
                k(f"v_mov_b32 v{16+6*i+2*j}, v{src}")
                k(f"v_mov_b32 v{17+6*i+2*j}, v{src}")
        P2 = lambda b, r: vr(b+2*r, 2)
        T = [28, 44]
        order = [(0,0), (1,0), (0,1), (1,1)]
        def stage1(n):
            i, g = order[n]; acc = ACC + 16*(i*2+g); TT = T[n & 1]; c = 16 + 6*i
            for r in range(8): k(f"v_pk_mul_f32 {P2(TT,r)}, {P2(acc,r)}, {P2(acc,r)}")
            for r in range(8): k(f"v_pk_fma_f32 {P2(TT,r)}, {P2(TT,r)}, {vr(c+4,2)}, {vr(c+2,2)}")
            for r in range(8): k(f"v_pk_mul_f32 {P2(TT,r)}, {P2(TT,r)}, {P2(acc,r)}")
        def stage2(n):
            i, g = order[n]; acc = ACC + 16*(i*2+g); TT = T[n & 1]; c = 16 + 6*i
            for r in range(16): k(f"v_exp_f32 v{TT+r}, v{TT+r}")
            for r in range(8): k(f"v_pk_fma_f32 {P2(TT,r)}, {P2(TT,r)}, {vr(c,2)}, {vr(c,2)}")
            for r in range(16): k(f"v_rcp_f32 v{TT+r}, v{TT+r}")
            for r in range(8): k(f"v_pk_mul_f32 {P2(acc,r)}, {P2(acc,r)}, {P2(TT,r)}")
            for r in range(8): k(f"v_cvt_pk_bf16_f32 v{acc+r}, v{acc+2*r}, v{acc+2*r+1}")
            k(f"s_add_u32 s26, s30, {i*112*1024 + g*2048}")
            k(f"buffer_store_dwordx4 {vr(acc,4)}, v2, s[16:19], s26 offen")
            k(f"buffer_store_dwordx4 {vr(acc+4,4)}, v2, s[16:19], s26 offen offset:1024")
        for n in range(4):
            stage1(n); stage2(n)
    gemm_core(k, name, cfg, dict(srds_a=srds_a, srds_w=srds_w, aprod_pre=aprod_pre, aprod_init=aprod_init, aprod_post=aprod_post, prod_pre=prod_pre, prod_init=prod_init,
                                 cons_pre=cons_pre, acc_init=acc_init, epilogue=epilogue))
    assert cfg["FREE"] <= 128 and cfg["ACC"] == 60
    k(f"{name}_done:")
    k("s_endpgm")
    return k

def make_qkv(ST=False):
    name = "qkv_kernel"
    NS = 5; SZ = 16384 + 12288
    SCR = NS*SZ; CSB = SCR + 16384; STB = CSB + 512
    ONES = 10; CSA = 112
    k = Kern(name, 256, 1024, 163840, 128)
    common_head(k, name, 256, ST)
    k("s_load_dwordx4 s[4:7], s[0:1], 0")
    k("s_load_dwordx2 s[16:17], s[0:1], 80")
    k("s_and_b32 s24, s2, 7")
    k("s_lshr_b32 s25, s2, 3")
    k("s_lshr_b32 s20, s24, 1")
    k("s_lshl_b32 s20, s20, 2")
    k("s_and_b32 s26, s25, 3")
    k("s_add_u32 s20, s20, s26")
    k("s_and_b32 s21, s24, 1")
    k("s_lshl_b32 s21, s21, 3")
    k("s_lshr_b32 s27, s25, 2")
    k("s_add_u32 s21, s21, s27")
    k("s_lshl_b32 s26, s26, 1")
    k("s_add_u32 s29, s26, s27")
    k("s_and_b32 s29, s29, 7")
    if ROT[0] == "0": k("s_mov_b32 s29, 0")
    ids(k)
    k("s_lshl_b32 s30, s20, 17")
    k("s_mul_i32 s32, s21, 192")
    cfg = dict(NTT=4, NG=3, KC=4, NCH=8, NS=NS, AHEAD=3, a_mode="rows", a_srd=8, w_srd=12, w_stride=3072, perm="nat",
               wave_ntt=1, wave_ng=3, NSET=2, ST=ST, NVAR=3)
    def srds_a(k):
        k.srd(8, 4, 2048*1024)
    def srds_w(k):
        k.srd(12, 6, 512*3072)
    def helper_pre(k):
        code_prefetch(k, "att_kernel", 2, 100, 80)
        if os.environ.get("TLB", "0") == "1":
            lab = k.label("tlb")
            k("s_cmp_lg_u32 s25, 0")
            k(f"s_cbranch_scc1 {lab}")
            k("s_cmp_lg_u32 s23, 3")
            k(f"s_cbranch_scc1 {lab}")
            k("s_load_dwordx4 s[40:43], s[0:1], 16")
            k("s_load_dwordx8 s[44:51], s[0:1], 32")
            k("s_load_dwordx2 s[52:53], s[0:1], 64")
            k("s_waitcnt lgkmcnt(0)")
            k("s_mov_b32 s18, %d" % WS_END); k("s_mov_b32 s19, 0x00020000")
            k("v_lshlrev_b32 v100, 21, v1")
            k("buffer_load_dword v101, v100, s[16:19], 0 offen")
            k("v_mov_b32 v100, 0")
            for base, size in [(40, 512*1024), (44, 512*3584), (46, 3584), (48, 1792*1024), (50, 1024), (52, 2048*1024)]:
                k.srd(56, base, size)
                k("buffer_load_dword v101, v100, s[56:59], 0 offen")
            k(f"{lab}:")
        if os.environ.get("TOUCH", "0") == "1":
            k("s_waitcnt lgkmcnt(0)")
            k.srd(8, 4, 2048*1024)
            k.srd(12, 6, 512*3072)
            k("s_and_b32 s40, s25, 3")
            k("s_lshr_b32 s41, s25, 2")
            lab = k.label("t"); lab2 = k.label("t")
            k("s_cmp_ge_u32 s23, 2")
            k(f"s_cbranch_scc1 {lab}")
            k("v_lshlrev_b32 v40, 7, v1")
            k("s_lshl_b32 s42, s41, 14"); k("s_lshl_b32 s43, s23, 13"); k("s_add_u32 s42, s42, s43"); k("s_add_u32 s42, s42, s30")
            k("buffer_load_dword v41, v40, s[8:11], s42 offen")
            k(f"{lab}:")
            k("v_lshrrev_b32 v40, 1, v1")
            k("v_mul_u32_u24 v40, 3072, v40")
            k("v_and_b32 v42, 1, v1")
            k("v_lshl_add_u32 v40, v42, 7, v40")
            k("s_lshl_b32 s42, s40, 7"); k("s_lshl_b32 s43, s23, 5"); k("s_add_u32 s42, s42, s43"); k("s_mul_i32 s42, s42, 3072"); k("s_add_u32 s42, s42, s32")
            k("buffer_load_dword v41, v40, s[12:15], s42 offen")
        k("v_lshrrev_b32 v4, 5, v1")
        k("v_and_b32 v5, 31, v1")
        k("v_bfe_u32 v6, v1, 1, 3")
        k("v_xor_b32 v6, v6, v4")
        k("v_lshlrev_b32 v6, 4, v6")
        k("v_lshl_add_u32 v6, v5, 7, v6")
        k("s_lshl_b32 s26, s23, 12")
        k("v_add_u32 v20, s26, v6")
        for s_ in range(1, 4): k(f"v_xor_b32 v{20+s_}, {s_*32}, v20")
        for s_ in range(4): k(f"v_add_u32 v{24+s_}, 0x10000, v{20+s_}")
        for r in range(28, 32): k(f"v_mov_b32 v{r}, 0")
    def stat_ops(k, base):
        for s_ in range(4):
            for q in range(4):
                r = base + 4*s_ + q
                t = 64 + 2*(q & 1)
                k(f"v_lshlrev_b32 v{t}, 16, v{r}")
                k(f"v_and_b32 v{t+1}, 0xffff0000, v{r}")
                k(f"v_add_f32 v28, v28, v{t}")
                k(f"v_add_f32 v29, v29, v{t+1}")
                k(f"v_fmac_f32 v30, v{t}, v{t}")
                k(f"v_fmac_f32 v31, v{t+1}, v{t+1}")
    def helper_chunk(k, c, slot):
        base = 32 + 16*(c & 1)
        for s_ in range(4):
            if slot >= 65536: k(f"ds_read_b128 {vr(base+4*s_,4)}, v{24+s_} offset:{slot-65536}")
            else: k(f"ds_read_b128 {vr(base+4*s_,4)}, v{20+s_} offset:{slot}")
        if c > 0: stat_ops(k, 32 + 16*((c-1) & 1))
        k("s_waitcnt lgkmcnt(0)")
        if c == 7: stat_ops(k, base)
    def helper_post(k):
        k("v_add_f32 v28, v28, v29")
        k("v_add_f32 v30, v30, v31")
        k("v_mov_b32 v29, v28")
        k("v_mov_b32 v31, v30")
        k("s_nop 1")
        k("v_permlane32_swap_b32 v28, v29")
        k("v_permlane32_swap_b32 v30, v31")
        k("s_nop 0")
        k("v_add_f32 v28, v28, v29")
        k("v_add_f32 v30, v30, v31")
        k(f"v_mul_f32 v28, {f32(1/512)}, v28")
        k(f"v_mul_f32 v30, {f32(1/512)}, v30")
        k("v_fma_f32 v30, -v28, v28, v30")
        k("v_max_f32 v30, 0, v30")
        k(f"v_add_f32 v30, {f32(1e-5)}, v30")
        k("v_rsq_f32 v30, v30")
        k("v_lshlrev_b32 v5, 3, v1")
        k("v_mul_f32 v31, v28, v30")
        k("v_sub_f32 v31, 0, v31")
        k("s_lshl_b32 s26, s23, 9")
        k(f"s_add_u32 s26, s26, {STB}")
        k("v_add_u32 v5, s26, v5")
        k("ds_write_b64 v5, v[30:31]")
        k("s_waitcnt lgkmcnt(0)")
        k("s_barrier")
    def cons_pre(k):
        k("s_mov_b32 s23, s22")
        k("s_mov_b32 s24, 0")
        k("v_and_b32 v3, 31, v1")
        k("v_lshrrev_b32 v4, 5, v1")
        k("v_lshlrev_b32 v2, 4, v1")
        for r in range(4): k(f"v_mov_b32 v{ONES+r}, 0x3f803f80")
        for r in range(16): k(f"v_mov_b32 v{CSA+r}, 0")
        k("s_min_u32 s36, s22, 2")
        k("s_waitcnt lgkmcnt(0)")
        k("s_mov_b32 s18, %d" % (6 << 20)); k("s_mov_b32 s19, 0x00020000")
    def after_step(k, s_, fwf):
        k(f"v_mfma_f32_32x32x16_bf16 {vr(CSA,16)}, {vr(fwf(cfg['VAR']),4)}, {vr(ONES,4)}, {vr(CSA,16)}")
    def epilogue(k, cfg):
        ACC = cfg["ACC"]
        k("v_lshlrev_b32 v5, 4, v4")
        k("s_lshl_b32 s26, s36, 7")
        k(f"s_add_u32 s26, s26, {CSB}")
        k("v_add_u32 v11, s26, v5")
        k("s_mov_b32 exec_lo, 1")
        k("s_mov_b32 exec_hi, 1")
        k("s_nop 4")
        for rr in range(4):
            k(f"ds_write_b128 v11, {vr(CSA+4*rr,4)} offset:{rr*32}")
        k("s_mov_b64 exec, -1")
        k("s_lshl_b32 s27, s20, 2")
        k("s_add_u32 s27, s27, s22")
        k("s_lshl_b32 s27, s27, 10")
        k("s_mul_i32 s28, s21, 3")
        QS = 0.25 * 1.4426950408889634
        k("s_lshl_b32 s31, s22, 13")
        k("v_mul_u32_u24 v6, 72, v3")
        k("v_lshl_add_u32 v6, v4, 3, v6")
        k("v_add_u32 v6, s31, v6")
        k("v_bfe_u32 v7, v1, 2, 2")
        k("v_lshl_add_u32 v8, v4, 2, v7")
        k("v_mul_u32_u24 v8, 72, v8")
        k("v_bfe_u32 v7, v1, 4, 1")
        k("v_lshl_add_u32 v8, v7, 5, v8")
        k("v_and_b32 v7, 3, v1")
        k("v_lshl_add_u32 v8, v7, 3, v8")
        k("v_add_u32 v8, s31, v8")
        k("v_bfe_u32 v9, v1, 4, 1")
        k("v_lshlrev_b32 v9, 16, v9")
        k("v_lshl_add_u32 v9, v4, 8, v9")
        k("v_and_b32 v7, 15, v1")
        k("v_lshl_add_u32 v9, v7, 4, v9")
        k("v_lshlrev_b32 v5, 4, v4")
        k(f"v_add_u32 v5, {CSB}, v5")
        k("v_lshlrev_b32 v10, 3, v1")
        k("s_lshl_b32 s26, s22, 9")
        k(f"s_add_u32 s26, s26, {STB}")
        k("v_add_u32 v10, s26, v10")
        k("s_waitcnt lgkmcnt(0)")
        k("s_barrier")
        k("ds_read_b64 v[12:13], v10")
        CSR = [16, 32, 48]
        for g in range(3):
            for rr in range(4):
                k(f"ds_read_b128 {vr(CSR[g]+4*rr,4)}, v5 offset:{g*128+rr*32}")
        P2 = lambda b, r: vr(b+2*r, 2)
        for g in range(3):
            acc = ACC + 16*g; cs = CSR[g]
            lq = k.label("q"); lv = k.label("v"); le = k.label("e")
            k(f"s_add_u32 s33, s28, {g}")
            k(f"s_waitcnt lgkmcnt({8-4*g})")
            k("v_mov_b32 v114, v12")
            k("v_mov_b32 v116, v13")
            k("s_cmp_ge_u32 s33, 16")
            k(f"s_cbranch_scc1 {lq}")
            k(f"v_mul_f32 v114, {f32(QS)}, v114")
            k(f"v_mul_f32 v116, {f32(QS)}, v116")
            k(f"{lq}:")
            k("v_mov_b32 v115, v114")
            k("v_mov_b32 v117, v116")
            for r in range(8): k(f"v_pk_mul_f32 {P2(cs,r)}, {P2(cs,r)}, v[116:117]")
            for r in range(8): k(f"v_pk_fma_f32 {P2(acc,r)}, {P2(acc,r)}, v[114:115], {P2(cs,r)}")
            for r in range(8): k(f"v_cvt_pk_bf16_f32 v{acc+r}, v{acc+2*r}, v{acc+2*r+1}")
            k("s_lshr_b32 s34, s33, 4")
            k("s_lshl_b32 s34, s34, 21")
            k("s_and_b32 s35, s33, 15")
            k("s_lshl_b32 s35, s35, 17")
            k("s_add_u32 s34, s34, s35")
            k("s_add_u32 s34, s34, s27")
            k(f"s_mov_b32 s{40+g}, s34")
            k("s_cmp_ge_u32 s33, 32")
            k(f"s_cbranch_scc1 {lv}")
            k(f"buffer_store_dwordx4 {vr(acc,4)}, v2, s[16:19], s34 offen")
            k("s_add_u32 s34, s34, 65536")
            k(f"buffer_store_dwordx4 {vr(acc+4,4)}, v2, s[16:19], s34 offen")
            k(f"s_branch {le}")
            k(f"{lv}:")
            for rr in range(4):
                k(f"ds_write_b64 v6, {vr(acc+2*rr,2)} offset:{g*2304+rr*16}")
            k(f"{le}:")
        lend = k.label("ve")
        k("s_add_u32 s33, s28, 2")
        k("s_cmp_lt_u32 s33, 32")
        k(f"s_cbranch_scc1 {lend}")
        k("s_waitcnt lgkmcnt(0)")
        for g in range(3):
            acc = ACC + 16*g
            for j in range(2):
                k(f"ds_read_b64_tr_b16 {vr(acc+8+4*j,2)}, v8 offset:{g*2304+j*16*72}")
                k(f"ds_read_b64_tr_b16 {vr(acc+8+4*j+2,2)}, v8 offset:{g*2304+j*16*72+8*72}")
        for g in range(3):
            acc = ACC + 16*g
            ls = k.label("vs")
            k(f"s_waitcnt lgkmcnt({8-4*g})")
            k(f"s_add_u32 s33, s28, {g}")
            k("s_cmp_lt_u32 s33, 32")
            k(f"s_cbranch_scc1 {ls}")
            k(f"buffer_store_dwordx4 {vr(acc+8,4)}, v9, s[16:19], s{40+g} offen")
            k(f"buffer_store_dwordx4 {vr(acc+12,4)}, v9, s[16:19], s{40+g} offen offset:512")
            k(f"{ls}:")
        k(f"{lend}:")
    gemm_core(k, name, cfg, dict(srds_a=srds_a, srds_w=srds_w,
                                 helper_pre=helper_pre, helper_chunk=helper_chunk, helper_post=helper_post,
                                 cons_pre=cons_pre, pre_step=after_step, epilogue=epilogue))
    assert cfg["FREE"] <= 112 and cfg["ACC"] == 64
    k(f"{name}_done:")
    k("s_endpgm")
    return k
```

```python
from dsl import *

class G:
    pass

def gemm_core(k, name, cfg, hooks):
    NTT, NG, KC, NCH, NS, AHEAD = (cfg[x] for x in ("NTT", "NG", "KC", "NCH", "NS", "AHEAD"))
    ABYTES = NTT*KC*1024
    WROW = NG*64
    WBYTES = KC*16*WROW
    SZ = ABYTES + WBYTES
    ST = cfg.get("ST", False)
    cfg["NWAVES"] = 16 if ("helper_chunk" in hooks or "free_helper" in hooks) else 12
    k("s_cmp_lt_u32 s22, 4")
    k(f"s_cbranch_scc1 {name}_cons")
    if "helper_chunk" in hooks or "free_helper" in hooks:
        k("s_cmp_ge_u32 s22, 12")
        k(f"s_cbranch_scc1 {name}_help")
    k("s_cmp_ge_u32 s22, 8")
    k(f"s_cbranch_scc1 {name}_wprod")
    ASRD, WSRD = cfg["a_srd"], cfg["w_srd"]
    wst = cfg["w_stride"]
    def prod_loop(per, dma, pre_chunk, post_chunk, post, late=None, nlate=0, init=None, mid=None, nmid=0, mid_at=None):
        issued = 0; extra = 0; mid_done = False
        for c in range(min(AHEAD, NCH)):
            dma(c); issued += 1
            if init is not None and c == 0: init(k, per*issued)
        stamp(k, 2, ST)
        for c in range(NCH):
            k(f"s_waitcnt vmcnt({per*(issued - 1 - c) + extra + (nmid if (mid_done and c < mid_at) else 0)})")
            k("s_barrier")
            pre_chunk(k, c, (c % NS)*SZ)
            if issued < NCH:
                assert issued - NS <= c - 2
                if mid is not None and issued == mid_at:
                    mid(k); mid_done = True
                dma(issued); issued += 1
                if issued == NCH and late is not None:
                    late(k); extra = nlate
            post_chunk(k, c, (c % NS)*SZ)
        post(k)
        if ST:
            stamp(k, 3, ST); stamp(k, 4, ST); stamp(k, 5, ST); stamp(k, 6, ST)
            k("s_waitcnt lgkmcnt(0)")
            stamp_rt(k, 7)
            stamp_flush(k, 8, 16, 22, cfg["NWAVES"])
        k("s_endpgm")
    nop2 = lambda k, c, slot: None
    k("s_sub_u32 s23, s22, 4")
    nA = NTT*KC//4
    if cfg["a_mode"] == "frag":
        k("v_lshlrev_b32 v2, 4, v1")
        if NTT == 4:
            k(f"s_mul_i32 s34, s23, {cfg['a_tile_stride']}")
        else:
            k("s_lshr_b32 s26, s23, 1")
            k(f"s_mul_i32 s34, s26, {cfg['a_tile_stride']}")
            k("s_and_b32 s26, s23, 1")
            k(f"s_mul_i32 s26, s26, {nA*1024}")
            k("s_add_u32 s34, s34, s26")
        k("s_add_u32 s34, s34, s30")
        a_chunk_stride = KC*1024
        a_voffs = ["v2"]*nA
        a_soffs = [n*1024 for n in range(nA)]
    else:
        assert KC == 4 and NTT == 4
        k("v_lshrrev_b32 v6, 3, v1")
        k("v_and_b32 v7, 7, v1")
        for n in range(4):
            k(f"v_lshrrev_b32 v8, 1, v6")
            k(f"v_add_u32 v8, {4*n}, v8")
            k(f"v_and_b32 v8, 7, v8")
            k(f"v_xor_b32 v8, v8, v7")
            k(f"v_lshlrev_b32 v8, 4, v8")
            k(f"v_lshl_add_u32 v{10+n}, v6, 10, v8")
        k("s_lshl_b32 s34, s23, 15")
        k("s_add_u32 s34, s34, s30")
        a_chunk_stride = KC*32
        a_voffs = [f"v{10+n}" for n in range(4)]
        a_soffs = [n*8192 for n in range(4)]
    k(f"s_mul_i32 s35, s23, {nA*1024}")
    k(f"s_mul_i32 s38, s29, {a_chunk_stride}")
    k("s_add_u32 s34, s34, s38")
    k(f"s_sub_u32 s38, {NCH}, s29")
    k("s_waitcnt lgkmcnt(0)")
    hooks["srds_a"](k)
    def dma_a(c):
        slot = (c % NS)*SZ
        for n in range(nA):
            k(f"s_add_u32 m0, s35, {slot + n*1024}")
            if a_soffs[n]:
                k(f"s_add_u32 s26, s34, {a_soffs[n]}")
                k(f"buffer_load_dwordx4 {a_voffs[n]}, s[{ASRD}:{ASRD+3}], s26 offen lds")
            else:
                k("s_nop 0")
                k(f"buffer_load_dwordx4 {a_voffs[n]}, s[{ASRD}:{ASRD+3}], s34 offen lds")
        k(f"s_add_u32 s34, s34, {a_chunk_stride}")
        k("s_sub_u32 s38, s38, 1")
        k("s_cmp_eq_u32 s38, 0")
        k(f"s_cselect_b32 s26, {NCH*a_chunk_stride}, 0")
        k("s_sub_u32 s34, s34, s26")
    hooks.get("aprod_pre", lambda k: None)(k)
    prod_loop(nA, dma_a, hooks.get("aprod_chunk_pre", nop2), hooks.get("aprod_chunk_post", nop2), hooks.get("aprod_post", lambda k: None), init=hooks.get("aprod_init"))
    k(f"{name}_wprod:")
    k("s_sub_u32 s23, s22, 8")
    nW = KC*NG//4
    rows_per_p = KC*4
    if NG == 2:
        k("v_lshrrev_b32 v3, 3, v1")
        k("v_and_b32 v4, 7, v1")
        k("v_bfe_u32 v5, v1, 4, 1")
        k("v_lshlrev_b32 v5, 2, v5")
        k("v_xor_b32 v4, v4, v5")
        k("v_lshlrev_b32 v4, 4, v4")
        k(f"s_mov_b32 s26, {wst}")
        k("v_mul_lo_u32 v3, v3, s26")
        k("v_add_u32 v3, v3, v4")
        w_voffs = ["v3"]*nW; w_soffs = [n*8*wst for n in range(nW)]
    elif NG == 4:
        k("v_lshrrev_b32 v3, 4, v1")
        k("v_and_b32 v5, 15, v1")
        k("v_lshlrev_b32 v4, 2, v3")
        k("v_xor_b32 v5, v5, v4")
        k(f"s_mov_b32 s26, {wst}")
        k("v_mul_lo_u32 v3, v3, s26")
        k("v_lshl_add_u32 v3, v5, 4, v3")
        w_voffs = ["v3"]*nW; w_soffs = [n*4*wst for n in range(nW)]
    else:
        assert nW == 3
        k(f"s_mov_b32 s26, {wst}")
        k("s_mov_b32 s27, 0x15555556")
        for n in range(3):
            k(f"v_add_u32 v4, {64*n}, v1")
            k("v_mul_hi_u32 v5, v4, s27")
            k("v_mul_u32_u24 v6, 12, v5")
            k("v_sub_u32 v4, v4, v6")
            k("v_mul_lo_u32 v5, v5, s26")
            k(f"v_lshl_add_u32 v{14+n}, v4, 4, v5")
        w_voffs = [f"v{14+n}" for n in range(3)]; w_soffs = [0, 0, 0]
    k(f"s_mul_i32 s36, s23, {rows_per_p*wst}")
    k("s_add_u32 s36, s36, s32")
    k(f"s_mul_i32 s37, s23, {nW*1024}")
    k(f"s_add_u32 s37, s37, {ABYTES}")
    w_chunk_stride = KC*16*wst
    k(f"s_mul_i32 s39, s29, {w_chunk_stride}")
    k("s_add_u32 s36, s36, s39")
    k(f"s_sub_u32 s38, {NCH}, s29")
    k("s_waitcnt lgkmcnt(0)")
    hooks["srds_w"](k)
    def dma_w(c):
        slot = (c % NS)*SZ
        for n in range(nW):
            k(f"s_add_u32 m0, s37, {slot + n*1024}")
            if w_soffs[n]:
                k(f"s_add_u32 s26, s36, {w_soffs[n]}")
                k(f"buffer_load_dwordx4 {w_voffs[n]}, s[{WSRD}:{WSRD+3}], s26 offen lds")
            else:
                k("s_nop 0")
                k(f"buffer_load_dwordx4 {w_voffs[n]}, s[{WSRD}:{WSRD+3}], s36 offen lds")
        k(f"s_add_u32 s36, s36, {w_chunk_stride}")
        k("s_sub_u32 s38, s38, 1")
        k("s_cmp_eq_u32 s38, 0")
        k(f"s_cselect_b32 s27, {NCH*w_chunk_stride}, 0")
        k("s_sub_u32 s36, s36, s27")
    hooks.get("prod_pre", lambda k: None)(k)
    prod_loop(nW, dma_w, hooks.get("prod_chunk_pre", nop2), hooks.get("prod_chunk_post", nop2), hooks.get("prod_post", lambda k: None), hooks.get("prod_late"), cfg.get("NLATE", 0), init=hooks.get("prod_init"), mid=hooks.get("prod_mid"), nmid=cfg.get("NMID", 0), mid_at=cfg.get("MID_AT"))
    if "helper_chunk" in hooks:
        k(f"{name}_help:")
        k("s_sub_u32 s23, s22, 12")
        hooks["helper_pre"](k)
        stamp(k, 2, ST)
        for c in range(NCH):
            k("s_barrier")
            hooks["helper_chunk"](k, c, (c % NS)*SZ)
        hooks["helper_post"](k)
        if ST:
            stamp(k, 3, ST); stamp(k, 4, ST); stamp(k, 5, ST); stamp(k, 6, ST)
            k("s_waitcnt lgkmcnt(0)")
            stamp_rt(k, 7)
            stamp_flush(k, 8, 16, 22, cfg["NWAVES"])
        k("s_endpgm")
    if "free_helper" in hooks:
        k(f"{name}_help:")
        k("s_sub_u32 s23, s22, 12")
        hooks["free_helper"](k)
        if ST:
            stamp(k, 2, ST); stamp(k, 3, ST); stamp(k, 4, ST); stamp(k, 5, ST); stamp(k, 6, ST)
            k("s_mov_b64 exec, -1")
            k("s_waitcnt lgkmcnt(0)")
            stamp_rt(k, 7)
            stamp_flush(k, 8, 16, 22, cfg["NWAVES"])
        k("s_endpgm")
    k(f"{name}_cons:")
    hooks["cons_pre"](k)
    stamp(k, 2, ST)
    tts, gs = cfg["wave_ntt"], cfg["wave_ng"]
    k("v_lshrrev_b32 v4, 5, v1")
    if cfg["a_mode"] == "frag":
        k("v_lshlrev_b32 v5, 4, v1")
        k(f"s_mul_i32 s26, s23, {KC*1024}")
        k("v_add_u32 v14, s26, v5")
        a_addr_regs = None
    else:
        k("v_and_b32 v5, 31, v1")
        k("v_bfe_u32 v6, v1, 1, 3")
        k("v_xor_b32 v6, v6, v4")
        k("v_lshlrev_b32 v6, 4, v6")
        k("v_lshl_add_u32 v6, v5, 7, v6")
        k("s_lshl_b32 s26, s23, 12")
        k("v_add_u32 v14, s26, v6")
    k("v_bfe_u32 v7, v1, 2, 2")
    if cfg["perm"] == "pi":
        k("v_lshl_add_u32 v8, v4, 2, v7")
        second = 8*WROW
    else:
        k("v_lshl_add_u32 v8, v4, 3, v7")
        second = 4*WROW
    k(f"v_mul_u32_u24 v8, {WROW}, v8")
    if NG == 2:
        k("v_lshrrev_b32 v7, 1, v7")
        k("v_lshl_add_u32 v8, v7, 6, v8")
    elif NG == 4:
        k("v_lshl_add_u32 v8, v7, 6, v8")
    k("v_bfe_u32 v7, v1, 4, 1")
    k("v_lshl_add_u32 v8, v7, 5, v8")
    k("v_and_b32 v7, 3, v1")
    k("v_lshl_add_u32 v8, v7, 3, v8")
    k(f"v_add_u32 v8, {ABYTES}, v8")
    k("s_lshl_b32 s26, s24, 6")
    if NG == 3:
        k("v_add_u32 v15, s26, v8")
    else:
        k("v_xor_b32 v15, s26, v8")
    nAreg = 1 if cfg["a_mode"] == "frag" else KC
    nWreg = 1 if NG == 3 else gs
    BA = 16; BW = BA + nAreg; CUR = BW + nWreg; NXT = CUR + nAreg + nWreg; FR = NXT + nAreg + nWreg
    FR = (FR + 3)//4*4
    for i in range(nAreg):
        if i == 0: k(f"v_mov_b32 v{BA}, v14")
        else: k(f"v_xor_b32 v{BA+i}, {i*32}, v14")
    for i in range(nWreg):
        if i == 0: k(f"v_mov_b32 v{BW}, v15")
        else: k(f"v_xor_b32 v{BW+i}, {i*64}, v15")
    for i in range(nAreg + nWreg):
        k(f"v_mov_b32 v{CUR+i}, v{BA+i}")
    FSZ = 4*(tts + gs)
    NSET = cfg["NSET"]
    ACC = FR + NSET*FSZ
    ACC = (ACC + 3)//4*4
    cfg["ACC"] = ACC
    cfg["FREE"] = ACC + 16*tts*gs
    if "acc_init" in hooks: hooks["acc_init"](k, cfg)
    else:
        for r in range(ACC, ACC + 16*tts*gs): k(f"v_mov_b32 v{r}, 0")
    def fa(S, i): return FR + (S % NSET)*FSZ + 4*i
    def fw(S, g): return FR + (S % NSET)*FSZ + 4*tts + 4*g
    def rd_a(S_set, s_, i, base):
        if cfg["a_mode"] == "frag":
            k(f"ds_read_b128 {vr(fa(S_set,i),4)}, v{base} offset:{s_*1024 + i*KC*1024}")
        else:
            k(f"ds_read_b128 {vr(fa(S_set,i),4)}, v{base+s_} offset:{i*4096}")
    def rd_w(S_set, s_, g, base):
        if NG == 3:
            ad = base + nAreg; off = s_*16*WROW + g*64
        else:
            ad = base + nAreg + g; off = s_*16*WROW
        k(f"ds_read_b64_tr_b16 {vr(fw(S_set,g),2)}, v{ad} offset:{off}")
        k(f"ds_read_b64_tr_b16 {vr(fw(S_set,g)+2,2)}, v{ad} offset:{off+second}")
    nrd = tts + 2*gs
    D = NSET
    assert KC % NSET == 0 or NSET <= KC
    k("s_mov_b32 s34, 0")
    k("s_mov_b32 s35, 0")
    k("s_barrier")
    stamp(k, 3, ST)
    for S in range(D):
        for i in range(tts): rd_a(S, S, i, CUR)
        for g in range(gs): rd_w(S, S, g, CUR)
    def chunk_body(last, cidx=None):
        for s_ in range(KC):
            nx = s_ + D
            in_next = nx >= KC
            if nx == KC and not last:
                k(f"s_add_u32 s34, s34, {SZ}")
                k(f"s_cmp_eq_u32 s34, {NS*SZ}")
                k("s_cselect_b32 s34, 0, s34")
                for i in range(nAreg + nWreg):
                    k(f"v_add_u32 v{NXT+i}, s34, v{BA+i}")
                k("s_barrier")
            do_rd = not (last and in_next)
            if do_rd: allowed = nrd*(D-1)
            else: allowed = nrd*(KC-1-s_)
            k(f"s_waitcnt lgkmcnt({min(15, allowed)})")
            base = NXT if in_next else CUR
            sn = nx - KC if in_next else nx
            hooks.get("pre_step", lambda *a: None)(k, s_, lambda g: fw(s_, g))
            for i in range(tts):
                for g in range(gs):
                    acc = ACC + 16*(i*gs + g)
                    k(f"v_mfma_f32_32x32x16_bf16 {vr(acc,16)}, {vr(fw(s_,g),4)}, {vr(fa(s_,i),4)}, {vr(acc,16)}")
                    hooks.get("after_mfma", lambda *a: None)(k, s_, i, g, fa(s_, i), fw(s_, g))
                    if do_rd:
                        if i == tts - 1: rd_w(s_, sn, g, base)
                        if g == gs - 1: rd_a(s_, sn, i, base)
        if not last:
            for i in range(nAreg + nWreg):
                k(f"v_mov_b32 v{CUR+i}, v{NXT+i}")
    nvar = cfg.get("NVAR", 1)
    if nvar > 1:
        for v_ in range(1, nvar):
            k(f"s_cmp_eq_u32 s36, {v_}")
            k(f"s_cbranch_scc1 {name}_var{v_}")
    for v_ in range(nvar):
        cfg["VAR"] = v_
        lab = f"{name}_loop{v_}"
        k(f"{name}_var{v_}:")
        k(f"{lab}:")
        chunk_body(False)
        k("s_add_u32 s35, s35, 1")
        k(f"s_cmp_lt_u32 s35, {NCH-1}")
        k(f"s_cbranch_scc1 {lab}")
        chunk_body(True)
        if v_ < nvar - 1: k(f"s_branch {name}_epi")
    k(f"{name}_epi:")
    stamp(k, 4, ST)
    hooks["epilogue"](k, cfg)
    stamp(k, 5, ST)
    if ST:
        k("s_waitcnt vmcnt(0)")
        k("s_mov_b64 exec, -1")
        stamp(k, 6, ST)
        k("s_waitcnt lgkmcnt(0)")
        stamp_rt(k, 7)
        stamp_flush(k, 8, 16, 22, cfg["NWAVES"])
```

```python
from dsl import *
from gemm import gemm_core
import os
ROT = os.environ.get("ROT", "0110")

def common_head(k, name, nwg, ST):
    k(f"s_cmp_ge_u32 s2, {nwg}")
    k(f"s_cbranch_scc1 {name}_done")
    if ST: stamp_rt(k, 0)
    stamp(k, 1, ST)

def ids(k):
    k("v_lshrrev_b32 v2, 6, v0")
    k("v_and_b32 v1, 63, v0")
    k("v_readfirstlane_b32 s22, v2")
    if os.environ.get("WREMAP", "1") == "1":
        k("s_nop 3")
        k("s_add_u32 s36, s22, 4")
        k("s_sub_u32 s37, s22, 8")
        k("s_cmp_lt_u32 s22, 8")
        k("s_cselect_b32 s36, s36, s37")
        k("s_cmp_ge_u32 s22, 12")
        k("s_cselect_b32 s22, s22, s36")

def make_g64(kind, ST=False):
    name = kind + "_kernel"
    KS = 32 if kind == "wo" else 112
    NCH = KS // 4
    NS = 8
    SZ = 16384
    k = Kern(name, 256, 768, NS*SZ + 256, 128)
    A_WS = WS_O if kind == "wo" else WS_G
    common_head(k, name, 256, ST)
    k("s_load_dwordx2 s[16:17], s[0:1], 80")
    if kind == "wo":
        k("s_load_dwordx2 s[4:5], s[0:1], 16")
        k("s_load_dwordx2 s[6:7], s[0:1], 0")
        k("s_load_dwordx2 s[48:49], s[0:1], 32")
        k("s_load_dwordx2 s[52:53], s[0:1], 40")
    else:
        k("s_load_dwordx2 s[4:5], s[0:1], 48")
        k("s_load_dwordx4 s[40:43], s[0:1], 56")
    k("s_and_b32 s24, s2, 7")
    k("s_lshr_b32 s25, s2, 3")
    k("s_lshl_b32 s20, s24, 2")
    k("s_and_b32 s26, s25, 3")
    k("s_add_u32 s20, s20, s26")
    k("s_lshr_b32 s21, s25, 2")
    ids(k)
    k(f"s_mul_i32 s29, s21, {NCH}")
    k("s_lshr_b32 s29, s29, 3")
    if ROT[1 if kind == "wo" else 3] == "0": k("s_mov_b32 s29, 0")
    k(f"s_mul_i32 s30, s20, {2*KS*1024}")
    k(f"s_add_u32 s30, s30, {A_WS}")
    k("s_lshl_b32 s32, s21, 7")
    cfg = dict(NTT=2, NG=2, KC=4, NCH=NCH, NS=NS, AHEAD=3, a_mode="frag", a_srd=16, w_srd=8, w_stride=1024, perm="pi",
               a_tile_stride=KS*1024, wave_ntt=1, wave_ng=1, NSET=4, ST=ST)
    def srds_a(k):
        k("s_mov_b32 s18, %d" % WS_END); k("s_mov_b32 s19, 0x00020000")
    def srds_w(k):
        k.srd(8, 4, KS*16*1024)
    EP = 96
    def cons_pre(k):
        k("s_lshr_b32 s23, s22, 1")
        k("s_and_b32 s24, s22, 1")
        k("v_and_b32 v3, 31, v1")
        k("v_lshrrev_b32 v4, 5, v1")
        k("v_lshlrev_b32 v2, 4, v1")
        k("s_lshl_b32 s27, s20, 1")
        k("s_add_u32 s27, s27, s23")
        k("s_waitcnt lgkmcnt(0)")
        k("s_mov_b32 s18, %d" % WS_END); k("s_mov_b32 s19, 0x00020000")
        if kind == "wo": code_prefetch(k, "mlp1_kernel", 1, 120, 80)
        if os.environ.get("TOUCHA", "0") == "1":
            SH = 2*KS*1024//8
            k("v_lshlrev_b32 v9, 7, v1")
            k(f"s_mul_i32 s26, s21, {SH}")
            k(f"s_mul_i32 s28, s22, {SH//4}")
            k("s_add_u32 s26, s26, s28")
            k("s_add_u32 s26, s26, s30")
            nl = SH//4//128
            if nl < 64:
                k(f"v_min_u32 v9, {(nl-1)*128}, v9")
            k("buffer_load_dword v10, v9, s[16:19], s26 offen")
        if kind == "wo":
            k.srd(12, 6, 2048*1024)
            k("v_lshlrev_b32 v5, 10, v3")
            k("v_lshl_add_u32 v5, v4, 3, v5")
            k("s_lshl_b32 s28, s27, 15")
            k("s_lshl_b32 s26, s21, 7")
            k("s_add_u32 s28, s28, s26")
            k("s_lshl_b32 s26, s24, 6")
            k("s_add_u32 s28, s28, s26")
            for rr in range(4):
                k(f"buffer_load_dwordx2 {vr(EP+2*rr,2)}, v5, s[12:15], s28 offen offset:{rr*16}")
        else:
            k.srd(12, 40, 1024)
            k.srd(44, 42, 2048*1024)
            k("s_lshl_b32 s28, s27, 15")
            k("s_lshl_b32 s26, s21, 12")
            k("s_add_u32 s28, s28, s26")
            k("s_lshl_b32 s26, s24, 11")
            k("s_add_u32 s28, s28, s26")
            k(f"s_add_u32 s28, s28, {WS_H}")
            k(f"buffer_load_dwordx4 {vr(EP,4)}, v2, s[16:19], s28 offen")
            k(f"buffer_load_dwordx4 {vr(EP+4,4)}, v2, s[16:19], s28 offen offset:1024")
            k("v_lshlrev_b32 v5, 3, v4")
            k("s_lshl_b32 s28, s21, 7")
            k("s_lshl_b32 s26, s24, 6")
            k("s_add_u32 s28, s28, s26")
            for rr in range(4):
                k(f"buffer_load_dwordx2 {vr(EP+8+2*rr,2)}, v5, s[12:15], s28 offen offset:{rr*16}")
    def epilogue(k, cfg):
        A0 = cfg["ACC"]; T = 112; PK = 116
        k("s_waitcnt vmcnt(0)")
        k("s_nop 7")
        if kind == "wo":
            for r in range(8):
                d = EP + r
                k(f"v_lshlrev_b32 v{T}, 16, v{d}")
                k(f"v_and_b32 v{T+1}, 0xffff0000, v{d}")
                k(f"v_add_f32 v{A0+2*r}, v{A0+2*r}, v{T}")
                k(f"v_add_f32 v{A0+2*r+1}, v{A0+2*r+1}, v{T+1}")
            for r in range(8):
                k(f"v_cvt_pk_bf16_f32 v{PK+r}, v{A0+2*r}, v{A0+2*r+1}")
            k("s_lshl_b32 s28, s27, 15")
            k("s_lshl_b32 s26, s21, 12")
            k("s_add_u32 s28, s28, s26")
            k("s_lshl_b32 s26, s24, 11")
            k("s_add_u32 s28, s28, s26")
            k(f"s_add_u32 s28, s28, {WS_H}")
            k(f"buffer_store_dwordx4 {vr(PK,4)}, v2, s[16:19], s28 offen")
            k(f"buffer_store_dwordx4 {vr(PK+4,4)}, v2, s[16:19], s28 offen offset:1024")
            k(f"v_add_f32 v{T}, v{A0}, v{A0+1}")
            k(f"v_mul_f32 v{T+1}, v{A0}, v{A0}")
            k(f"v_fmac_f32 v{T+1}, v{A0+1}, v{A0+1}")
            k(f"v_add_f32 v{T+2}, v{A0+2}, v{A0+3}")
            k(f"v_mul_f32 v{T+3}, v{A0+2}, v{A0+2}")
            k(f"v_fmac_f32 v{T+3}, v{A0+3}, v{A0+3}")
            for r in range(4, 16, 2):
                k(f"v_add_f32 v{T+(r&2)}, v{T+(r&2)}, v{A0+r}")
                k(f"v_fmac_f32 v{T+1+(r&2)}, v{A0+r}, v{A0+r}")
                k(f"v_add_f32 v{T+(r&2)}, v{T+(r&2)}, v{A0+r+1}")
                k(f"v_fmac_f32 v{T+1+(r&2)}, v{A0+r+1}, v{A0+r+1}")
            k(f"v_add_f32 v{T}, v{T}, v{T+2}")
            k(f"v_add_f32 v{T+1}, v{T+1}, v{T+3}")
            k(f"v_mov_b32 v{T+2}, v{T}")
            k(f"v_mov_b32 v{T+3}, v{T+1}")
            k("v_lshlrev_b32 v5, 7, v3")
            k("s_lshl_b32 s28, s27, 12")
            k(f"v_permlane32_swap_b32 v{T}, v{T+2}")
            k(f"v_permlane32_swap_b32 v{T+1}, v{T+3}")
            k("s_lshl_b32 s26, s21, 4")
            k("s_add_u32 s28, s28, s26")
            k(f"v_add_f32 v{T}, v{T}, v{T+2}")
            k(f"v_add_f32 v{T+1}, v{T+1}, v{T+3}")
            k("s_lshl_b32 s26, s24, 3")
            k("s_add_u32 s28, s28, s26")
            k(f"s_add_u32 s28, s28, {WS_ST}")
            k("s_mov_b32 exec_hi, 0")
            k(f"buffer_store_dwordx2 v[{T}:{T+1}], v5, s[16:19], s28 offen")
        else:
            for r in range(8):
                k(f"v_lshlrev_b32 v{T}, 16, v{EP+r}")
                k(f"v_and_b32 v{T+1}, 0xffff0000, v{EP+r}")
                k(f"v_lshlrev_b32 v{T+2}, 16, v{EP+8+r}")
                k(f"v_and_b32 v{T+3}, 0xffff0000, v{EP+8+r}")
                k(f"v_add_f32 v{A0+2*r}, v{A0+2*r}, v{T+2}")
                k(f"v_add_f32 v{A0+2*r+1}, v{A0+2*r+1}, v{T+3}")
                k(f"v_add_f32 v{A0+2*r}, v{A0+2*r}, v{T}")
                k(f"v_add_f32 v{A0+2*r+1}, v{A0+2*r+1}, v{T+1}")
            for r in range(8):
                k(f"v_cvt_pk_bf16_f32 v{PK+r}, v{A0+2*r}, v{A0+2*r+1}")
            k("v_lshlrev_b32 v5, 10, v3")
            k("v_lshl_add_u32 v5, v4, 4, v5")
            for pr in range(2):
                k(f"v_permlane32_swap_b32 v{PK+4*pr}, v{PK+2+4*pr}")
                k(f"v_permlane32_swap_b32 v{PK+1+4*pr}, v{PK+3+4*pr}")
            k("s_lshl_b32 s28, s27, 15")
            k("s_lshl_b32 s26, s21, 7")
            k("s_add_u32 s28, s28, s26")
            k("s_lshl_b32 s26, s24, 6")
            k("s_add_u32 s28, s28, s26")
            k(f"buffer_store_dwordx4 {vr(PK,4)}, v5, s[44:47], s28 offen")
            k(f"buffer_store_dwordx4 {vr(PK+4,4)}, v5, s[44:47], s28 offen offset:32")
    hk = dict(srds_a=srds_a, srds_w=srds_w, cons_pre=cons_pre, epilogue=epilogue)
    if kind == "wo":
        XB = NS*SZ
        def prod_pre(k):
            k("v_mov_b32 v28, 0")
            k(f"v_mov_b32 v29, {XB + 128}")
            k("s_mov_b32 s42, 0")
            k("ds_write_b32 v29, v28")
            k("s_waitcnt lgkmcnt(0)")
        def prod_late(k):
            k("s_mov_b32 s50, %d" % (512*3584)); k("s_mov_b32 s51, 0x00020000")
            k("s_and_b32 s40, s2, 7")
            k("s_lshr_b32 s41, s40, 1"); k("s_mul_i32 s41, s41, 28"); k("s_add_u32 s41, s41, s25")
            k("s_and_b32 s40, s40, 1"); k("s_mul_i32 s40, s40, 112"); k("s_add_u32 s41, s41, s40")
            k("s_min_u32 s41, s41, 223")
            k("s_lshl_b32 s43, s41, 4")
            k("s_mul_i32 s44, s23, %d" % (128*3584)); k("s_add_u32 s40, s43, s44")
            k("v_mul_u32_u24 v30, 3584, v1")
            k("buffer_load_dwordx4 v[40:43], v30, s[48:51], s40 offen")
            k("s_add_u32 s40, s40, %d" % (64*3584))
            k("buffer_load_dwordx4 v[44:47], v30, s[48:51], s40 offen")
            k("s_mov_b32 s54, 3584"); k("s_mov_b32 s55, 0x00020000")
            k("v_mov_b32 v31, 0")
            k("buffer_load_dwordx4 v[72:75], v31, s[52:55], s43 offen")
        def prod_post(k):
            lab = k.label("cs")
            k("s_cmp_ge_u32 s25, 28")
            k(f"s_cbranch_scc1 {lab}")
            for q in range(4):
                k(f"v_lshlrev_b32 v{8+2*q}, 16, v{40+q}")
                k(f"v_and_b32 v{9+2*q}, 0xffff0000, v{40+q}")
                k(f"v_lshlrev_b32 v16, 16, v{44+q}")
                k(f"v_and_b32 v17, 0xffff0000, v{44+q}")
                k(f"v_add_f32 v{8+2*q}, v{8+2*q}, v16")
                k(f"v_add_f32 v{9+2*q}, v{9+2*q}, v17")
            for mode in ["row_shr:1", "row_shr:2", "row_shr:4", "row_shr:8", "row_bcast:15 row_mask:0xa", "row_bcast:31 row_mask:0xc"]:
                k("s_nop 1")
                for r in range(8):
                    m = mode if "row_mask" in mode else mode + " row_mask:0xf"
                    k(f"v_add_f32_dpp v{8+r}, v{8+r}, v{8+r} {m} bank_mask:0xf")
            k("s_lshl_b32 s40, s23, 5")
            k(f"s_add_u32 s40, s40, {XB}")
            k("v_mov_b32 v2, s40")
            k("v_mov_b32 v18, 1")
            k("s_mov_b32 exec_lo, 0")
            k("s_mov_b32 exec_hi, 0x80000000")
            k("ds_write_b128 v2, v[8:11]")
            k("ds_write_b128 v2, v[12:15] offset:16")
            k("s_waitcnt lgkmcnt(0)")
            k("ds_add_rtn_u32 v19, v29, v18")
            k("s_waitcnt lgkmcnt(0)")
            k("v_readlane_b32 s42, v19, 63")
            k("s_mov_b64 exec, -1")
            k(f"{lab}:")
        def prod_fin(k):
            lab = k.label("cs")
            k("s_cmp_lg_u32 s42, 3")
            k(f"s_cbranch_scc1 {lab}")
            k("s_mov_b32 exec_lo, 0")
            k("s_mov_b32 exec_hi, 0x80000000")
            k(f"v_mov_b32 v2, {XB}")
            for p_ in range(4):
                k(f"ds_read_b128 {vr(40+8*p_,4)}, v2 offset:{p_*32}")
                k(f"ds_read_b128 {vr(44+8*p_,4)}, v2 offset:{p_*32+16}")
            k("s_waitcnt lgkmcnt(0)")
            for r in range(8):
                k(f"v_add_f32 v{40+r}, v{40+r}, v{48+r}")
                k(f"v_add_f32 v{56+r}, v{56+r}, v{64+r}")
                k(f"v_add_f32 v{40+r}, v{40+r}, v{56+r}")
            for q in range(4):
                k(f"v_lshlrev_b32 v{16+2*q}, 16, v{72+q}")
                k(f"v_and_b32 v{17+2*q}, 0xffff0000, v{72+q}")
            k("s_lshl_b32 s40, s41, 5")
            k(f"s_add_u32 s40, s40, {WS_CS1}")
            k("s_mov_b32 s18, %d" % WS_END); k("s_mov_b32 s19, 0x00020000")
            k("v_mov_b32 v2, 0")
            k("buffer_store_dwordx4 v[40:43], v2, s[16:19], s40 offen")
            k("buffer_store_dwordx4 v[44:47], v2, s[16:19], s40 offen offset:16")
            k("s_add_u32 s40, s40, 8192")
            k("buffer_store_dwordx4 v[16:19], v2, s[16:19], s40 offen")
            k("buffer_store_dwordx4 v[20:23], v2, s[16:19], s40 offen offset:16")
            k("s_mov_b64 exec, -1")
            k(f"{lab}:")
        hk.update(prod_pre=prod_pre, prod_mid=prod_late, prod_chunk_post=lambda k, c, slot: prod_post(k) if c == 6 else None, prod_post=prod_fin)
        cfg["NMID"] = 3; cfg["MID_AT"] = 5
    gemm_core(k, name, cfg, hk)
    assert cfg["FREE"] <= EP
    k(f"{name}_done:")
    k("s_endpgm")
    return k

def colsum_chunk(k, addr_regs, slot, kstride, second, acc):
    for s_ in range(4):
        off = slot + s_*kstride
        hi = off >> 16; lo = off & 0xffff
        if lo + second > 65535: hi += 1; lo -= 65536
        assert lo >= 0
        k(f"ds_read_b64_tr_b16 {vr(32+4*s_,2)}, v{addr_regs[hi]} offset:{lo}")
        k(f"ds_read_b64_tr_b16 {vr(34+4*s_,2)}, v{addr_regs[hi]} offset:{lo+second}")
    for s_ in range(4):
        k(f"s_waitcnt lgkmcnt({2*(3-s_)})")
        for q in range(4):
            r = 32 + 4*s_ + q; t = 48 + 2*(q & 1)
            k(f"v_lshlrev_b32 v{t}, 16, v{r}")
            k(f"v_and_b32 v{t+1}, 0xffff0000, v{r}")
            k(f"v_pk_add_f32 v[{acc}:{acc+1}], v[{acc}:{acc+1}], v[{t}:{t+1}]")

def make_mlp1(ST=False):
    name = "mlp1_kernel"
    NS = 4; SZ = 32768; CSB = NS*SZ; STB = CSB + 1024
    k = Kern(name, 224, 768, CSB + 1024 + 2048, 128)
    common_head(k, name, 224, ST)
    k("s_load_dwordx2 s[16:17], s[0:1], 80")
    k("s_load_dwordx4 s[4:7], s[0:1], 32")
    k("s_load_dwordx2 s[44:45], s[0:1], 48")
    k("s_and_b32 s24, s2, 7")
    k("s_lshr_b32 s25, s2, 3")
    k("s_lshr_b32 s20, s24, 1")
    k("s_lshl_b32 s20, s20, 2")
    k("s_and_b32 s26, s25, 3")
    k("s_add_u32 s20, s20, s26")
    k("s_and_b32 s21, s24, 1")
    k("s_mul_i32 s21, s21, 7")
    k("s_lshr_b32 s29, s25, 2")
    k("s_add_u32 s21, s21, s29")
    if ROT[2] == "0": k("s_mov_b32 s29, 0")
    ids(k)
    k("s_lshl_b32 s30, s20, 17")
    k(f"s_add_u32 s30, s30, {WS_H}")
    k("s_lshl_b32 s32, s21, 8")
    cfg = dict(NTT=4, NG=4, KC=4, NCH=8, NS=NS, AHEAD=2, a_mode="frag", a_srd=16, w_srd=8, w_stride=3584, perm="pi",
               a_tile_stride=32768, wave_ntt=2, wave_ng=2, NSET=2, ST=ST)
    def srds_a(k):
        k("s_mov_b32 s18, %d" % WS_END); k("s_mov_b32 s19, 0x00020000")
    def srds_w(k):
        k.srd(8, 4, 512*3584)
    C0 = -2.0 * 1.4426950408889634 * 0.7978845608028654
    C1 = C0 * 0.044715
    def aprod_pre(k):
        k("v_and_b32 v3, 31, v1")
        k("v_lshrrev_b32 v4, 5, v1")
        k("v_lshlrev_b32 v6, 7, v3")
        k("v_lshl_add_u32 v6, v4, 6, v6")
        k("s_lshl_b32 s27, s20, 2")
        k("s_add_u32 s27, s27, s23")
        k("s_lshl_b32 s31, s27, 12")
        k(f"s_add_u32 s31, s31, {WS_ST}")
        for q in range(4):
            k(f"buffer_load_dwordx4 {vr(64+4*q,4)}, v6, s[16:19], s31 offen offset:{q*16}")
    def aprod_init(k, nafter):
        b = 64
        k(f"s_waitcnt vmcnt({nafter})")
        for q in range(1, 8):
            k(f"v_add_f32 v{b}, v{b}, v{b+2*q}")
            k(f"v_add_f32 v{b+1}, v{b+1}, v{b+1+2*q}")
        k(f"v_mov_b32 v{b+2}, v{b}")
        k(f"v_mov_b32 v{b+3}, v{b+1}")
        k("s_nop 1")
        k(f"v_permlane32_swap_b32 v{b}, v{b+2}")
        k(f"v_permlane32_swap_b32 v{b+1}, v{b+3}")
        k("s_nop 0")
        k(f"v_add_f32 v{b}, v{b}, v{b+2}")
        k(f"v_add_f32 v{b+1}, v{b+1}, v{b+3}")
        k(f"v_mul_f32 v{b}, {f32(1/512)}, v{b}")
        k(f"v_mul_f32 v{b+1}, {f32(1/512)}, v{b+1}")
        k(f"v_fma_f32 v{b+1}, -v{b}, v{b}, v{b+1}")
        k(f"v_max_f32 v{b+1}, 0, v{b+1}")
        k(f"v_add_f32 v{b+2}, {f32(1e-5)}, v{b+1}")
        k(f"v_rsq_f32 v{b+3}, v{b+2}")
        k(f"v_sub_f32 v{b+9}, 0, v{b}")
        k(f"v_mul_f32 v{b+4}, v{b+3}, v{b+3}")
        k(f"v_mul_f32 v{b+4}, v{b+4}, v{b+1}")
        k(f"v_add_f32 v{b+4}, {f32(1e-5)}, v{b+4}")
        k(f"v_rsq_f32 v{b+4}, v{b+4}")
        k("s_nop 0")
        k(f"v_mul_f32 v{b+5}, v{b+3}, v{b+4}")
        k(f"v_rcp_f32 v{b+8}, v{b+5}")
        k(f"v_mul_f32 v{b+10}, {f32(C0)}, v{b+5}")
        k(f"v_mul_f32 v{b+11}, v{b+5}, v{b+5}")
        k(f"v_mul_f32 v{b+11}, v{b+11}, v{b+5}")
        k(f"v_mul_f32 v{b+11}, {f32(C1)}, v{b+11}")
        k("v_lshlrev_b32 v5, 4, v3")
        k("s_lshl_b32 s26, s23, 9")
        k(f"s_add_u32 s26, s26, {STB}")
        k("v_add_u32 v5, s26, v5")
        k(f"ds_write_b128 v5, {vr(b+8,4)}")
        k("s_waitcnt lgkmcnt(0)")
        k("s_barrier")
    def aprod_post(k):
        if os.environ.get("PFW2", "1") == "1":
            k("s_mov_b32 s46, %d" % (1792*1024)); k("s_mov_b32 s47, 0x00020000")
            k("v_lshlrev_b32 v7, 7, v1")
            k("s_lshl_b32 s26, s25, 2"); k("s_add_u32 s26, s26, s23"); k("s_lshl_b32 s26, s26, 14")
            k("buffer_load_dword v8, v7, s[44:47], s26 offen")
            k("s_add_u32 s26, s26, 8192")
            k("buffer_load_dword v8, v7, s[44:47], s26 offen")
    def prod_pre(k):
        k("v_and_b32 v9, 31, v1")
        k("v_lshlrev_b32 v11, 2, v9")
        k("s_mov_b32 s18, %d" % WS_END); k("s_mov_b32 s19, 0x00020000")
        k("s_lshl_b32 s26, s21, 9")
        k("s_lshl_b32 s27, s23, 7")
        k("s_add_u32 s26, s26, s27")
        k(f"s_add_u32 s26, s26, {WS_CS1}")
        k("buffer_load_dword v24, v11, s[16:19], s26 offen")
        k("s_add_u32 s26, s26, 8192")
        k("buffer_load_dword v20, v11, s[16:19], s26 offen")
    def prod_init(k, nafter):
        k(f"s_waitcnt vmcnt({nafter})")
        k("s_lshl_b32 s26, s23, 7")
        k(f"s_add_u32 s26, s26, {CSB}")
        k("v_add_u32 v5, s26, v11")
        k("ds_write_b32 v5, v20 offset:512")
        k("ds_write_b32 v5, v24")
        k("s_waitcnt lgkmcnt(0)")
        k("s_barrier")
    def cons_pre(k):
        k("s_and_b32 s23, s22, 2")
        k("s_and_b32 s24, s22, 1")
        k("s_lshl_b32 s24, s24, 1")
        k("v_and_b32 v3, 31, v1")
        k("v_lshrrev_b32 v4, 5, v1")
        k("v_lshlrev_b32 v2, 4, v1")
        k("s_lshl_b32 s27, s20, 2")
        k("s_add_u32 s27, s27, s23")
        k("s_waitcnt lgkmcnt(0)")
        k("s_mov_b32 s18, %d" % WS_END); k("s_mov_b32 s19, 0x00020000")
        code_prefetch(k, "mlp2_kernel", 1, 124, 80)
    def acc_init(k, cfg):
        ACC = cfg["ACC"]
        k("v_lshlrev_b32 v5, 4, v4")
        k("s_lshl_b32 s26, s24, 7")
        k(f"s_add_u32 s26, s26, {CSB}")
        k("v_add_u32 v5, s26, v5")
        k("v_lshlrev_b32 v6, 4, v3")
        k("s_lshl_b32 s26, s23, 9")
        k(f"s_add_u32 s26, s26, {STB}")
        k("v_add_u32 v6, s26, v6")
        k("s_barrier")
        F = 28
        k(f"ds_read_b128 v[8:11], v6")
        k(f"ds_read_b128 v[12:15], v6 offset:512")
        P2 = lambda b, r: vr(b+2*r, 2)
        for g in range(2):
            for rr in range(4):
                k(f"ds_read_b128 {vr(ACC+16*g+4*rr,4)}, v5 offset:{512+g*128+rr*32}")
                k(f"ds_read_b128 {vr(ACC+32+16*g+4*rr,4)}, v5 offset:{g*128+rr*32}")
        k("s_waitcnt lgkmcnt(15)")
        k("s_waitcnt lgkmcnt(8)")
        for i in range(2):
            k(f"v_mov_b32 v{F+8+4*i}, v{8+4*i}")
            k(f"v_mov_b32 v{F+9+4*i}, v{8+4*i}")
            k(f"v_mov_b32 v{F+10+4*i}, v{9+4*i}")
            k(f"v_mov_b32 v{F+11+4*i}, v{9+4*i}")
        T = F + 16
        for g in range(2):
            if g == 1: k("s_waitcnt lgkmcnt(0)")
            B = ACC + 16*g; C = ACC + 32 + 16*g
            for r in range(8): k(f"v_pk_mul_f32 {P2(T,r)}, {P2(B,r)}, {vr(F+12,2)}")
            for r in range(8): k(f"v_pk_mul_f32 {P2(B,r)}, {P2(B,r)}, {vr(F+8,2)}")
            for r in range(8): k(f"v_pk_fma_f32 {P2(B,r)}, {P2(C,r)}, {vr(F+10,2)}, {P2(B,r)}")
            for r in range(8): k(f"v_pk_fma_f32 {P2(C,r)}, {P2(C,r)}, {vr(F+14,2)}, {P2(T,r)}")
    def epilogue(k, cfg):
        ACC = cfg["ACC"]
        k(f"s_mul_i32 s30, s27, {112*1024}")
        k("s_lshl_b32 s26, s21, 13")
        k("s_add_u32 s30, s30, s26")
        k("s_lshl_b32 s26, s24, 11")
        k("s_add_u32 s30, s30, s26")
        k(f"s_add_u32 s30, s30, {WS_G}")
        for i in range(2):
            for j, src in enumerate([8+4*i, 10+4*i, 11+4*i]):
                k(f"v_mov_b32 v{16+6*i+2*j}, v{src}")
                k(f"v_mov_b32 v{17+6*i+2*j}, v{src}")
        P2 = lambda b, r: vr(b+2*r, 2)
        T = [28, 44]
        order = [(0,0), (1,0), (0,1), (1,1)]
        def stage1(n):
            i, g = order[n]; acc = ACC + 16*(i*2+g); TT = T[n & 1]; c = 16 + 6*i
            for r in range(8): k(f"v_pk_mul_f32 {P2(TT,r)}, {P2(acc,r)}, {P2(acc,r)}")
            for r in range(8): k(f"v_pk_fma_f32 {P2(TT,r)}, {P2(TT,r)}, {vr(c+4,2)}, {vr(c+2,2)}")
            for r in range(8): k(f"v_pk_mul_f32 {P2(TT,r)}, {P2(TT,r)}, {P2(acc,r)}")
        def stage2(n):
            i, g = order[n]; acc = ACC + 16*(i*2+g); TT = T[n & 1]; c = 16 + 6*i
            for r in range(16): k(f"v_exp_f32 v{TT+r}, v{TT+r}")
            for r in range(8): k(f"v_pk_fma_f32 {P2(TT,r)}, {P2(TT,r)}, {vr(c,2)}, {vr(c,2)}")
            for r in range(16): k(f"v_rcp_f32 v{TT+r}, v{TT+r}")
            for r in range(8): k(f"v_pk_mul_f32 {P2(acc,r)}, {P2(acc,r)}, {P2(TT,r)}")
            for r in range(8): k(f"v_cvt_pk_bf16_f32 v{acc+r}, v{acc+2*r}, v{acc+2*r+1}")
            k(f"s_add_u32 s26, s30, {i*112*1024 + g*2048}")
            k(f"buffer_store_dwordx4 {vr(acc,4)}, v2, s[16:19], s26 offen")
            k(f"buffer_store_dwordx4 {vr(acc+4,4)}, v2, s[16:19], s26 offen offset:1024")
        for n in range(4):
            stage1(n); stage2(n)
    gemm_core(k, name, cfg, dict(srds_a=srds_a, srds_w=srds_w, aprod_pre=aprod_pre, aprod_init=aprod_init, aprod_post=aprod_post, prod_pre=prod_pre, prod_init=prod_init,
                                 cons_pre=cons_pre, acc_init=acc_init, epilogue=epilogue))
    assert cfg["FREE"] <= 128 and cfg["ACC"] == 60
    k(f"{name}_done:")
    k("s_endpgm")
    return k

def make_qkv(ST=False):
    name = "qkv_kernel"
    NS = 5; SZ = 16384 + 12288
    SCR = NS*SZ; CSB = SCR + 16384; STB = CSB + 512
    ONES = 10; CSA = 112
    k = Kern(name, 256, 1024, 163840, 128)
    common_head(k, name, 256, ST)
    k("s_load_dwordx4 s[4:7], s[0:1], 0")
    k("s_load_dwordx2 s[16:17], s[0:1], 80")
    k("s_and_b32 s24, s2, 7")
    k("s_lshr_b32 s25, s2, 3")
    k("s_lshr_b32 s20, s24, 1")
    k("s_lshl_b32 s20, s20, 2")
    k("s_and_b32 s26, s25, 3")
    k("s_add_u32 s20, s20, s26")
    k("s_and_b32 s21, s24, 1")
    k("s_lshl_b32 s21, s21, 3")
    k("s_lshr_b32 s27, s25, 2")
    k("s_add_u32 s21, s21, s27")
    k("s_lshl_b32 s26, s26, 1")
    k("s_add_u32 s29, s26, s27")
    k("s_and_b32 s29, s29, 7")
    if ROT[0] == "0": k("s_mov_b32 s29, 0")
    ids(k)
    k("s_lshl_b32 s30, s20, 17")
    k("s_mul_i32 s32, s21, 192")
    cfg = dict(NTT=4, NG=3, KC=4, NCH=8, NS=NS, AHEAD=3, a_mode="rows", a_srd=8, w_srd=12, w_stride=3072, perm="nat",
               wave_ntt=1, wave_ng=3, NSET=2, ST=ST, NVAR=3)
    def srds_a(k):
        k.srd(8, 4, 2048*1024)
    def srds_w(k):
        k.srd(12, 6, 512*3072)
    def helper_pre(k):
        code_prefetch(k, "att_kernel", 2, 100, 80)
        if os.environ.get("TLB", "0") == "1":
            lab = k.label("tlb")
            k("s_cmp_lg_u32 s25, 0")
            k(f"s_cbranch_scc1 {lab}")
            k("s_cmp_lg_u32 s23, 3")
            k(f"s_cbranch_scc1 {lab}")
            k("s_load_dwordx4 s[40:43], s[0:1], 16")
            k("s_load_dwordx8 s[44:51], s[0:1], 32")
            k("s_load_dwordx2 s[52:53], s[0:1], 64")
            k("s_waitcnt lgkmcnt(0)")
            k("s_mov_b32 s18, %d" % WS_END); k("s_mov_b32 s19, 0x00020000")
            k("v_lshlrev_b32 v100, 21, v1")
            k("buffer_load_dword v101, v100, s[16:19], 0 offen")
            k("v_mov_b32 v100, 0")
            for base, size in [(40, 512*1024), (44, 512*3584), (46, 3584), (48, 1792*1024), (50, 1024), (52, 2048*1024)]:
                k.srd(56, base, size)
                k("buffer_load_dword v101, v100, s[56:59], 0 offen")
            k(f"{lab}:")
        if os.environ.get("TOUCH", "0") == "1":
            k("s_waitcnt lgkmcnt(0)")
            k.srd(8, 4, 2048*1024)
            k.srd(12, 6, 512*3072)
            k("s_and_b32 s40, s25, 3")
            k("s_lshr_b32 s41, s25, 2")
            lab = k.label("t"); lab2 = k.label("t")
            k("s_cmp_ge_u32 s23, 2")
            k(f"s_cbranch_scc1 {lab}")
            k("v_lshlrev_b32 v40, 7, v1")
            k("s_lshl_b32 s42, s41, 14"); k("s_lshl_b32 s43, s23, 13"); k("s_add_u32 s42, s42, s43"); k("s_add_u32 s42, s42, s30")
            k("buffer_load_dword v41, v40, s[8:11], s42 offen")
            k(f"{lab}:")
            k("v_lshrrev_b32 v40, 1, v1")
            k("v_mul_u32_u24 v40, 3072, v40")
            k("v_and_b32 v42, 1, v1")
            k("v_lshl_add_u32 v40, v42, 7, v40")
            k("s_lshl_b32 s42, s40, 7"); k("s_lshl_b32 s43, s23, 5"); k("s_add_u32 s42, s42, s43"); k("s_mul_i32 s42, s42, 3072"); k("s_add_u32 s42, s42, s32")
            k("buffer_load_dword v41, v40, s[12:15], s42 offen")
        k("v_lshrrev_b32 v4, 5, v1")
        k("v_and_b32 v5, 31, v1")
        k("v_bfe_u32 v6, v1, 1, 3")
        k("v_xor_b32 v6, v6, v4")
        k("v_lshlrev_b32 v6, 4, v6")
        k("v_lshl_add_u32 v6, v5, 7, v6")
        k("s_lshl_b32 s26, s23, 12")
        k("v_add_u32 v20, s26, v6")
        for s_ in range(1, 4): k(f"v_xor_b32 v{20+s_}, {s_*32}, v20")
        for s_ in range(4): k(f"v_add_u32 v{24+s_}, 0x10000, v{20+s_}")
        for r in range(28, 32): k(f"v_mov_b32 v{r}, 0")
    def stat_ops(k, base):
        for s_ in range(4):
            for q in range(4):
                r = base + 4*s_ + q
                t = 64 + 2*(q & 1)
                k(f"v_lshlrev_b32 v{t}, 16, v{r}")
                k(f"v_and_b32 v{t+1}, 0xffff0000, v{r}")
                k(f"v_add_f32 v28, v28, v{t}")
                k(f"v_add_f32 v29, v29, v{t+1}")
                k(f"v_fmac_f32 v30, v{t}, v{t}")
                k(f"v_fmac_f32 v31, v{t+1}, v{t+1}")
    def helper_chunk(k, c, slot):
        base = 32 + 16*(c & 1)
        for s_ in range(4):
            if slot >= 65536: k(f"ds_read_b128 {vr(base+4*s_,4)}, v{24+s_} offset:{slot-65536}")
            else: k(f"ds_read_b128 {vr(base+4*s_,4)}, v{20+s_} offset:{slot}")
        if c > 0: stat_ops(k, 32 + 16*((c-1) & 1))
        k("s_waitcnt lgkmcnt(0)")
        if c == 7: stat_ops(k, base)
    def helper_post(k):
        k("v_add_f32 v28, v28, v29")
        k("v_add_f32 v30, v30, v31")
        k("v_mov_b32 v29, v28")
        k("v_mov_b32 v31, v30")
        k("s_nop 1")
        k("v_permlane32_swap_b32 v28, v29")
        k("v_permlane32_swap_b32 v30, v31")
        k("s_nop 0")
        k("v_add_f32 v28, v28, v29")
        k("v_add_f32 v30, v30, v31")
        k(f"v_mul_f32 v28, {f32(1/512)}, v28")
        k(f"v_mul_f32 v30, {f32(1/512)}, v30")
        k("v_fma_f32 v30, -v28, v28, v30")
        k("v_max_f32 v30, 0, v30")
        k(f"v_add_f32 v30, {f32(1e-5)}, v30")
        k("v_rsq_f32 v30, v30")
        k("v_lshlrev_b32 v5, 3, v1")
        k("v_mul_f32 v31, v28, v30")
        k("v_sub_f32 v31, 0, v31")
        k("s_lshl_b32 s26, s23, 9")
        k(f"s_add_u32 s26, s26, {STB}")
        k("v_add_u32 v5, s26, v5")
        k("ds_write_b64 v5, v[30:31]")
        k("s_waitcnt lgkmcnt(0)")
        k("s_barrier")
    def cons_pre(k):
        k("s_mov_b32 s23, s22")
        k("s_mov_b32 s24, 0")
        k("v_and_b32 v3, 31, v1")
        k("v_lshrrev_b32 v4, 5, v1")
        k("v_lshlrev_b32 v2, 4, v1")
        for r in range(4): k(f"v_mov_b32 v{ONES+r}, 0x3f803f80")
        for r in range(16): k(f"v_mov_b32 v{CSA+r}, 0")
        k("s_min_u32 s36, s22, 2")
        k("s_waitcnt lgkmcnt(0)")
        k("s_mov_b32 s18, %d" % (6 << 20)); k("s_mov_b32 s19, 0x00020000")
    def after_step(k, s_, fwf):
        k(f"v_mfma_f32_32x32x16_bf16 {vr(CSA,16)}, {vr(fwf(cfg['VAR']),4)}, {vr(ONES,4)}, {vr(CSA,16)}")
    def epilogue(k, cfg):
        ACC = cfg["ACC"]
        k("v_lshlrev_b32 v5, 4, v4")
        k("s_lshl_b32 s26, s36, 7")
        k(f"s_add_u32 s26, s26, {CSB}")
        k("v_add_u32 v11, s26, v5")
        k("s_mov_b32 exec_lo, 1")
        k("s_mov_b32 exec_hi, 1")
        k("s_nop 4")
        for rr in range(4):
            k(f"ds_write_b128 v11, {vr(CSA+4*rr,4)} offset:{rr*32}")
        k("s_mov_b64 exec, -1")
        k("s_lshl_b32 s27, s20, 2")
        k("s_add_u32 s27, s27, s22")
        k("s_lshl_b32 s27, s27, 10")
        k("s_mul_i32 s28, s21, 3")
        QS = 0.25 * 1.4426950408889634
        k("s_lshl_b32 s31, s22, 13")
        k("v_mul_u32_u24 v6, 72, v3")
        k("v_lshl_add_u32 v6, v4, 3, v6")
        k("v_add_u32 v6, s31, v6")
        k("v_bfe_u32 v7, v1, 2, 2")
        k("v_lshl_add_u32 v8, v4, 2, v7")
        k("v_mul_u32_u24 v8, 72, v8")
        k("v_bfe_u32 v7, v1, 4, 1")
        k("v_lshl_add_u32 v8, v7, 5, v8")
        k("v_and_b32 v7, 3, v1")
        k("v_lshl_add_u32 v8, v7, 3, v8")
        k("v_add_u32 v8, s31, v8")
        k("v_bfe_u32 v9, v1, 4, 1")
        k("v_lshlrev_b32 v9, 16, v9")
        k("v_lshl_add_u32 v9, v4, 8, v9")
        k("v_and_b32 v7, 15, v1")
        k("v_lshl_add_u32 v9, v7, 4, v9")
        k("v_lshlrev_b32 v5, 4, v4")
        k(f"v_add_u32 v5, {CSB}, v5")
        k("v_lshlrev_b32 v10, 3, v1")
        k("s_lshl_b32 s26, s22, 9")
        k(f"s_add_u32 s26, s26, {STB}")
        k("v_add_u32 v10, s26, v10")
        k("s_waitcnt lgkmcnt(0)")
        k("s_barrier")
        k("ds_read_b64 v[12:13], v10")
        CSR = [16, 32, 48]
        for g in range(3):
            for rr in range(4):
                k(f"ds_read_b128 {vr(CSR[g]+4*rr,4)}, v5 offset:{g*128+rr*32}")
        P2 = lambda b, r: vr(b+2*r, 2)
        for g in range(3):
            acc = ACC + 16*g; cs = CSR[g]
            lq = k.label("q"); lv = k.label("v"); le = k.label("e")
            k(f"s_add_u32 s33, s28, {g}")
            k(f"s_waitcnt lgkmcnt({8-4*g})")
            k("v_mov_b32 v114, v12")
            k("v_mov_b32 v116, v13")
            k("s_cmp_ge_u32 s33, 16")
            k(f"s_cbranch_scc1 {lq}")
            k(f"v_mul_f32 v114, {f32(QS)}, v114")
            k(f"v_mul_f32 v116, {f32(QS)}, v116")
            k(f"{lq}:")
            k("v_mov_b32 v115, v114")
            k("v_mov_b32 v117, v116")
            for r in range(8): k(f"v_pk_mul_f32 {P2(cs,r)}, {P2(cs,r)}, v[116:117]")
            for r in range(8): k(f"v_pk_fma_f32 {P2(acc,r)}, {P2(acc,r)}, v[114:115], {P2(cs,r)}")
            for r in range(8): k(f"v_cvt_pk_bf16_f32 v{acc+r}, v{acc+2*r}, v{acc+2*r+1}")
            k("s_lshr_b32 s34, s33, 4")
            k("s_lshl_b32 s34, s34, 21")
            k("s_and_b32 s35, s33, 15")
            k("s_lshl_b32 s35, s35, 17")
            k("s_add_u32 s34, s34, s35")
            k("s_add_u32 s34, s34, s27")
            k(f"s_mov_b32 s{40+g}, s34")
            k("s_cmp_ge_u32 s33, 32")
            k(f"s_cbranch_scc1 {lv}")
            k(f"buffer_store_dwordx4 {vr(acc,4)}, v2, s[16:19], s34 offen")
            k("s_add_u32 s34, s34, 65536")
            k(f"buffer_store_dwordx4 {vr(acc+4,4)}, v2, s[16:19], s34 offen")
            k(f"s_branch {le}")
            k(f"{lv}:")
            for rr in range(4):
                k(f"ds_write_b64 v6, {vr(acc+2*rr,2)} offset:{g*2304+rr*16}")
            k(f"{le}:")
        lend = k.label("ve")
        k("s_add_u32 s33, s28, 2")
        k("s_cmp_lt_u32 s33, 32")
        k(f"s_cbranch_scc1 {lend}")
        k("s_waitcnt lgkmcnt(0)")
        for g in range(3):
            acc = ACC + 16*g
            for j in range(2):
                k(f"ds_read_b64_tr_b16 {vr(acc+8+4*j,2)}, v8 offset:{g*2304+j*16*72}")
                k(f"ds_read_b64_tr_b16 {vr(acc+8+4*j+2,2)}, v8 offset:{g*2304+j*16*72+8*72}")
        for g in range(3):
            acc = ACC + 16*g
            ls = k.label("vs")
            k(f"s_waitcnt lgkmcnt({8-4*g})")
            k(f"s_add_u32 s33, s28, {g}")
            k("s_cmp_lt_u32 s33, 32")
            k(f"s_cbranch_scc1 {ls}")
            k(f"buffer_store_dwordx4 {vr(acc+8,4)}, v9, s[16:19], s{40+g} offen")
            k(f"buffer_store_dwordx4 {vr(acc+12,4)}, v9, s[16:19], s{40+g} offen offset:512")
            k(f"{ls}:")
        k(f"{lend}:")
    gemm_core(k, name, cfg, dict(srds_a=srds_a, srds_w=srds_w,
                                 helper_pre=helper_pre, helper_chunk=helper_chunk, helper_post=helper_post,
                                 cons_pre=cons_pre, pre_step=after_step, epilogue=epilogue))
    assert cfg["FREE"] <= 112 and cfg["ACC"] == 64
    k(f"{name}_done:")
    k("s_endpgm")
    return k
```

```python
from dsl import *
from gemm import gemm_core
import os
ROT = os.environ.get("ROT", "0010")
AH = os.environ.get("AH", "2424")

def common_head(k, name, nwg, ST):
    k(f"s_cmp_ge_u32 s2, {nwg}")
    k(f"s_cbranch_scc1 {name}_done")
    if ST: stamp_rt(k, 0)
    stamp(k, 1, ST)

def ids(k):
    k("v_lshrrev_b32 v2, 6, v0")
    k("v_and_b32 v1, 63, v0")
    k("v_readfirstlane_b32 s22, v2")
    if os.environ.get("WREMAP", "1") == "1":
        k("s_nop 3")
        k("s_add_u32 s36, s22, 4")
        k("s_sub_u32 s37, s22, 8")
        k("s_cmp_lt_u32 s22, 8")
        k("s_cselect_b32 s36, s36, s37")
        k("s_cmp_ge_u32 s22, 12")
        k("s_cselect_b32 s22, s22, s36")

def make_g64(kind, ST=False):
    name = kind + "_kernel"
    KS = 32 if kind == "wo" else 112
    NCH = KS // 4
    NS = 8
    SZ = 16384
    k = Kern(name, 256, 768, NS*SZ + 256, 128)
    A_WS = WS_O if kind == "wo" else WS_G
    common_head(k, name, 256, ST)
    k("s_load_dwordx2 s[16:17], s[0:1], 80")
    if kind == "wo":
        k("s_load_dwordx2 s[4:5], s[0:1], 16")
        k("s_load_dwordx2 s[6:7], s[0:1], 0")
        k("s_load_dwordx2 s[48:49], s[0:1], 32")
        k("s_load_dwordx2 s[52:53], s[0:1], 40")
    else:
        k("s_load_dwordx2 s[4:5], s[0:1], 48")
        k("s_load_dwordx4 s[40:43], s[0:1], 56")
    k("s_and_b32 s24, s2, 7")
    k("s_lshr_b32 s25, s2, 3")
    k("s_lshl_b32 s20, s24, 2")
    k("s_and_b32 s26, s25, 3")
    k("s_add_u32 s20, s20, s26")
    k("s_lshr_b32 s21, s25, 2")
    ids(k)
    k(f"s_mul_i32 s29, s21, {NCH}")
    k("s_lshr_b32 s29, s29, 3")
    if ROT[1 if kind == "wo" else 3] == "0": k("s_mov_b32 s29, 0")
    k(f"s_mul_i32 s30, s20, {2*KS*1024}")
    k(f"s_add_u32 s30, s30, {A_WS}")
    k("s_lshl_b32 s32, s21, 7")
    cfg = dict(NTT=2, NG=2, KC=4, NCH=NCH, NS=NS, AHEAD=int(AH[1 if kind == "wo" else 3]), a_mode="frag", a_srd=16, w_srd=8, w_stride=1024, perm="pi",
               a_tile_stride=KS*1024, wave_ntt=1, wave_ng=1, NSET=4, ST=ST)
    def srds_a(k):
        k("s_mov_b32 s18, %d" % WS_END); k("s_mov_b32 s19, 0x00020000")
    def srds_w(k):
        k.srd(8, 4, KS*16*1024)
    EP = 96
    def cons_pre(k):
        k("s_lshr_b32 s23, s22, 1")
        k("s_and_b32 s24, s22, 1")
        k("v_and_b32 v3, 31, v1")
        k("v_lshrrev_b32 v4, 5, v1")
        k("v_lshlrev_b32 v2, 4, v1")
        k("s_lshl_b32 s27, s20, 1")
        k("s_add_u32 s27, s27, s23")
        k("s_waitcnt lgkmcnt(0)")
        k("s_mov_b32 s18, %d" % WS_END); k("s_mov_b32 s19, 0x00020000")
        if kind == "wo": code_prefetch(k, "mlp1_kernel", 1, 120, 80, wave_val=0)
        if os.environ.get("TOUCHA", "0") == "1":
            SH = 2*KS*1024//8
            k("v_lshlrev_b32 v9, 7, v1")
            k(f"s_mul_i32 s26, s21, {SH}")
            k(f"s_mul_i32 s28, s22, {SH//4}")
            k("s_add_u32 s26, s26, s28")
            k("s_add_u32 s26, s26, s30")
            nl = SH//4//128
            if nl < 64:
                k(f"v_min_u32 v9, {(nl-1)*128}, v9")
            k("buffer_load_dword v10, v9, s[16:19], s26 offen")
        if kind == "wo":
            k.srd(12, 6, 2048*1024)
            k("v_lshlrev_b32 v5, 10, v3")
            k("v_lshl_add_u32 v5, v4, 3, v5")
            k("s_lshl_b32 s28, s27, 15")
            k("s_lshl_b32 s26, s21, 7")
            k("s_add_u32 s28, s28, s26")
            k("s_lshl_b32 s26, s24, 6")
            k("s_add_u32 s28, s28, s26")
            for rr in range(4):
                k(f"buffer_load_dwordx2 {vr(EP+2*rr,2)}, v5, s[12:15], s28 offen offset:{rr*16}")
        else:
            k.srd(12, 40, 1024)
            k.srd(44, 42, 2048*1024)
            k("s_lshl_b32 s28, s27, 15")
            k("s_lshl_b32 s26, s21, 12")
            k("s_add_u32 s28, s28, s26")
            k("s_lshl_b32 s26, s24, 11")
            k("s_add_u32 s28, s28, s26")
            k(f"s_add_u32 s28, s28, {WS_H}")
            k(f"buffer_load_dwordx4 {vr(EP,4)}, v2, s[16:19], s28 offen")
            k(f"buffer_load_dwordx4 {vr(EP+4,4)}, v2, s[16:19], s28 offen offset:1024")
            k("v_lshlrev_b32 v5, 3, v4")
            k("s_lshl_b32 s28, s21, 7")
            k("s_lshl_b32 s26, s24, 6")
            k("s_add_u32 s28, s28, s26")
            for rr in range(4):
                k(f"buffer_load_dwordx2 {vr(EP+8+2*rr,2)}, v5, s[12:15], s28 offen offset:{rr*16}")
    def epilogue(k, cfg):
        A0 = cfg["ACC"]; T = 112; PK = 116
        k("s_waitcnt vmcnt(0)")
        k("s_nop 11")
        if kind == "wo":
            for r in range(8):
                d = EP + r
                k(f"v_lshlrev_b32 v{T}, 16, v{d}")
                k(f"v_and_b32 v{T+1}, 0xffff0000, v{d}")
                k(f"v_add_f32 v{A0+2*r}, v{A0+2*r}, v{T}")
                k(f"v_add_f32 v{A0+2*r+1}, v{A0+2*r+1}, v{T+1}")
            for r in range(8):
                k(f"v_cvt_pk_bf16_f32 v{PK+r}, v{A0+2*r}, v{A0+2*r+1}")
            k("s_lshl_b32 s28, s27, 15")
            k("s_lshl_b32 s26, s21, 12")
            k("s_add_u32 s28, s28, s26")
            k("s_lshl_b32 s26, s24, 11")
            k("s_add_u32 s28, s28, s26")
            k(f"s_add_u32 s28, s28, {WS_H}")
            k(f"buffer_store_dwordx4 {vr(PK,4)}, v2, s[16:19], s28 offen")
            k(f"buffer_store_dwordx4 {vr(PK+4,4)}, v2, s[16:19], s28 offen offset:1024")
            k(f"v_add_f32 v{T}, v{A0}, v{A0+1}")
            k(f"v_mul_f32 v{T+1}, v{A0}, v{A0}")
            k(f"v_fmac_f32 v{T+1}, v{A0+1}, v{A0+1}")
            k(f"v_add_f32 v{T+2}, v{A0+2}, v{A0+3}")
            k(f"v_mul_f32 v{T+3}, v{A0+2}, v{A0+2}")
            k(f"v_fmac_f32 v{T+3}, v{A0+3}, v{A0+3}")
            for r in range(4, 16, 2):
                k(f"v_add_f32 v{T+(r&2)}, v{T+(r&2)}, v{A0+r}")
                k(f"v_fmac_f32 v{T+1+(r&2)}, v{A0+r}, v{A0+r}")
                k(f"v_add_f32 v{T+(r&2)}, v{T+(r&2)}, v{A0+r+1}")
                k(f"v_fmac_f32 v{T+1+(r&2)}, v{A0+r+1}, v{A0+r+1}")
            k(f"v_add_f32 v{T}, v{T}, v{T+2}")
            k(f"v_add_f32 v{T+1}, v{T+1}, v{T+3}")
            k(f"v_mov_b32 v{T+2}, v{T}")
            k(f"v_mov_b32 v{T+3}, v{T+1}")
            k("v_lshlrev_b32 v5, 7, v3")
            k("s_lshl_b32 s28, s27, 12")
            k(f"v_permlane32_swap_b32 v{T}, v{T+2}")
            k(f"v_permlane32_swap_b32 v{T+1}, v{T+3}")
            k("s_lshl_b32 s26, s21, 4")
            k("s_add_u32 s28, s28, s26")
            k(f"v_add_f32 v{T}, v{T}, v{T+2}")
            k(f"v_add_f32 v{T+1}, v{T+1}, v{T+3}")
            k("s_lshl_b32 s26, s24, 3")
            k("s_add_u32 s28, s28, s26")
            k(f"s_add_u32 s28, s28, {WS_ST}")
            k("s_mov_b32 exec_hi, 0")
            k(f"buffer_store_dwordx2 v[{T}:{T+1}], v5, s[16:19], s28 offen")
        else:
            for r in range(8):
                k(f"v_lshlrev_b32 v{T}, 16, v{EP+r}")
                k(f"v_and_b32 v{T+1}, 0xffff0000, v{EP+r}")
                k(f"v_lshlrev_b32 v{T+2}, 16, v{EP+8+r}")
                k(f"v_and_b32 v{T+3}, 0xffff0000, v{EP+8+r}")
                k(f"v_add_f32 v{A0+2*r}, v{A0+2*r}, v{T+2}")
                k(f"v_add_f32 v{A0+2*r+1}, v{A0+2*r+1}, v{T+3}")
                k(f"v_add_f32 v{A0+2*r}, v{A0+2*r}, v{T}")
                k(f"v_add_f32 v{A0+2*r+1}, v{A0+2*r+1}, v{T+1}")
            for r in range(8):
                k(f"v_cvt_pk_bf16_f32 v{PK+r}, v{A0+2*r}, v{A0+2*r+1}")
            k("v_lshlrev_b32 v5, 10, v3")
            k("v_lshl_add_u32 v5, v4, 4, v5")
            for pr in range(2):
                k(f"v_permlane32_swap_b32 v{PK+4*pr}, v{PK+2+4*pr}")
                k(f"v_permlane32_swap_b32 v{PK+1+4*pr}, v{PK+3+4*pr}")
            k("s_lshl_b32 s28, s27, 15")
            k("s_lshl_b32 s26, s21, 7")
            k("s_add_u32 s28, s28, s26")
            k("s_lshl_b32 s26, s24, 6")
            k("s_add_u32 s28, s28, s26")
            k(f"buffer_store_dwordx4 {vr(PK,4)}, v5, s[44:47], s28 offen")
            k(f"buffer_store_dwordx4 {vr(PK+4,4)}, v5, s[44:47], s28 offen offset:32")
    hk = dict(srds_a=srds_a, srds_w=srds_w, cons_pre=cons_pre, epilogue=epilogue)
    if kind == "wo":
        XB = NS*SZ
        def prod_pre(k):
            k("v_mov_b32 v28, 0")
            k(f"v_mov_b32 v29, {XB + 128}")
            k("s_mov_b32 s42, 0")
            k("ds_write_b32 v29, v28")
            k("s_waitcnt lgkmcnt(0)")
        def prod_late(k):
            k("s_mov_b32 s50, %d" % (512*3584)); k("s_mov_b32 s51, 0x00020000")
            k("s_and_b32 s40, s2, 7")
            k("s_lshr_b32 s41, s40, 1"); k("s_mul_i32 s41, s41, 28"); k("s_add_u32 s41, s41, s25")
            k("s_and_b32 s40, s40, 1"); k("s_mul_i32 s40, s40, 112"); k("s_add_u32 s41, s41, s40")
            k("s_min_u32 s41, s41, 223")
            k("s_lshl_b32 s43, s41, 4")
            k("s_mul_i32 s44, s23, %d" % (128*3584)); k("s_add_u32 s40, s43, s44")
            k("v_mul_u32_u24 v30, 3584, v1")
            k("buffer_load_dwordx4 v[40:43], v30, s[48:51], s40 offen")
            k("s_add_u32 s40, s40, %d" % (64*3584))
            k("buffer_load_dwordx4 v[44:47], v30, s[48:51], s40 offen")
            k("s_mov_b32 s54, 3584"); k("s_mov_b32 s55, 0x00020000")
            k("v_mov_b32 v31, 0")
            k("buffer_load_dwordx4 v[72:75], v31, s[52:55], s43 offen")
        def prod_post(k):
            lab = k.label("cs")
            k("s_cmp_ge_u32 s25, 28")
            k(f"s_cbranch_scc1 {lab}")
            for q in range(4):
                k(f"v_lshlrev_b32 v{8+2*q}, 16, v{40+q}")
                k(f"v_and_b32 v{9+2*q}, 0xffff0000, v{40+q}")
                k(f"v_lshlrev_b32 v16, 16, v{44+q}")
                k(f"v_and_b32 v17, 0xffff0000, v{44+q}")
                k(f"v_add_f32 v{8+2*q}, v{8+2*q}, v16")
                k(f"v_add_f32 v{9+2*q}, v{9+2*q}, v17")
            for mode in ["row_shr:1", "row_shr:2", "row_shr:4", "row_shr:8", "row_bcast:15 row_mask:0xa", "row_bcast:31 row_mask:0xc"]:
                k("s_nop 1")
                for r in range(8):
                    m = mode if "row_mask" in mode else mode + " row_mask:0xf"
                    k(f"v_add_f32_dpp v{8+r}, v{8+r}, v{8+r} {m} bank_mask:0xf")
            k("s_lshl_b32 s40, s23, 5")
            k(f"s_add_u32 s40, s40, {XB}")
            k("v_mov_b32 v2, s40")
            k("v_mov_b32 v18, 1")
            k("s_mov_b32 exec_lo, 0")
            k("s_mov_b32 exec_hi, 0x80000000")
            k("ds_write_b128 v2, v[8:11]")
            k("ds_write_b128 v2, v[12:15] offset:16")
            k("s_waitcnt lgkmcnt(0)")
            k("ds_add_rtn_u32 v19, v29, v18")
            k("s_waitcnt lgkmcnt(0)")
            k("v_readlane_b32 s42, v19, 63")
            k("s_mov_b64 exec, -1")
            k(f"{lab}:")
        def prod_fin(k):
            lab = k.label("cs")
            k("s_cmp_lg_u32 s42, 3")
            k(f"s_cbranch_scc1 {lab}")
            k("s_mov_b32 exec_lo, 0")
            k("s_mov_b32 exec_hi, 0x80000000")
            k(f"v_mov_b32 v2, {XB}")
            for p_ in range(4):
                k(f"ds_read_b128 {vr(40+8*p_,4)}, v2 offset:{p_*32}")
                k(f"ds_read_b128 {vr(44+8*p_,4)}, v2 offset:{p_*32+16}")
            k("s_waitcnt lgkmcnt(0)")
            for r in range(8):
                k(f"v_add_f32 v{40+r}, v{40+r}, v{48+r}")
                k(f"v_add_f32 v{56+r}, v{56+r}, v{64+r}")
                k(f"v_add_f32 v{40+r}, v{40+r}, v{56+r}")
            for q in range(4):
                k(f"v_lshlrev_b32 v{16+2*q}, 16, v{72+q}")
                k(f"v_and_b32 v{17+2*q}, 0xffff0000, v{72+q}")
            k("s_lshl_b32 s40, s41, 5")
            k(f"s_add_u32 s40, s40, {WS_CS1}")
            k("s_mov_b32 s18, %d" % WS_END); k("s_mov_b32 s19, 0x00020000")
            k("v_mov_b32 v2, 0")
            k("buffer_store_dwordx4 v[40:43], v2, s[16:19], s40 offen")
            k("buffer_store_dwordx4 v[44:47], v2, s[16:19], s40 offen offset:16")
            k("s_add_u32 s40, s40, 8192")
            k("buffer_store_dwordx4 v[16:19], v2, s[16:19], s40 offen")
            k("buffer_store_dwordx4 v[20:23], v2, s[16:19], s40 offen offset:16")
            k("s_mov_b64 exec, -1")
            k(f"{lab}:")
        hk.update(prod_pre=prod_pre, prod_mid=prod_late, prod_chunk_post=lambda k, c, slot: prod_post(k) if c == 6 else None, prod_post=prod_fin)
        cfg["NMID"] = 3; cfg["MID_AT"] = 5
    gemm_core(k, name, cfg, hk)
    assert cfg["FREE"] <= EP
    k(f"{name}_done:")
    k("s_endpgm")
    return k

def colsum_chunk(k, addr_regs, slot, kstride, second, acc):
    for s_ in range(4):
        off = slot + s_*kstride
        hi = off >> 16; lo = off & 0xffff
        if lo + second > 65535: hi += 1; lo -= 65536
        assert lo >= 0
        k(f"ds_read_b64_tr_b16 {vr(32+4*s_,2)}, v{addr_regs[hi]} offset:{lo}")
        k(f"ds_read_b64_tr_b16 {vr(34+4*s_,2)}, v{addr_regs[hi]} offset:{lo+second}")
    for s_ in range(4):
        k(f"s_waitcnt lgkmcnt({2*(3-s_)})")
        for q in range(4):
            r = 32 + 4*s_ + q; t = 48 + 2*(q & 1)
            k(f"v_lshlrev_b32 v{t}, 16, v{r}")
            k(f"v_and_b32 v{t+1}, 0xffff0000, v{r}")
            k(f"v_pk_add_f32 v[{acc}:{acc+1}], v[{acc}:{acc+1}], v[{t}:{t+1}]")

def make_mlp1(ST=False):
    name = "mlp1_kernel"
    NS = 4; SZ = 32768; CSB = NS*SZ; STB = CSB + 1024
    k = Kern(name, 224, 768, CSB + 1024 + 2048, 128)
    common_head(k, name, 224, ST)
    k("s_load_dwordx2 s[16:17], s[0:1], 80")
    k("s_load_dwordx4 s[4:7], s[0:1], 32")
    k("s_load_dwordx2 s[44:45], s[0:1], 48")
    k("s_and_b32 s24, s2, 7")
    k("s_lshr_b32 s25, s2, 3")
    k("s_lshr_b32 s20, s24, 1")
    k("s_lshl_b32 s20, s20, 2")
    k("s_and_b32 s26, s25, 3")
    k("s_add_u32 s20, s20, s26")
    k("s_and_b32 s21, s24, 1")
    k("s_mul_i32 s21, s21, 7")
    k("s_lshr_b32 s29, s25, 2")
    k("s_add_u32 s21, s21, s29")
    if ROT[2] == "0": k("s_mov_b32 s29, 0")
    ids(k)
    k("s_lshl_b32 s30, s20, 17")
    k(f"s_add_u32 s30, s30, {WS_H}")
    k("s_lshl_b32 s32, s21, 8")
    cfg = dict(NTT=4, NG=4, KC=4, NCH=8, NS=NS, AHEAD=2, a_mode="frag", a_srd=16, w_srd=8, w_stride=3584, perm="pi",
               a_tile_stride=32768, wave_ntt=2, wave_ng=2, NSET=2, ST=ST)
    def srds_a(k):
        k("s_mov_b32 s18, %d" % WS_END); k("s_mov_b32 s19, 0x00020000")
    def srds_w(k):
        k.srd(8, 4, 512*3584)
    C0 = -2.0 * 1.4426950408889634 * 0.7978845608028654
    C1 = C0 * 0.044715
    def aprod_pre(k):
        k("v_and_b32 v3, 31, v1")
        k("v_lshrrev_b32 v4, 5, v1")
        k("v_lshlrev_b32 v6, 7, v3")
        k("v_lshl_add_u32 v6, v4, 6, v6")
        k("s_lshl_b32 s27, s20, 2")
        k("s_add_u32 s27, s27, s23")
        k("s_lshl_b32 s31, s27, 12")
        k(f"s_add_u32 s31, s31, {WS_ST}")
        for q in range(4):
            k(f"buffer_load_dwordx4 {vr(64+4*q,4)}, v6, s[16:19], s31 offen offset:{q*16}")
    def aprod_init(k, nafter):
        b = 64
        k(f"s_waitcnt vmcnt({nafter})")
        for q in range(1, 8):
            k(f"v_add_f32 v{b}, v{b}, v{b+2*q}")
            k(f"v_add_f32 v{b+1}, v{b+1}, v{b+1+2*q}")
        k(f"v_mov_b32 v{b+2}, v{b}")
        k(f"v_mov_b32 v{b+3}, v{b+1}")
        k("s_nop 1")
        k(f"v_permlane32_swap_b32 v{b}, v{b+2}")
        k(f"v_permlane32_swap_b32 v{b+1}, v{b+3}")
        k("s_nop 0")
        k(f"v_add_f32 v{b}, v{b}, v{b+2}")
        k(f"v_add_f32 v{b+1}, v{b+1}, v{b+3}")
        k(f"v_mul_f32 v{b}, {f32(1/512)}, v{b}")
        k(f"v_mul_f32 v{b+1}, {f32(1/512)}, v{b+1}")
        k(f"v_fma_f32 v{b+1}, -v{b}, v{b}, v{b+1}")
        k(f"v_max_f32 v{b+1}, 0, v{b+1}")
        k(f"v_add_f32 v{b+2}, {f32(1e-5)}, v{b+1}")
        k(f"v_rsq_f32 v{b+3}, v{b+2}")
        k(f"v_sub_f32 v{b+9}, 0, v{b}")
        k(f"v_mul_f32 v{b+4}, v{b+3}, v{b+3}")
        k(f"v_mul_f32 v{b+4}, v{b+4}, v{b+1}")
        k(f"v_add_f32 v{b+4}, {f32(1e-5)}, v{b+4}")
        k(f"v_rsq_f32 v{b+4}, v{b+4}")
        k("s_nop 0")
        k(f"v_mul_f32 v{b+5}, v{b+3}, v{b+4}")
        k(f"v_rcp_f32 v{b+8}, v{b+5}")
        k(f"v_mul_f32 v{b+10}, {f32(C0)}, v{b+5}")
        k(f"v_mul_f32 v{b+11}, v{b+5}, v{b+5}")
        k(f"v_mul_f32 v{b+11}, v{b+11}, v{b+5}")
        k(f"v_mul_f32 v{b+11}, {f32(C1)}, v{b+11}")
        k("v_lshlrev_b32 v5, 4, v3")
        k("s_lshl_b32 s26, s23, 9")
        k(f"s_add_u32 s26, s26, {STB}")
        k("v_add_u32 v5, s26, v5")
        k(f"ds_write_b128 v5, {vr(b+8,4)}")
        k("s_waitcnt lgkmcnt(0)")
        k("s_barrier")
    def aprod_post(k):
        if os.environ.get("PFW2", "1") == "1":
            k("s_mov_b32 s46, %d" % (1792*1024)); k("s_mov_b32 s47, 0x00020000")
            k("v_lshlrev_b32 v7, 7, v1")
            k("s_lshl_b32 s26, s25, 2"); k("s_add_u32 s26, s26, s23"); k("s_lshl_b32 s26, s26, 14")
            k("buffer_load_dword v8, v7, s[44:47], s26 offen")
            k("s_add_u32 s26, s26, 8192")
            k("buffer_load_dword v8, v7, s[44:47], s26 offen")
    def prod_pre(k):
        k("v_and_b32 v9, 31, v1")
        k("v_lshlrev_b32 v11, 2, v9")
        k("s_mov_b32 s18, %d" % WS_END); k("s_mov_b32 s19, 0x00020000")
        k("s_lshl_b32 s26, s21, 9")
        k("s_lshl_b32 s27, s23, 7")
        k("s_add_u32 s26, s26, s27")
        k(f"s_add_u32 s26, s26, {WS_CS1}")
        k("buffer_load_dword v24, v11, s[16:19], s26 offen")
        k("s_add_u32 s26, s26, 8192")
        k("buffer_load_dword v20, v11, s[16:19], s26 offen")
    def prod_init(k, nafter):
        k(f"s_waitcnt vmcnt({nafter})")
        k("s_lshl_b32 s26, s23, 7")
        k(f"s_add_u32 s26, s26, {CSB}")
        k("v_add_u32 v5, s26, v11")
        k("ds_write_b32 v5, v20 offset:512")
        k("ds_write_b32 v5, v24")
        k("s_waitcnt lgkmcnt(0)")
        k("s_barrier")
    def cons_pre(k):
        k("s_and_b32 s23, s22, 2")
        k("s_and_b32 s24, s22, 1")
        k("s_lshl_b32 s24, s24, 1")
        k("v_and_b32 v3, 31, v1")
        k("v_lshrrev_b32 v4, 5, v1")
        k("v_lshlrev_b32 v2, 4, v1")
        k("s_lshl_b32 s27, s20, 2")
        k("s_add_u32 s27, s27, s23")
        k("s_waitcnt lgkmcnt(0)")
        k("s_mov_b32 s18, %d" % WS_END); k("s_mov_b32 s19, 0x00020000")
        code_prefetch(k, "mlp2_kernel", 1, 124, 80, wave_val=0)
    def acc_init(k, cfg):
        ACC = cfg["ACC"]
        k("v_lshlrev_b32 v5, 4, v4")
        k("s_lshl_b32 s26, s24, 7")
        k(f"s_add_u32 s26, s26, {CSB}")
        k("v_add_u32 v5, s26, v5")
        k("v_lshlrev_b32 v6, 4, v3")
        k("s_lshl_b32 s26, s23, 9")
        k(f"s_add_u32 s26, s26, {STB}")
        k("v_add_u32 v6, s26, v6")
        k("s_barrier")
        F = 28
        k(f"ds_read_b128 v[8:11], v6")
        k(f"ds_read_b128 v[12:15], v6 offset:512")
        P2 = lambda b, r: vr(b+2*r, 2)
        for g in range(2):
            for rr in range(4):
                k(f"ds_read_b128 {vr(ACC+16*g+4*rr,4)}, v5 offset:{512+g*128+rr*32}")
                k(f"ds_read_b128 {vr(ACC+32+16*g+4*rr,4)}, v5 offset:{g*128+rr*32}")
        k("s_waitcnt lgkmcnt(15)")
        k("s_waitcnt lgkmcnt(8)")
        for i in range(2):
            k(f"v_mov_b32 v{F+8+4*i}, v{8+4*i}")
            k(f"v_mov_b32 v{F+9+4*i}, v{8+4*i}")
            k(f"v_mov_b32 v{F+10+4*i}, v{9+4*i}")
            k(f"v_mov_b32 v{F+11+4*i}, v{9+4*i}")
        T = F + 16
        for g in range(2):
            if g == 1: k("s_waitcnt lgkmcnt(0)")
            B = ACC + 16*g; C = ACC + 32 + 16*g
            for r in range(8): k(f"v_pk_mul_f32 {P2(T,r)}, {P2(B,r)}, {vr(F+12,2)}")
            for r in range(8): k(f"v_pk_mul_f32 {P2(B,r)}, {P2(B,r)}, {vr(F+8,2)}")
            for r in range(8): k(f"v_pk_fma_f32 {P2(B,r)}, {P2(C,r)}, {vr(F+10,2)}, {P2(B,r)}")
            for r in range(8): k(f"v_pk_fma_f32 {P2(C,r)}, {P2(C,r)}, {vr(F+14,2)}, {P2(T,r)}")
    def epilogue(k, cfg):
        ACC = cfg["ACC"]
        k(f"s_mul_i32 s30, s27, {112*1024}")
        k("s_lshl_b32 s26, s21, 13")
        k("s_add_u32 s30, s30, s26")
        k("s_lshl_b32 s26, s24, 11")
        k("s_add_u32 s30, s30, s26")
        k(f"s_add_u32 s30, s30, {WS_G}")
        for i in range(2):
            for j, src in enumerate([8+4*i, 10+4*i, 11+4*i]):
                k(f"v_mov_b32 v{16+6*i+2*j}, v{src}")
                k(f"v_mov_b32 v{17+6*i+2*j}, v{src}")
        P2 = lambda b, r: vr(b+2*r, 2)
        T = [28, 44]
        order = [(0,0), (1,0), (0,1), (1,1)]
        def stage1(n):
            i, g = order[n]; acc = ACC + 16*(i*2+g); TT = T[n & 1]; c = 16 + 6*i
            for r in range(8): k(f"v_pk_mul_f32 {P2(TT,r)}, {P2(acc,r)}, {P2(acc,r)}")
            for r in range(8): k(f"v_pk_fma_f32 {P2(TT,r)}, {P2(TT,r)}, {vr(c+4,2)}, {vr(c+2,2)}")
            for r in range(8): k(f"v_pk_mul_f32 {P2(TT,r)}, {P2(TT,r)}, {P2(acc,r)}")
        def stage2(n):
            i, g = order[n]; acc = ACC + 16*(i*2+g); TT = T[n & 1]; c = 16 + 6*i
            for r in range(16): k(f"v_exp_f32 v{TT+r}, v{TT+r}")
            for r in range(8): k(f"v_pk_fma_f32 {P2(TT,r)}, {P2(TT,r)}, {vr(c,2)}, {vr(c,2)}")
            for r in range(16): k(f"v_rcp_f32 v{TT+r}, v{TT+r}")
            for r in range(8): k(f"v_pk_mul_f32 {P2(acc,r)}, {P2(acc,r)}, {P2(TT,r)}")
            for r in range(8): k(f"v_cvt_pk_bf16_f32 v{acc+r}, v{acc+2*r}, v{acc+2*r+1}")
            k(f"s_add_u32 s26, s30, {i*112*1024 + g*2048}")
            k(f"buffer_store_dwordx4 {vr(acc,4)}, v2, s[16:19], s26 offen")
            k(f"buffer_store_dwordx4 {vr(acc+4,4)}, v2, s[16:19], s26 offen offset:1024")
        for n in range(4):
            stage1(n); stage2(n)
    gemm_core(k, name, cfg, dict(srds_a=srds_a, srds_w=srds_w, aprod_pre=aprod_pre, aprod_init=aprod_init, aprod_post=aprod_post, prod_pre=prod_pre, prod_init=prod_init,
                                 cons_pre=cons_pre, acc_init=acc_init, epilogue=epilogue))
    assert cfg["FREE"] <= 128 and cfg["ACC"] == 60
    k(f"{name}_done:")
    k("s_endpgm")
    return k

def make_qkv(ST=False):
    name = "qkv_kernel"
    NS = 5; SZ = 16384 + 12288
    SCR = NS*SZ; CSB = SCR + 16384; STB = CSB + 512
    ONES = 10; CSA = 112
    k = Kern(name, 256, 1024, 163840, 128)
    common_head(k, name, 256, ST)
    k("s_load_dwordx4 s[4:7], s[0:1], 0")
    k("s_load_dwordx2 s[16:17], s[0:1], 80")
    k("s_and_b32 s24, s2, 7")
    k("s_lshr_b32 s25, s2, 3")
    k("s_lshr_b32 s20, s24, 1")
    k("s_lshl_b32 s20, s20, 2")
    k("s_and_b32 s26, s25, 3")
    k("s_add_u32 s20, s20, s26")
    k("s_and_b32 s21, s24, 1")
    k("s_lshl_b32 s21, s21, 3")
    k("s_lshr_b32 s27, s25, 2")
    k("s_add_u32 s21, s21, s27")
    k("s_lshl_b32 s26, s26, 1")
    k("s_add_u32 s29, s26, s27")
    k("s_and_b32 s29, s29, 7")
    if ROT[0] == "0": k("s_mov_b32 s29, 0")
    ids(k)
    k("s_lshl_b32 s30, s20, 17")
    k("s_mul_i32 s32, s21, 192")
    cfg = dict(NTT=4, NG=3, KC=4, NCH=8, NS=NS, AHEAD=int(AH[0]), a_mode="rows", a_srd=8, w_srd=12, w_stride=3072, perm="nat",
               wave_ntt=1, wave_ng=3, NSET=2, ST=ST, NVAR=3)
    def srds_a(k):
        k.srd(8, 4, 2048*1024)
    def srds_w(k):
        k.srd(12, 6, 512*3072)
    def helper_pre(k):
        code_prefetch(k, "att_kernel", 2, 100, 80, wave_val=12)
        if os.environ.get("TLB", "0") == "1":
            lab = k.label("tlb")
            k("s_cmp_lg_u32 s25, 0")
            k(f"s_cbranch_scc1 {lab}")
            k("s_cmp_lg_u32 s23, 3")
            k(f"s_cbranch_scc1 {lab}")
            k("s_load_dwordx4 s[40:43], s[0:1], 16")
            k("s_load_dwordx8 s[44:51], s[0:1], 32")
            k("s_load_dwordx2 s[52:53], s[0:1], 64")
            k("s_waitcnt lgkmcnt(0)")
            k("s_mov_b32 s18, %d" % WS_END); k("s_mov_b32 s19, 0x00020000")
            k("v_lshlrev_b32 v100, 21, v1")
            k("buffer_load_dword v101, v100, s[16:19], 0 offen")
            k("v_mov_b32 v100, 0")
            for base, size in [(40, 512*1024), (44, 512*3584), (46, 3584), (48, 1792*1024), (50, 1024), (52, 2048*1024)]:
                k.srd(56, base, size)
                k("buffer_load_dword v101, v100, s[56:59], 0 offen")
            k(f"{lab}:")
        if os.environ.get("TOUCH", "0") == "1":
            k("s_waitcnt lgkmcnt(0)")
            k.srd(8, 4, 2048*1024)
            k.srd(12, 6, 512*3072)
            k("s_and_b32 s40, s25, 3")
            k("s_lshr_b32 s41, s25, 2")
            lab = k.label("t"); lab2 = k.label("t")
            k("s_cmp_ge_u32 s23, 2")
            k(f"s_cbranch_scc1 {lab}")
            k("v_lshlrev_b32 v40, 7, v1")
            k("s_lshl_b32 s42, s41, 14"); k("s_lshl_b32 s43, s23, 13"); k("s_add_u32 s42, s42, s43"); k("s_add_u32 s42, s42, s30")
            k("buffer_load_dword v41, v40, s[8:11], s42 offen")
            k(f"{lab}:")
            k("v_lshrrev_b32 v40, 1, v1")
            k("v_mul_u32_u24 v40, 3072, v40")
            k("v_and_b32 v42, 1, v1")
            k("v_lshl_add_u32 v40, v42, 7, v40")
            k("s_lshl_b32 s42, s40, 7"); k("s_lshl_b32 s43, s23, 5"); k("s_add_u32 s42, s42, s43"); k("s_mul_i32 s42, s42, 3072"); k("s_add_u32 s42, s42, s32")
            k("buffer_load_dword v41, v40, s[12:15], s42 offen")
        k("v_lshrrev_b32 v4, 5, v1")
        k("v_and_b32 v5, 31, v1")
        k("v_bfe_u32 v6, v1, 1, 3")
        k("v_xor_b32 v6, v6, v4")
        k("v_lshlrev_b32 v6, 4, v6")
        k("v_lshl_add_u32 v6, v5, 7, v6")
        k("s_lshl_b32 s26, s23, 12")
        k("v_add_u32 v20, s26, v6")
        for s_ in range(1, 4): k(f"v_xor_b32 v{20+s_}, {s_*32}, v20")
        for s_ in range(4): k(f"v_add_u32 v{24+s_}, 0x10000, v{20+s_}")
        for r in range(28, 32): k(f"v_mov_b32 v{r}, 0")
    def stat_ops(k, base):
        for s_ in range(4):
            for q in range(4):
                r = base + 4*s_ + q
                t = 64 + 2*(q & 1)
                k(f"v_lshlrev_b32 v{t}, 16, v{r}")
                k(f"v_and_b32 v{t+1}, 0xffff0000, v{r}")
                k(f"v_add_f32 v28, v28, v{t}")
                k(f"v_add_f32 v29, v29, v{t+1}")
                k(f"v_fmac_f32 v30, v{t}, v{t}")
                k(f"v_fmac_f32 v31, v{t+1}, v{t+1}")
    def helper_chunk(k, c, slot):
        base = 32 + 16*(c & 1)
        for s_ in range(4):
            if slot >= 65536: k(f"ds_read_b128 {vr(base+4*s_,4)}, v{24+s_} offset:{slot-65536}")
            else: k(f"ds_read_b128 {vr(base+4*s_,4)}, v{20+s_} offset:{slot}")
        if c > 0: stat_ops(k, 32 + 16*((c-1) & 1))
        k("s_waitcnt lgkmcnt(0)")
        if c == 7: stat_ops(k, base)
    def helper_post(k):
        k("v_add_f32 v28, v28, v29")
        k("v_add_f32 v30, v30, v31")
        k("v_mov_b32 v29, v28")
        k("v_mov_b32 v31, v30")
        k("s_nop 1")
        k("v_permlane32_swap_b32 v28, v29")
        k("v_permlane32_swap_b32 v30, v31")
        k("s_nop 0")
        k("v_add_f32 v28, v28, v29")
        k("v_add_f32 v30, v30, v31")
        k(f"v_mul_f32 v28, {f32(1/512)}, v28")
        k(f"v_mul_f32 v30, {f32(1/512)}, v30")
        k("v_fma_f32 v30, -v28, v28, v30")
        k("v_max_f32 v30, 0, v30")
        k(f"v_add_f32 v30, {f32(1e-5)}, v30")
        k("v_rsq_f32 v30, v30")
        k("v_lshlrev_b32 v5, 3, v1")
        k("v_mul_f32 v31, v28, v30")
        k("v_sub_f32 v31, 0, v31")
        k("s_lshl_b32 s26, s23, 9")
        k(f"s_add_u32 s26, s26, {STB}")
        k("v_add_u32 v5, s26, v5")
        k("ds_write_b64 v5, v[30:31]")
        k("s_waitcnt lgkmcnt(0)")
        k("s_barrier")
    def cons_pre(k):
        k("s_mov_b32 s23, s22")
        k("s_mov_b32 s24, 0")
        k("v_and_b32 v3, 31, v1")
        k("v_lshrrev_b32 v4, 5, v1")
        k("v_lshlrev_b32 v2, 4, v1")
        for r in range(4): k(f"v_mov_b32 v{ONES+r}, 0x3f803f80")
        for r in range(16): k(f"v_mov_b32 v{CSA+r}, 0")
        k("s_min_u32 s36, s22, 2")
        k("s_waitcnt lgkmcnt(0)")
        k("s_mov_b32 s18, %d" % (6 << 20)); k("s_mov_b32 s19, 0x00020000")
    def after_step(k, s_, fwf):
        k(f"v_mfma_f32_32x32x16_bf16 {vr(CSA,16)}, {vr(fwf(cfg['VAR']),4)}, {vr(ONES,4)}, {vr(CSA,16)}")
    def epilogue(k, cfg):
        ACC = cfg["ACC"]
        k("v_lshlrev_b32 v5, 4, v4")
        k("s_lshl_b32 s26, s36, 7")
        k(f"s_add_u32 s26, s26, {CSB}")
        k("v_add_u32 v11, s26, v5")
        k("s_mov_b32 exec_lo, 1")
        k("s_mov_b32 exec_hi, 1")
        k("s_nop 4")
        for rr in range(4):
            k(f"ds_write_b128 v11, {vr(CSA+4*rr,4)} offset:{rr*32}")
        k("s_mov_b64 exec, -1")
        k("s_lshl_b32 s27, s20, 2")
        k("s_add_u32 s27, s27, s22")
        k("s_lshl_b32 s27, s27, 10")
        k("s_mul_i32 s28, s21, 3")
        QS = 0.25 * 1.4426950408889634
        k("s_lshl_b32 s31, s22, 13")
        k("v_mul_u32_u24 v6, 72, v3")
        k("v_lshl_add_u32 v6, v4, 3, v6")
        k("v_add_u32 v6, s31, v6")
        k("v_bfe_u32 v7, v1, 2, 2")
        k("v_lshl_add_u32 v8, v4, 2, v7")
        k("v_mul_u32_u24 v8, 72, v8")
        k("v_bfe_u32 v7, v1, 4, 1")
        k("v_lshl_add_u32 v8, v7, 5, v8")
        k("v_and_b32 v7, 3, v1")
        k("v_lshl_add_u32 v8, v7, 3, v8")
        k("v_add_u32 v8, s31, v8")
        k("v_bfe_u32 v9, v1, 4, 1")
        k("v_lshlrev_b32 v9, 16, v9")
        k("v_lshl_add_u32 v9, v4, 8, v9")
        k("v_and_b32 v7, 15, v1")
        k("v_lshl_add_u32 v9, v7, 4, v9")
        k("v_lshlrev_b32 v5, 4, v4")
        k(f"v_add_u32 v5, {CSB}, v5")
        k("v_lshlrev_b32 v10, 3, v1")
        k("s_lshl_b32 s26, s22, 9")
        k(f"s_add_u32 s26, s26, {STB}")
        k("v_add_u32 v10, s26, v10")
        k("s_waitcnt lgkmcnt(0)")
        k("s_barrier")
        k("ds_read_b64 v[12:13], v10")
        CSR = [16, 32, 48]
        for g in range(3):
            for rr in range(4):
                k(f"ds_read_b128 {vr(CSR[g]+4*rr,4)}, v5 offset:{g*128+rr*32}")
        P2 = lambda b, r: vr(b+2*r, 2)
        for g in range(3):
            acc = ACC + 16*g; cs = CSR[g]
            lq = k.label("q"); lv = k.label("v"); le = k.label("e")
            k(f"s_add_u32 s33, s28, {g}")
            k(f"s_waitcnt lgkmcnt({8-4*g})")
            k("v_mov_b32 v114, v12")
            k("v_mov_b32 v116, v13")
            k("s_cmp_ge_u32 s33, 16")
            k(f"s_cbranch_scc1 {lq}")
            k(f"v_mul_f32 v114, {f32(QS)}, v114")
            k(f"v_mul_f32 v116, {f32(QS)}, v116")
            k(f"{lq}:")
            k("v_mov_b32 v115, v114")
            k("v_mov_b32 v117, v116")
            for r in range(8): k(f"v_pk_mul_f32 {P2(cs,r)}, {P2(cs,r)}, v[116:117]")
            for r in range(8): k(f"v_pk_fma_f32 {P2(acc,r)}, {P2(acc,r)}, v[114:115], {P2(cs,r)}")
            for r in range(8): k(f"v_cvt_pk_bf16_f32 v{acc+r}, v{acc+2*r}, v{acc+2*r+1}")
            k("s_lshr_b32 s34, s33, 4")
            k("s_lshl_b32 s34, s34, 21")
            k("s_and_b32 s35, s33, 15")
            k("s_lshl_b32 s35, s35, 17")
            k("s_add_u32 s34, s34, s35")
            k("s_add_u32 s34, s34, s27")
            k(f"s_mov_b32 s{40+g}, s34")
            k("s_cmp_ge_u32 s33, 32")
            k(f"s_cbranch_scc1 {lv}")
            k(f"buffer_store_dwordx4 {vr(acc,4)}, v2, s[16:19], s34 offen")
            k("s_add_u32 s34, s34, 65536")
            k(f"buffer_store_dwordx4 {vr(acc+4,4)}, v2, s[16:19], s34 offen")
            k(f"s_branch {le}")
            k(f"{lv}:")
            for rr in range(4):
                k(f"ds_write_b64 v6, {vr(acc+2*rr,2)} offset:{g*2304+rr*16}")
            k(f"{le}:")
        lend = k.label("ve")
        k("s_add_u32 s33, s28, 2")
        k("s_cmp_lt_u32 s33, 32")
        k(f"s_cbranch_scc1 {lend}")
        k("s_waitcnt lgkmcnt(0)")
        for g in range(3):
            acc = ACC + 16*g
            for j in range(2):
                k(f"ds_read_b64_tr_b16 {vr(acc+8+4*j,2)}, v8 offset:{g*2304+j*16*72}")
                k(f"ds_read_b64_tr_b16 {vr(acc+8+4*j+2,2)}, v8 offset:{g*2304+j*16*72+8*72}")
        for g in range(3):
            acc = ACC + 16*g
            ls = k.label("vs")
            k(f"s_waitcnt lgkmcnt({8-4*g})")
            k(f"s_add_u32 s33, s28, {g}")
            k("s_cmp_lt_u32 s33, 32")
            k(f"s_cbranch_scc1 {ls}")
            k(f"buffer_store_dwordx4 {vr(acc+8,4)}, v9, s[16:19], s{40+g} offen")
            k(f"buffer_store_dwordx4 {vr(acc+12,4)}, v9, s[16:19], s{40+g} offen offset:512")
            k(f"{ls}:")
        k(f"{lend}:")
    gemm_core(k, name, cfg, dict(srds_a=srds_a, srds_w=srds_w,
                                 helper_pre=helper_pre, helper_chunk=helper_chunk, helper_post=helper_post,
                                 cons_pre=cons_pre, pre_step=after_step, epilogue=epilogue))
    assert cfg["FREE"] <= 112 and cfg["ACC"] == 64
    k(f"{name}_done:")
    k("s_endpgm")
    return k
```

```python
from dsl import *
import os
GPRIO = os.environ.get("GPRIO", "")

class G:
    pass

def gemm_core(k, name, cfg, hooks):
    NTT, NG, KC, NCH, NS, AHEAD = (cfg[x] for x in ("NTT", "NG", "KC", "NCH", "NS", "AHEAD"))
    ABYTES = NTT*KC*1024
    WROW = NG*64
    WBYTES = KC*16*WROW
    SZ = ABYTES + WBYTES
    ST = cfg.get("ST", False)
    cfg["NWAVES"] = 16 if ("helper_chunk" in hooks or "free_helper" in hooks) else 12
    k("s_cmp_lt_u32 s22, 4")
    k(f"s_cbranch_scc1 {name}_cons")
    if "helper_chunk" in hooks or "free_helper" in hooks:
        k("s_cmp_ge_u32 s22, 12")
        k(f"s_cbranch_scc1 {name}_help")
    k("s_cmp_ge_u32 s22, 8")
    k(f"s_cbranch_scc1 {name}_wprod")
    ASRD, WSRD = cfg["a_srd"], cfg["w_srd"]
    NTA = "nt " if name in os.environ.get("NTA", "").split(",") else ""
    wst = cfg["w_stride"]
    def prod_loop(per, dma, pre_chunk, post_chunk, post, late=None, nlate=0, init=None, mid=None, nmid=0, mid_at=None):
        issued = 0; extra = 0; mid_done = False
        for c in range(min(AHEAD, NCH)):
            dma(c); issued += 1
            if init is not None and c == 0: init(k, per*issued)
        stamp(k, 2, ST)
        for c in range(NCH):
            k(f"s_waitcnt vmcnt({per*(issued - 1 - c) + extra + (nmid if (mid_done and c < mid_at) else 0)})")
            k("s_barrier")
            pre_chunk(k, c, (c % NS)*SZ)
            if issued < NCH:
                assert issued - NS <= c - 2
                if mid is not None and issued == mid_at:
                    mid(k); mid_done = True
                dma(issued); issued += 1
                if issued == NCH and late is not None:
                    late(k); extra = nlate
            post_chunk(k, c, (c % NS)*SZ)
        post(k)
        if ST:
            stamp(k, 3, ST); stamp(k, 4, ST); stamp(k, 5, ST); stamp(k, 6, ST)
            k("s_waitcnt lgkmcnt(0)")
            stamp_rt(k, 7)
            stamp_flush(k, 8, 16, 22, cfg["NWAVES"])
        k("s_endpgm")
    nop2 = lambda k, c, slot: None
    k("s_sub_u32 s23, s22, 4")
    if GPRIO: k(f"s_setprio {GPRIO[0]}")
    nA = NTT*KC//4
    if cfg["a_mode"] == "frag":
        k("v_lshlrev_b32 v2, 4, v1")
        if NTT == 4:
            k(f"s_mul_i32 s34, s23, {cfg['a_tile_stride']}")
        else:
            k("s_lshr_b32 s26, s23, 1")
            k(f"s_mul_i32 s34, s26, {cfg['a_tile_stride']}")
            k("s_and_b32 s26, s23, 1")
            k(f"s_mul_i32 s26, s26, {nA*1024}")
            k("s_add_u32 s34, s34, s26")
        k("s_add_u32 s34, s34, s30")
        a_chunk_stride = KC*1024
        a_voffs = ["v2"]*nA
        a_soffs = [n*1024 for n in range(nA)]
    else:
        assert KC == 4 and NTT == 4
        k("v_lshrrev_b32 v6, 3, v1")
        k("v_and_b32 v7, 7, v1")
        for n in range(4):
            k(f"v_lshrrev_b32 v8, 1, v6")
            k(f"v_add_u32 v8, {4*n}, v8")
            k(f"v_and_b32 v8, 7, v8")
            k(f"v_xor_b32 v8, v8, v7")
            k(f"v_lshlrev_b32 v8, 4, v8")
            k(f"v_lshl_add_u32 v{10+n}, v6, 10, v8")
        k("s_lshl_b32 s34, s23, 15")
        k("s_add_u32 s34, s34, s30")
        a_chunk_stride = KC*32
        a_voffs = [f"v{10+n}" for n in range(4)]
        a_soffs = [n*8192 for n in range(4)]
    k(f"s_mul_i32 s35, s23, {nA*1024}")
    k(f"s_mul_i32 s38, s29, {a_chunk_stride}")
    k("s_add_u32 s34, s34, s38")
    k(f"s_sub_u32 s38, {NCH}, s29")
    k("s_waitcnt lgkmcnt(0)")
    hooks["srds_a"](k)
    def dma_a(c):
        slot = (c % NS)*SZ
        for n in range(nA):
            k(f"s_add_u32 m0, s35, {slot + n*1024}")
            if a_soffs[n]:
                k(f"s_add_u32 s26, s34, {a_soffs[n]}")
                k(f"buffer_load_dwordx4 {a_voffs[n]}, s[{ASRD}:{ASRD+3}], s26 offen {NTA}lds")
            else:
                k("s_nop 0")
                k(f"buffer_load_dwordx4 {a_voffs[n]}, s[{ASRD}:{ASRD+3}], s34 offen {NTA}lds")
        k(f"s_add_u32 s34, s34, {a_chunk_stride}")
        k("s_sub_u32 s38, s38, 1")
        k("s_cmp_eq_u32 s38, 0")
        k(f"s_cselect_b32 s26, {NCH*a_chunk_stride}, 0")
        k("s_sub_u32 s34, s34, s26")
    hooks.get("aprod_pre", lambda k: None)(k)
    prod_loop(nA, dma_a, hooks.get("aprod_chunk_pre", nop2), hooks.get("aprod_chunk_post", nop2), hooks.get("aprod_post", lambda k: None), init=hooks.get("aprod_init"), mid=hooks.get("aprod_mid"), nmid=cfg.get("ANMID", 0), mid_at=cfg.get("AMID_AT"))
    k(f"{name}_wprod:")
    k("s_sub_u32 s23, s22, 8")
    if GPRIO: k(f"s_setprio {GPRIO[0]}")
    nW = KC*NG//4
    rows_per_p = KC*4
    if NG == 2:
        k("v_lshrrev_b32 v3, 3, v1")
        k("v_and_b32 v4, 7, v1")
        k("v_bfe_u32 v5, v1, 4, 1")
        k("v_lshlrev_b32 v5, 2, v5")
        k("v_xor_b32 v4, v4, v5")
        k("v_lshlrev_b32 v4, 4, v4")
        k(f"s_mov_b32 s26, {wst}")
        k("v_mul_lo_u32 v3, v3, s26")
        k("v_add_u32 v3, v3, v4")
        w_voffs = ["v3"]*nW; w_soffs = [n*8*wst for n in range(nW)]
    elif NG == 4:
        k("v_lshrrev_b32 v3, 4, v1")
        k("v_and_b32 v5, 15, v1")
        k("v_lshlrev_b32 v4, 2, v3")
        k("v_xor_b32 v5, v5, v4")
        k(f"s_mov_b32 s26, {wst}")
        k("v_mul_lo_u32 v3, v3, s26")
        k("v_lshl_add_u32 v3, v5, 4, v3")
        w_voffs = ["v3"]*nW; w_soffs = [n*4*wst for n in range(nW)]
    else:
        assert nW == 3
        k(f"s_mov_b32 s26, {wst}")
        k("s_mov_b32 s27, 0x15555556")
        for n in range(3):
            k(f"v_add_u32 v4, {64*n}, v1")
            k("v_mul_hi_u32 v5, v4, s27")
            k("v_mul_u32_u24 v6, 12, v5")
            k("v_sub_u32 v4, v4, v6")
            k("v_mul_lo_u32 v5, v5, s26")
            k(f"v_lshl_add_u32 v{14+n}, v4, 4, v5")
        w_voffs = [f"v{14+n}" for n in range(3)]; w_soffs = [0, 0, 0]
    k(f"s_mul_i32 s36, s23, {rows_per_p*wst}")
    k("s_add_u32 s36, s36, s32")
    k(f"s_mul_i32 s37, s23, {nW*1024}")
    k(f"s_add_u32 s37, s37, {ABYTES}")
    w_chunk_stride = KC*16*wst
    k(f"s_mul_i32 s39, s29, {w_chunk_stride}")
    k("s_add_u32 s36, s36, s39")
    k(f"s_sub_u32 s38, {NCH}, s29")
    k("s_waitcnt lgkmcnt(0)")
    hooks["srds_w"](k)
    def dma_w(c):
        slot = (c % NS)*SZ
        for n in range(nW):
            k(f"s_add_u32 m0, s37, {slot + n*1024}")
            if w_soffs[n]:
                k(f"s_add_u32 s26, s36, {w_soffs[n]}")
                k(f"buffer_load_dwordx4 {w_voffs[n]}, s[{WSRD}:{WSRD+3}], s26 offen lds")
            else:
                k("s_nop 0")
                k(f"buffer_load_dwordx4 {w_voffs[n]}, s[{WSRD}:{WSRD+3}], s36 offen lds")
        k(f"s_add_u32 s36, s36, {w_chunk_stride}")
        k("s_sub_u32 s38, s38, 1")
        k("s_cmp_eq_u32 s38, 0")
        k(f"s_cselect_b32 s27, {NCH*w_chunk_stride}, 0")
        k("s_sub_u32 s36, s36, s27")
    hooks.get("prod_pre", lambda k: None)(k)
    prod_loop(nW, dma_w, hooks.get("prod_chunk_pre", nop2), hooks.get("prod_chunk_post", nop2), hooks.get("prod_post", lambda k: None), hooks.get("prod_late"), cfg.get("NLATE", 0), init=hooks.get("prod_init"), mid=hooks.get("prod_mid"), nmid=cfg.get("NMID", 0), mid_at=cfg.get("MID_AT"))
    if "helper_chunk" in hooks:
        k(f"{name}_help:")
        k("s_sub_u32 s23, s22, 12")
        hooks["helper_pre"](k)
        stamp(k, 2, ST)
        for c in range(NCH):
            k("s_barrier")
            hooks["helper_chunk"](k, c, (c % NS)*SZ)
        hooks["helper_post"](k)
        if ST:
            stamp(k, 3, ST); stamp(k, 4, ST); stamp(k, 5, ST); stamp(k, 6, ST)
            k("s_waitcnt lgkmcnt(0)")
            stamp_rt(k, 7)
            stamp_flush(k, 8, 16, 22, cfg["NWAVES"])
        k("s_endpgm")
    if "free_helper" in hooks:
        k(f"{name}_help:")
        k("s_sub_u32 s23, s22, 12")
        hooks["free_helper"](k)
        if ST:
            stamp(k, 2, ST); stamp(k, 3, ST); stamp(k, 4, ST); stamp(k, 5, ST); stamp(k, 6, ST)
            k("s_mov_b64 exec, -1")
            k("s_waitcnt lgkmcnt(0)")
            stamp_rt(k, 7)
            stamp_flush(k, 8, 16, 22, cfg["NWAVES"])
        k("s_endpgm")
    k(f"{name}_cons:")
    if GPRIO: k(f"s_setprio {GPRIO[1]}")
    hooks["cons_pre"](k)
    stamp(k, 2, ST)
    tts, gs = cfg["wave_ntt"], cfg["wave_ng"]
    k("v_lshrrev_b32 v4, 5, v1")
    if cfg["a_mode"] == "frag":
        k("v_lshlrev_b32 v5, 4, v1")
        k(f"s_mul_i32 s26, s23, {KC*1024}")
        k("v_add_u32 v14, s26, v5")
        a_addr_regs = None
    else:
        k("v_and_b32 v5, 31, v1")
        k("v_bfe_u32 v6, v1, 1, 3")
        k("v_xor_b32 v6, v6, v4")
        k("v_lshlrev_b32 v6, 4, v6")
        k("v_lshl_add_u32 v6, v5, 7, v6")
        k("s_lshl_b32 s26, s23, 12")
        k("v_add_u32 v14, s26, v6")
    k("v_bfe_u32 v7, v1, 2, 2")
    if cfg["perm"] == "pi":
        k("v_lshl_add_u32 v8, v4, 2, v7")
        second = 8*WROW
    else:
        k("v_lshl_add_u32 v8, v4, 3, v7")
        second = 4*WROW
    k(f"v_mul_u32_u24 v8, {WROW}, v8")
    if NG == 2:
        k("v_lshrrev_b32 v7, 1, v7")
        k("v_lshl_add_u32 v8, v7, 6, v8")
    elif NG == 4:
        k("v_lshl_add_u32 v8, v7, 6, v8")
    k("v_bfe_u32 v7, v1, 4, 1")
    k("v_lshl_add_u32 v8, v7, 5, v8")
    k("v_and_b32 v7, 3, v1")
    k("v_lshl_add_u32 v8, v7, 3, v8")
    k(f"v_add_u32 v8, {ABYTES}, v8")
    k("s_lshl_b32 s26, s24, 6")
    if NG == 3:
        k("v_add_u32 v15, s26, v8")
    else:
        k("v_xor_b32 v15, s26, v8")
    nAreg = 1 if cfg["a_mode"] == "frag" else KC
    nWreg = 1 if NG == 3 else gs
    BA = 16; BW = BA + nAreg; CUR = BW + nWreg; NXT = CUR + nAreg + nWreg; FR = NXT + nAreg + nWreg
    FR = (FR + 3)//4*4
    for i in range(nAreg):
        if i == 0: k(f"v_mov_b32 v{BA}, v14")
        else: k(f"v_xor_b32 v{BA+i}, {i*32}, v14")
    for i in range(nWreg):
        if i == 0: k(f"v_mov_b32 v{BW}, v15")
        else: k(f"v_xor_b32 v{BW+i}, {i*64}, v15")
    for i in range(nAreg + nWreg):
        k(f"v_mov_b32 v{CUR+i}, v{BA+i}")
    FSZ = 4*(tts + gs)
    NSET = cfg["NSET"]
    ACC = FR + NSET*FSZ
    ACC = (ACC + 3)//4*4
    cfg["ACC"] = ACC
    cfg["FREE"] = ACC + 16*tts*gs
    if "acc_init" in hooks: hooks["acc_init"](k, cfg)
    else:
        for r in range(ACC, ACC + 16*tts*gs): k(f"v_mov_b32 v{r}, 0")
    def fa(S, i): return FR + (S % NSET)*FSZ + 4*i
    def fw(S, g): return FR + (S % NSET)*FSZ + 4*tts + 4*g
    def rd_a(S_set, s_, i, base):
        if cfg["a_mode"] == "frag":
            k(f"ds_read_b128 {vr(fa(S_set,i),4)}, v{base} offset:{s_*1024 + i*KC*1024}")
        else:
            k(f"ds_read_b128 {vr(fa(S_set,i),4)}, v{base+s_} offset:{i*4096}")
    def rd_w(S_set, s_, g, base):
        if NG == 3:
            ad = base + nAreg; off = s_*16*WROW + g*64
        else:
            ad = base + nAreg + g; off = s_*16*WROW
        k(f"ds_read_b64_tr_b16 {vr(fw(S_set,g),2)}, v{ad} offset:{off}")
        k(f"ds_read_b64_tr_b16 {vr(fw(S_set,g)+2,2)}, v{ad} offset:{off+second}")
    nrd = tts + 2*gs
    D = NSET
    assert KC % NSET == 0 or NSET <= KC
    k("s_mov_b32 s34, 0")
    k("s_mov_b32 s35, 0")
    k("s_barrier")
    stamp(k, 3, ST)
    for S in range(D):
        for i in range(tts): rd_a(S, S, i, CUR)
        for g in range(gs): rd_w(S, S, g, CUR)
    def chunk_body(last, cidx=None):
        for s_ in range(KC):
            nx = s_ + D
            in_next = nx >= KC
            if nx == KC and not last:
                k(f"s_add_u32 s34, s34, {SZ}")
                k(f"s_cmp_eq_u32 s34, {NS*SZ}")
                k("s_cselect_b32 s34, 0, s34")
                for i in range(nAreg + nWreg):
                    k(f"v_add_u32 v{NXT+i}, s34, v{BA+i}")
                k("s_barrier")
            do_rd = not (last and in_next)
            if do_rd: allowed = nrd*(D-1)
            else: allowed = nrd*(KC-1-s_)
            k(f"s_waitcnt lgkmcnt({min(15, allowed)})")
            base = NXT if in_next else CUR
            sn = nx - KC if in_next else nx
            hooks.get("pre_step", lambda *a: None)(k, s_, lambda g: fw(s_, g))
            for i in range(tts):
                for g in range(gs):
                    acc = ACC + 16*(i*gs + g)
                    k(f"v_mfma_f32_32x32x16_bf16 {vr(acc,16)}, {vr(fw(s_,g),4)}, {vr(fa(s_,i),4)}, {vr(acc,16)}")
                    hooks.get("after_mfma", lambda *a: None)(k, s_, i, g, fa(s_, i), fw(s_, g))
                    if do_rd:
                        if i == tts - 1: rd_w(s_, sn, g, base)
                        if g == gs - 1: rd_a(s_, sn, i, base)
        if not last:
            for i in range(nAreg + nWreg):
                k(f"v_mov_b32 v{CUR+i}, v{NXT+i}")
    nvar = cfg.get("NVAR", 1)
    if nvar > 1:
        for v_ in range(1, nvar):
            k(f"s_cmp_eq_u32 s36, {v_}")
            k(f"s_cbranch_scc1 {name}_var{v_}")
    for v_ in range(nvar):
        cfg["VAR"] = v_
        lab = f"{name}_loop{v_}"
        k(f"{name}_var{v_}:")
        k(f"{lab}:")
        chunk_body(False)
        k("s_add_u32 s35, s35, 1")
        k(f"s_cmp_lt_u32 s35, {NCH-1}")
        k(f"s_cbranch_scc1 {lab}")
        chunk_body(True)
        if v_ < nvar - 1: k(f"s_branch {name}_epi")
    k(f"{name}_epi:")
    stamp(k, 4, ST)
    hooks["epilogue"](k, cfg)
    stamp(k, 5, ST)
    if ST:
        k("s_waitcnt vmcnt(0)")
        k("s_mov_b64 exec, -1")
        stamp(k, 6, ST)
        k("s_waitcnt lgkmcnt(0)")
        stamp_rt(k, 7)
        stamp_flush(k, 8, 16, 22, cfg["NWAVES"])
```

```python
from dsl import *

import os
NTF = "nt " if os.environ.get("NTKV") == "1" else ""
def make_att(ST=False, PF=(1,1,1), ZROWS=True, PRIO=os.environ.get("PRIO","prog")):
    UNR = 8
    MRG = 131072 + 2048
    k = Kern("att_kernel", 256, 1024, MRG + 8*2560, 128)
    Q=4; KF=[8,12]; VF0=[16,20]; VF1=[24,28]; P=32; S=[40,56]; O=72; NM=88
    k("s_cmp_ge_u32 s2, 256")
    k("s_cbranch_scc1 att_done")
    if ST: stamp_rt(k, 0)
    stamp(k, 1, ST)
    k("s_load_dwordx2 s[16:17], s[0:1], 80")
    k("s_load_dwordx2 s[44:45], s[0:1], 16")
    k("s_load_dwordx2 s[48:49], s[0:1], 32")
    k("s_load_dwordx2 s[52:53], s[0:1], 48")
    k("s_and_b32 s24, s2, 7")
    k("s_lshr_b32 s25, s2, 3")
    k("s_lshl_b32 s20, s24, 2")
    k("s_and_b32 s26, s25, 3")
    k("s_add_u32 s20, s20, s26")
    k("s_lshr_b32 s21, s25, 2")
    k("v_lshrrev_b32 v2, 6, v0")
    k("v_and_b32 v1, 63, v0")
    k("v_readfirstlane_b32 s22, v2")
    k("v_lshlrev_b32 v2, 4, v1")
    k("s_nop 2")
    k("s_and_b32 s30, s22, 7")
    k("s_lshr_b32 s31, s22, 3")
    k("s_lshl_b32 s23, s20, 16")
    k("s_lshl_b32 s26, s21, 3")
    k("s_add_u32 s27, s26, s30")
    k("s_lshl_b32 s26, s27, 10")
    k("s_add_u32 s39, s26, s23")
    k("s_and_b32 s26, s30, 3")
    k("s_lshl_b32 s26, s26, 10")
    k("s_lshl_b32 s28, s31, 15")
    k("s_add_u32 s26, s26, s28")
    k("s_lshr_b32 s28, s30, 2")
    k("s_lshl_b32 s29, s28, 16")
    k("s_add_u32 s29, s29, s26")
    k("s_lshl_b32 s28, s28, 21")
    k(f"s_add_u32 s28, s28, {WS_K}")
    k("s_add_u32 s28, s28, s23")
    k("s_add_u32 s28, s28, s26")
    k("s_waitcnt lgkmcnt(0)")
    k("s_mov_b32 s18, %d" % (8 << 20))
    k("s_mov_b32 s19, 0x00020000")
    def dma(c):
        k(f"s_add_u32 s26, s21, {c}")
        k("s_and_b32 s26, s26, 7")
        k("s_lshl_b32 s26, s26, 12")
        k("s_add_u32 s26, s26, s28")
        k(f"s_add_u32 m0, s29, {c*4096}")
        k("s_nop 0")
        k(f"buffer_load_dwordx4 v2, s[16:19], s26 offen {NTF}lds")
    dma(0)
    k(f"buffer_load_dwordx4 {vr(Q,4)}, v2, s[16:19], s39 offen")
    dma(1); dma(2)
    stamp(k, 2, ST)
    k("s_lshl_b32 s26, s31, 15")
    k("v_add_u32 v106, s26, v2")
    k("v_lshrrev_b32 v3, 5, v1")
    k("v_lshlrev_b32 v3, 8, v3")
    k("v_and_b32 v104, 15, v1")
    k("v_lshl_add_u32 v3, v104, 4, v3")
    k("v_add_u32 v3, 0x10000, v3")
    k("v_add_u32 v107, s26, v3")
    k("v_lshlrev_b32 v111, 4, v1")
    if ZROWS:
        k("v_and_b32 v104, 27, v1")
        k("v_cmp_eq_u32 vcc, 16, v104")
        k("v_mov_b32 v105, 0x3f803f80")
        k("v_mov_b32 v104, 0")
        k("v_cndmask_b32 v104, v104, v105, vcc")
        for r in range(16, 32): k(f"v_mov_b32 v{r}, v104")
    else:
        for r in range(16, 32): k(f"v_mov_b32 v{r}, 0x3f803f80")
    k("s_mov_b32 s34, 0x0000ffff")
    k("s_mov_b32 s35, 0x0000ffff")
    k("s_mov_b32 s36, 0")
    k("s_mov_b32 s37, 1")
    k("s_waitcnt vmcnt(0)")
    k("s_barrier")
    stamp(k, 3, ST)
    k("att_retry:")
    k("v_mov_b32 v104, 0xff800000")
    k("v_mov_b32 v105, v106")
    k("s_mov_b32 s38, 0")
    k("att_maxloop:")
    k(f"ds_read_b128 {vr(KF[0],4)}, v105")
    k("v_add_u32 v105, 1024, v105")
    k("s_waitcnt lgkmcnt(0)")
    k(f"v_mfma_f32_32x32x16_bf16 {vr(S[0],16)}, {vr(KF[0],4)}, {vr(Q,4)}, 0")
    k("s_nop 15")
    for r in range(0, 16, 2):
        k(f"v_max3_f32 v104, v{S[0]+r}, v{S[0]+r+1}, v104")
    k("s_add_u32 s38, s38, 1")
    k("s_cmp_lt_u32 s38, s37")
    k("s_cbranch_scc1 att_maxloop")
    k("v_mov_b32 v105, v104")
    k("s_nop 1")
    k("v_permlane32_swap_b32 v104, v105")
    k("v_mov_b32 v2, v106")
    k("v_mov_b32 v3, v107")
    k("v_max_f32 v104, v104, v105")
    k(f"ds_read_b128 {vr(KF[1],4)}, v2 offset:1024")
    k("s_mov_b64 exec, s[34:35]")
    k(f"ds_read_b128 {vr(VF0[0],4)}, v3")
    k("s_mov_b64 exec, -1")
    k(f"ds_read_b128 {vr(KF[0],4)}, v2")
    for r in range(16):
        k(f"v_sub_f32 v{NM+r}, 0, v104")
    for r in range(16):
        k(f"v_mov_b32 v{O+r}, 0")
    for r in range(4):
        k(f"v_mov_b32 v{P+4+r}, 0")
    k("s_waitcnt lgkmcnt(0)")
    k(f"v_mfma_f32_32x32x16_bf16 {vr(S[0],16)}, {vr(KF[0],4)}, {vr(Q,4)}, {vr(NM,16)}")
    k("s_nop 7")
    def body(extra=None, it=None):
        for u in range(UNR):
            b = u & 1; nb = b ^ 1
            Sc = S[b]; Sn = S[nb]
            if PRIO == "cyc": k(f"s_setprio {3 - (u & 3)}")
            if PRIO == "cyc2": k(f"s_setprio {3 - ((u >> 1) & 3)}")
            if PRIO.startswith("prog") and it is not None:
                t = it*8 + u
                lv = {"prog": [0, 8, 16, 24], "prog2": [0, 16, 24, 28], "prog3": [0, 20, 26, 30]}[PRIO]
                if t in lv: k(f"s_setprio {3 - lv.index(t)}")
            k("s_waitcnt lgkmcnt(0)")
            cop = "0" if os.environ.get("C0", "0") == "1" else vr(NM,16)
            k(f"v_mfma_f32_32x32x16_bf16 {vr(Sn,16)}, {vr(KF[nb],4)}, {vr(Q,4)}, {cop}")
            if not (os.environ.get("HALFLDS") == "1" and (u & 1)):
                k(f"ds_read_b128 {vr(KF[b],4)}, v2 offset:{(u+2)*1024}")
                k("s_mov_b64 exec, s[34:35]")
                k(f"ds_read_b128 {vr(VF0[nb],4)}, v3 offset:{(u+1)*1024}")
                k(f"ds_read_b128 {vr(VF1[b],4)}, v3 offset:{u*1024+512}")
                k("s_mov_b64 exec, -1")
            for r in range(6):
                k(f"v_exp_f32 v{Sc+r}, v{Sc+r}")
            k(f"v_mfma_f32_32x32x16_bf16 {vr(O,16)}, {vr(VF1[nb],4)}, {vr(P+4,4)}, {vr(O,16)}")
            for r in range(6, 8):
                k(f"v_exp_f32 v{Sc+r}, v{Sc+r}")
            for r in range(4):
                k(f"v_cvt_pk_bf16_f32 v{P+r}, v{Sc+2*r}, v{Sc+2*r+1}")
            for r in range(8, 11):
                k(f"v_exp_f32 v{Sc+r}, v{Sc+r}")
            k(f"v_mfma_f32_32x32x16_bf16 {vr(O,16)}, {vr(VF0[b],4)}, {vr(P,4)}, {vr(O,16)}")
            for r in range(11, 16):
                k(f"v_exp_f32 v{Sc+r}, v{Sc+r}")
            for r in range(4):
                k(f"v_cvt_pk_bf16_f32 v{P+4+r}, v{Sc+8+2*r}, v{Sc+8+2*r+1}")
            if extra: extra(u)
        k(f"v_add_u32 v2, {UNR*1024}, v2")
        k(f"v_add_u32 v3, {UNR*1024}, v3")
    NIT = 32 // UNR
    k("s_mov_b32 s38, 0")
    k("s_cmp_lg_u32 s36, 0")
    k("s_cbranch_scc1 att_loop")
    def extra(u):
        c = 3 + u
        if c < 8:
            k(f"s_add_u32 s26, s21, {c}")
            k("s_and_b32 s26, s26, 7")
            k("s_lshl_b32 s26, s26, 12")
            k("s_add_u32 s26, s26, s28")
            k(f"s_add_u32 m0, s29, {c*4096}")
            k("s_nop 0")
            k(f"buffer_load_dwordx4 v111, s[16:19], s26 offen {NTF}lds")
    body(extra, 0)
    k("s_waitcnt vmcnt(0)")
    k("s_barrier")
    k("v_lshlrev_b32 v108, 7, v1")
    code_prefetch(k, "wo_kernel", 1, 112, 80, wave_val=15)
    if PF[0]:
        lab = k.label("pf")
        k("s_cmp_ge_u32 s22, 2")
        k(f"s_cbranch_scc1 {lab}")
        k("s_mov_b32 s46, %d" % (512*1024)); k("s_mov_b32 s47, 0x00020000")
        k("s_lshl_b32 s26, s25, 1"); k("s_add_u32 s26, s26, s22"); k("s_lshl_b32 s26, s26, 13")
        k("buffer_load_dword v110, v108, s[44:47], s26 offen")
        k(f"{lab}:")
    if PF[1]:
        lab = k.label("pf")
        k("s_sub_u32 s40, s22, 2")
        k("s_cmp_ge_u32 s40, 4")
        k(f"s_cbranch_scc1 {lab}")
        k("s_mov_b32 s50, %d" % (512*3584)); k("s_mov_b32 s51, 0x00020000")
        k("v_and_b32 v109, 15, v1")
        k("v_min_u32 v109, 13, v109")
        k("v_lshlrev_b32 v109, 7, v109")
        k("v_lshrrev_b32 v110, 4, v1")
        k("v_mul_u32_u24 v110, 3584, v110")
        k("v_add_u32 v109, v109, v110")
        k("s_lshl_b32 s26, s25, 2"); k("s_add_u32 s26, s26, s40"); k("s_mul_i32 s26, s26, %d" % (4*3584))
        k("s_and_b32 s40, s24, 1"); k("s_mul_i32 s40, s40, 1792"); k("s_add_u32 s26, s26, s40")
        k("buffer_load_dword v110, v109, s[48:51], s26 offen")
        k(f"{lab}:")
    if PF[2]:
        lab = k.label("pf")
        k("s_sub_u32 s40, s22, 8")
        k("s_cmp_ge_u32 s40, 7")
        k(f"s_cbranch_scc1 {lab}")
        k("s_mov_b32 s54, %d" % (1792*1024)); k("s_mov_b32 s55, 0x00020000")
        k("s_mul_i32 s26, s25, 7"); k("s_add_u32 s26, s26, s40"); k("s_lshl_b32 s26, s26, 13")
        k("buffer_load_dword v110, v108, s[52:55], s26 offen")
        k(f"{lab}:")
    if PRIO.startswith("prog"):
        for it in range(1, NIT): body(None, it)
        k("s_branch att_loop_end")
    k("s_mov_b32 s38, 1")
    k("att_loop:")
    body()
    k("s_add_u32 s38, s38, 1")
    k(f"s_cmp_lt_u32 s38, {NIT}")
    k("s_cbranch_scc1 att_loop")
    k("att_loop_end:")
    stamp(k, 4, ST)
    k("s_waitcnt lgkmcnt(0)")
    k(f"v_mfma_f32_32x32x16_bf16 {vr(O,16)}, {vr(VF1[(UNR-1)&1],4)}, {vr(P+4,4)}, {vr(O,16)}")
    k("s_nop 15")
    k(f"v_add_f32 v104, |v{O}|, |v{O+1}|")
    k(f"v_add_f32 v105, |v{O+2}|, |v{O+3}|")
    k(f"v_add_f32 v108, |v{O+4}|, |v{O+5}|")
    k(f"v_add_f32 v109, |v{O+6}|, |v{O+7}|")
    k("v_add_f32 v104, v104, v105")
    k("v_add_f32 v108, v108, v109")
    k("v_add_f32 v104, v104, v108")
    k(f"v_mul_f32 v104, {f32(2.0**-20)}, v104")
    k(f"v_add_f32 v104, v104, v{O+8}")
    k(f"v_mov_b32 v108, {f32(2.0**100)}")
    k("v_cmp_nlt_f32 vcc, v104, v108")
    k("s_nop 3")
    k("s_cmp_eq_u64 vcc, 0")
    k("s_cbranch_scc1 att_ok")
    k("s_cmp_lg_u32 s36, 0")
    k("s_cbranch_scc1 att_ok")
    k("s_mov_b32 s36, 1")
    k("s_mov_b32 s37, 32")
    k("s_branch att_retry")
    k("att_ok:")
    k("s_lshl_b32 s26, s30, 11"); k("s_lshl_b32 s28, s30, 9"); k("s_add_u32 s26, s26, s28")
    k(f"s_add_u32 s26, s26, {MRG}")
    k("v_add_u32 v104, s26, v111")
    k("v_lshlrev_b32 v105, 3, v1")
    k("v_add_u32 v105, s26, v105")
    k(f"v_mov_b32 v{O+9}, v{NM}")
    lab = k.label("m")
    k("s_cmp_eq_u32 s31, 1")
    k(f"s_cbranch_scc1 {lab}")
    k(f"ds_write_b128 v104, {vr(O,4)}")
    k(f"ds_write_b128 v104, {vr(O+4,4)} offset:1024")
    k(f"ds_write_b64 v105, {vr(O+8,2)} offset:2048")
    k("s_waitcnt lgkmcnt(0)")
    k("s_barrier")
    k("s_branch att_fin")
    k(f"{lab}:")
    k("s_barrier")
    k(f"ds_read_b128 {vr(S[0],4)}, v104")
    k(f"ds_read_b128 {vr(S[0]+4,4)}, v104 offset:1024")
    k(f"ds_read_b64 {vr(S[0]+8,2)}, v105 offset:2048")
    k("s_waitcnt lgkmcnt(0)")
    k(f"v_min_f32 v104, v{O+9}, v{S[0]+9}")
    k(f"v_sub_f32 v105, v104, v{O+9}")
    k(f"v_sub_f32 v108, v104, v{S[0]+9}")
    k("v_exp_f32 v105, v105")
    k("v_exp_f32 v108, v108")
    k("s_nop 0")
    for r in range(9):
        k(f"v_mul_f32 v{O+r}, v{O+r}, v105")
    for r in range(9):
        k(f"v_fmac_f32 v{O+r}, v{S[0]+r}, v108")
    k(f"v_rcp_f32 v104, v{O+8}")
    k("s_nop 0")
    for r in range(8):
        k(f"v_mul_f32 v{O+r}, v{O+r}, v104")
    for r in range(4):
        k(f"v_cvt_pk_bf16_f32 v{P+r}, v{O+2*r}, v{O+2*r+1}")
    k("s_lshl_b32 s26, s27, 15")
    k("s_lshl_b32 s28, s20, 10")
    k("s_add_u32 s26, s26, s28")
    k(f"s_add_u32 s26, s26, {WS_O}")
    k(f"buffer_store_dwordx4 {vr(P,4)}, v111, s[16:19], s26 offen")
    k("s_branch att_fin")
    k("att_fin:")
    stamp(k, 5, ST)
    if ST:
        k("s_waitcnt vmcnt(0)")
        stamp(k, 6, ST)
        k("s_waitcnt lgkmcnt(0)")
        stamp_rt(k, 7)
        stamp_flush(k, 8, 16, 22, 16)
    k("att_done:")
    k("s_endpgm")
    return k
```

```python
import struct
def v(n): return f"v{n}"
def vr(n, c): return f"v[{n}:{n+c-1}]"
def a(n): return f"a{n}"
def ar(n, c): return f"a[{n}:{n+c-1}]"
def s(n): return f"s{n}"
def sr(n, c): return f"s[{n}:{n+c-1}]"
def f32(x): return "0x%08x" % struct.unpack("<I", struct.pack("<f", x))[0]

class Kern:
    def __init__(self, name, grid, block, lds, nvgpr, nsgpr=96, accum=None):
        self.name = name; self.grid = grid; self.block = block; self.lds = lds
        self.nvgpr = nvgpr; self.nsgpr = nsgpr
        self.accum = accum if accum is not None else ((nvgpr + 3) // 4 * 4)
        self.L = []
        self.lab = 0
    def __call__(self, line):
        for l in line.split("\n"):
            l = l.strip()
            if l: self.L.append("    " + l if not l.endswith(":") else l)
    def label(self, base="L"):
        self.lab += 1
        return f"{self.name}_{base}{self.lab}"
    def srd(self, sreg, ptr_lo, nbytes):
        self(f"s_mov_b32 s{sreg}, s{ptr_lo}")
        self(f"s_mov_b32 s{sreg+1}, s{ptr_lo+1}")
        self(f"s_mov_b32 s{sreg+2}, {nbytes}")
        self(f"s_mov_b32 s{sreg+3}, 0x00020000")
    def text(self):
        h = f".globl {self.name}\n.p2align 8\n.type {self.name},@function\n{self.name}:\n"
        return h + "\n".join(self.L) + f"\n{self.name}_end:\n"
    def desc(self):
        return f""".amdhsa_kernel {self.name}
  .amdhsa_next_free_vgpr {self.nvgpr}
  .amdhsa_next_free_sgpr {self.nsgpr}
  .amdhsa_accum_offset {self.accum}
  .amdhsa_group_segment_fixed_size 0
  .amdhsa_kernarg_size 88
  .amdhsa_user_sgpr_count 2
  .amdhsa_user_sgpr_kernarg_segment_ptr 1
  .amdhsa_system_sgpr_workgroup_id_x 1
.end_amdhsa_kernel
"""
    def launch_line(self):
        g = self.grid; b = self.block
        return f"; @launch kernel={self.name} grid=({g},1,1) block=({b},1,1) lds={self.lds}\n"

HEADER = """; Kernarg layout for this problem (88 bytes, ptrs only, base s[0:1]):
"""
import os, re
STORE_FLAGS = os.environ.get("SC", "sc1")
def build(kernels, path):
    if STORE_FLAGS:
        for k in kernels:
            if k.name in os.environ.get("SCK", "qkv_kernel,att_kernel,wo_kernel,mlp1_kernel").split(","):
                k.L = [(l + " " + STORE_FLAGS) if ("buffer_store_dwordx4" in l and "s[56:59]" not in l) else l for l in k.L]
    src = HEADER
    for k in kernels: src += k.launch_line()
    src += '.amdgcn_target "amdgcn-amd-amdhsa--gfx950"\n.text\n'
    for k in kernels: src += k.text()
    src += '.section .rodata,"a"\n.p2align 6\n'
    for k in kernels: src += k.desc()
    open(path, "w").write(src)
    return src

WS_Q = 0
WS_K = 2 << 20
WS_V = 4 << 20
WS_O = 6 << 20
WS_H = 8 << 20
WS_G = 10 << 20
WS_END = 18 << 20

STAMP_BASE = 64 << 20
def stamp(k, idx, on=True):
    if not on: return
    k(f"s_memtime s[{60+2*idx}:{61+2*idx}]")
def stamp_rt(k, idx):
    k(f"s_memrealtime s[{60+2*idx}:{61+2*idx}]")
KIDX = {"qkv_kernel":0, "att_kernel":1, "wo_kernel":2, "mlp1_kernel":3, "mlp2_kernel":4}
def stamp_flush(k, n, ws_lo, wave_sgpr, nwaves):
    k("s_waitcnt lgkmcnt(0)")
    k(f"s_add_u32 s56, s{ws_lo}, {STAMP_BASE + KIDX.get(k.name, 0)*(1<<20)}")
    k(f"s_addc_u32 s57, s{ws_lo+1}, 0")
    k("s_mov_b32 s58, 0x1000000")
    k("s_mov_b32 s59, 0x00020000")
    k(f"s_mul_i32 s55, s2, {nwaves}")
    k(f"s_add_u32 s55, s55, s{wave_sgpr}")
    k("s_lshl_b32 s55, s55, 6")
    k("v_mov_b32 v1, s55")
    k("s_mov_b64 exec, 1")
    for i in range(n):
        k(f"v_mov_b32 v2, s{60+2*i}")
        k(f"buffer_store_dword v2, v1, s[56:59], 0 offen offset:{4*i}")
    k("s_waitcnt vmcnt(0)")
WS_ST = 17 << 20
WS_CS1 = (17 << 20) + (512 << 10)

def code_prefetch(k, target, ninstr, v0_=100, s0_=70, lane="v1", wave_sgpr=22, wave_val=None, t_sgpr=25):
    if os.environ.get("CPF", "1") != "1": return
    skip = k.label("pcs")
    k(f"s_cmp_lg_u32 s{t_sgpr}, 0")
    k(f"s_cbranch_scc1 {skip}")
    if wave_val is not None:
        k(f"s_cmp_lg_u32 s{wave_sgpr}, {wave_val}")
        k(f"s_cbranch_scc1 {skip}")
    lab = k.label("pc")
    k(f"s_getpc_b64 s[{s0_}:{s0_+1}]")
    k(f"{lab}:")
    k(f"s_add_u32 s{s0_}, s{s0_}, {target}-{lab}")
    k(f"s_addc_u32 s{s0_+1}, s{s0_+1}, 0")
    for i in range(ninstr):
        k(f"v_lshlrev_b32 v{v0_+3}, 7, {lane}")
        if i: k(f"v_add_u32 v{v0_+3}, {i*8192}, v{v0_+3}")
        k(f"v_min_u32 v{v0_+3}, {target}_end-{target}-4, v{v0_+3}")
        k(f"v_mov_b32 v{v0_+1}, s{s0_+1}")
        k(f"v_add_co_u32 v{v0_}, vcc, s{s0_}, v{v0_+3}")
        k("s_nop 1")
        k(f"v_addc_co_u32 v{v0_+1}, vcc, 0, v{v0_+1}, vcc")
        k(f"global_load_dword v{v0_+2}, v[{v0_}:{v0_+1}], off")
    k(f"{skip}:")
```

```python
from dsl import *
from gemm import gemm_core
import os
ROT = os.environ.get("ROT", "0010")
AH = os.environ.get("AH", "2424")

def common_head(k, name, nwg, ST):
    k(f"s_cmp_ge_u32 s2, {nwg}")
    k(f"s_cbranch_scc1 {name}_done")
    if ST: stamp_rt(k, 0)
    stamp(k, 1, ST)

def ids(k):
    k("v_lshrrev_b32 v2, 6, v0")
    k("v_and_b32 v1, 63, v0")
    k("v_readfirstlane_b32 s22, v2")
    if os.environ.get("WREMAP", "1") == "1":
        k("s_nop 3")
        k("s_add_u32 s36, s22, 4")
        k("s_sub_u32 s37, s22, 8")
        k("s_cmp_lt_u32 s22, 8")
        k("s_cselect_b32 s36, s36, s37")
        k("s_cmp_ge_u32 s22, 12")
        k("s_cselect_b32 s22, s22, s36")

def make_g64(kind, ST=False):
    name = kind + "_kernel"
    KS = 32 if kind == "wo" else 112
    NCH = KS // 4
    NS = 8
    SZ = 16384
    k = Kern(name, 256, 768, NS*SZ + 256, 128)
    A_WS = WS_O if kind == "wo" else WS_G
    common_head(k, name, 256, ST)
    k("s_load_dwordx2 s[16:17], s[0:1], 80")
    if kind == "wo":
        k("s_load_dwordx2 s[4:5], s[0:1], 16")
        k("s_load_dwordx2 s[6:7], s[0:1], 0")
        k("s_load_dwordx2 s[48:49], s[0:1], 32")
        k("s_load_dwordx2 s[52:53], s[0:1], 40")
    else:
        k("s_load_dwordx2 s[4:5], s[0:1], 48")
        k("s_load_dwordx4 s[40:43], s[0:1], 56")
    k("s_and_b32 s24, s2, 7")
    k("s_lshr_b32 s25, s2, 3")
    k("s_lshl_b32 s20, s24, 2")
    k("s_and_b32 s26, s25, 3")
    k("s_add_u32 s20, s20, s26")
    k("s_lshr_b32 s21, s25, 2")
    ids(k)
    k(f"s_mul_i32 s29, s21, {NCH}")
    k("s_lshr_b32 s29, s29, 3")
    if ROT[1 if kind == "wo" else 3] == "0": k("s_mov_b32 s29, 0")
    k(f"s_mul_i32 s30, s20, {2*KS*1024}")
    k(f"s_add_u32 s30, s30, {A_WS}")
    k("s_lshl_b32 s32, s21, 7")
    cfg = dict(NTT=2, NG=2, KC=4, NCH=NCH, NS=NS, AHEAD=int(AH[1 if kind == "wo" else 3]), a_mode="frag", a_srd=16, w_srd=8, w_stride=1024, perm="pi",
               a_tile_stride=KS*1024, wave_ntt=1, wave_ng=1, NSET=4, ST=ST)
    def srds_a(k):
        k("s_mov_b32 s18, %d" % WS_END); k("s_mov_b32 s19, 0x00020000")
    def srds_w(k):
        k.srd(8, 4, KS*16*1024)
    EP = 96
    def cons_pre(k):
        k("s_lshr_b32 s23, s22, 1")
        k("s_and_b32 s24, s22, 1")
        k("v_and_b32 v3, 31, v1")
        k("v_lshrrev_b32 v4, 5, v1")
        k("v_lshlrev_b32 v2, 4, v1")
        k("s_lshl_b32 s27, s20, 1")
        k("s_add_u32 s27, s27, s23")
        k("s_waitcnt lgkmcnt(0)")
        k("s_mov_b32 s18, %d" % WS_END); k("s_mov_b32 s19, 0x00020000")
        if kind == "wo": code_prefetch(k, "mlp1_kernel", 1, 120, 80, wave_val=0)
        if os.environ.get("TOUCHA", "0") == "1":
            SH = 2*KS*1024//8
            k("v_lshlrev_b32 v9, 7, v1")
            k(f"s_mul_i32 s26, s21, {SH}")
            k(f"s_mul_i32 s28, s22, {SH//4}")
            k("s_add_u32 s26, s26, s28")
            k("s_add_u32 s26, s26, s30")
            nl = SH//4//128
            if nl < 64:
                k(f"v_min_u32 v9, {(nl-1)*128}, v9")
            k("buffer_load_dword v10, v9, s[16:19], s26 offen")
        if kind == "wo":
            k.srd(12, 6, 2048*1024)
            k("v_lshlrev_b32 v5, 10, v3")
            k("v_lshl_add_u32 v5, v4, 3, v5")
            k("s_lshl_b32 s28, s27, 15")
            k("s_lshl_b32 s26, s21, 7")
            k("s_add_u32 s28, s28, s26")
            k("s_lshl_b32 s26, s24, 6")
            k("s_add_u32 s28, s28, s26")
            for rr in range(4):
                k(f"buffer_load_dwordx2 {vr(EP+2*rr,2)}, v5, s[12:15], s28 offen offset:{rr*16}")
        else:
            k.srd(12, 40, 1024)
            k.srd(44, 42, 2048*1024)
            k("s_lshl_b32 s28, s27, 15")
            k("s_lshl_b32 s26, s21, 12")
            k("s_add_u32 s28, s28, s26")
            k("s_lshl_b32 s26, s24, 11")
            k("s_add_u32 s28, s28, s26")
            k(f"s_add_u32 s28, s28, {WS_H}")
            k(f"buffer_load_dwordx4 {vr(EP,4)}, v2, s[16:19], s28 offen")
            k(f"buffer_load_dwordx4 {vr(EP+4,4)}, v2, s[16:19], s28 offen offset:1024")
            k("v_lshlrev_b32 v5, 3, v4")
            k("s_lshl_b32 s28, s21, 7")
            k("s_lshl_b32 s26, s24, 6")
            k("s_add_u32 s28, s28, s26")
            for rr in range(4):
                k(f"buffer_load_dwordx2 {vr(EP+8+2*rr,2)}, v5, s[12:15], s28 offen offset:{rr*16}")
    def epilogue(k, cfg):
        A0 = cfg["ACC"]; T = 112; PK = 116
        k("s_waitcnt vmcnt(0)")
        k("s_nop 11")
        if kind == "wo":
            for r in range(8):
                d = EP + r
                k(f"v_lshlrev_b32 v{T}, 16, v{d}")
                k(f"v_and_b32 v{T+1}, 0xffff0000, v{d}")
                k(f"v_add_f32 v{A0+2*r}, v{A0+2*r}, v{T}")
                k(f"v_add_f32 v{A0+2*r+1}, v{A0+2*r+1}, v{T+1}")
            for r in range(8):
                k(f"v_cvt_pk_bf16_f32 v{PK+r}, v{A0+2*r}, v{A0+2*r+1}")
            k("s_lshl_b32 s28, s27, 15")
            k("s_lshl_b32 s26, s21, 12")
            k("s_add_u32 s28, s28, s26")
            k("s_lshl_b32 s26, s24, 11")
            k("s_add_u32 s28, s28, s26")
            k(f"s_add_u32 s28, s28, {WS_H}")
            k(f"buffer_store_dwordx4 {vr(PK,4)}, v2, s[16:19], s28 offen")
            k(f"buffer_store_dwordx4 {vr(PK+4,4)}, v2, s[16:19], s28 offen offset:1024")
            k(f"v_add_f32 v{T}, v{A0}, v{A0+1}")
            k(f"v_mul_f32 v{T+1}, v{A0}, v{A0}")
            k(f"v_fmac_f32 v{T+1}, v{A0+1}, v{A0+1}")
            k(f"v_add_f32 v{T+2}, v{A0+2}, v{A0+3}")
            k(f"v_mul_f32 v{T+3}, v{A0+2}, v{A0+2}")
            k(f"v_fmac_f32 v{T+3}, v{A0+3}, v{A0+3}")
            for r in range(4, 16, 2):
                k(f"v_add_f32 v{T+(r&2)}, v{T+(r&2)}, v{A0+r}")
                k(f"v_fmac_f32 v{T+1+(r&2)}, v{A0+r}, v{A0+r}")
                k(f"v_add_f32 v{T+(r&2)}, v{T+(r&2)}, v{A0+r+1}")
                k(f"v_fmac_f32 v{T+1+(r&2)}, v{A0+r+1}, v{A0+r+1}")
            k(f"v_add_f32 v{T}, v{T}, v{T+2}")
            k(f"v_add_f32 v{T+1}, v{T+1}, v{T+3}")
            k(f"v_mov_b32 v{T+2}, v{T}")
            k(f"v_mov_b32 v{T+3}, v{T+1}")
            k("v_lshlrev_b32 v5, 7, v3")
            k("s_lshl_b32 s28, s27, 12")
            k(f"v_permlane32_swap_b32 v{T}, v{T+2}")
            k(f"v_permlane32_swap_b32 v{T+1}, v{T+3}")
            k("s_lshl_b32 s26, s21, 4")
            k("s_add_u32 s28, s28, s26")
            k(f"v_add_f32 v{T}, v{T}, v{T+2}")
            k(f"v_add_f32 v{T+1}, v{T+1}, v{T+3}")
            k("s_lshl_b32 s26, s24, 3")
            k("s_add_u32 s28, s28, s26")
            k(f"s_add_u32 s28, s28, {WS_ST}")
            k("s_mov_b32 exec_hi, 0")
            k(f"buffer_store_dwordx2 v[{T}:{T+1}], v5, s[16:19], s28 offen")
        else:
            for r in range(8):
                k(f"v_lshlrev_b32 v{T}, 16, v{EP+r}")
                k(f"v_and_b32 v{T+1}, 0xffff0000, v{EP+r}")
                k(f"v_lshlrev_b32 v{T+2}, 16, v{EP+8+r}")
                k(f"v_and_b32 v{T+3}, 0xffff0000, v{EP+8+r}")
                k(f"v_add_f32 v{A0+2*r}, v{A0+2*r}, v{T+2}")
                k(f"v_add_f32 v{A0+2*r+1}, v{A0+2*r+1}, v{T+3}")
                k(f"v_add_f32 v{A0+2*r}, v{A0+2*r}, v{T}")
                k(f"v_add_f32 v{A0+2*r+1}, v{A0+2*r+1}, v{T+1}")
            for r in range(8):
                k(f"v_cvt_pk_bf16_f32 v{PK+r}, v{A0+2*r}, v{A0+2*r+1}")
            k("v_lshlrev_b32 v5, 10, v3")
            k("v_lshl_add_u32 v5, v4, 4, v5")
            for pr in range(2):
                k(f"v_permlane32_swap_b32 v{PK+4*pr}, v{PK+2+4*pr}")
                k(f"v_permlane32_swap_b32 v{PK+1+4*pr}, v{PK+3+4*pr}")
            k("s_lshl_b32 s28, s27, 15")
            k("s_lshl_b32 s26, s21, 7")
            k("s_add_u32 s28, s28, s26")
            k("s_lshl_b32 s26, s24, 6")
            k("s_add_u32 s28, s28, s26")
            k(f"buffer_store_dwordx4 {vr(PK,4)}, v5, s[44:47], s28 offen")
            k(f"buffer_store_dwordx4 {vr(PK+4,4)}, v5, s[44:47], s28 offen offset:32")
    hk = dict(srds_a=srds_a, srds_w=srds_w, cons_pre=cons_pre, epilogue=epilogue)
    if kind == "wo":
        XB = NS*SZ
        def prod_pre(k):
            k("v_mov_b32 v28, 0")
            k(f"v_mov_b32 v29, {XB + 128}")
            k("s_mov_b32 s42, 0")
            k("ds_write_b32 v29, v28")
            k("s_waitcnt lgkmcnt(0)")
        def prod_late(k):
            k("s_mov_b32 s50, %d" % (512*3584)); k("s_mov_b32 s51, 0x00020000")
            k("s_and_b32 s40, s2, 7")
            k("s_lshr_b32 s41, s40, 1"); k("s_mul_i32 s41, s41, 28"); k("s_add_u32 s41, s41, s25")
            k("s_and_b32 s40, s40, 1"); k("s_mul_i32 s40, s40, 112"); k("s_add_u32 s41, s41, s40")
            k("s_min_u32 s41, s41, 223")
            k("s_lshl_b32 s43, s41, 4")
            k("s_mul_i32 s44, s23, %d" % (128*3584)); k("s_add_u32 s40, s43, s44")
            k("v_mul_u32_u24 v30, 3584, v1")
            k("buffer_load_dwordx4 v[40:43], v30, s[48:51], s40 offen")
            k("s_add_u32 s40, s40, %d" % (64*3584))
            k("buffer_load_dwordx4 v[44:47], v30, s[48:51], s40 offen")
            k("s_mov_b32 s54, 3584"); k("s_mov_b32 s55, 0x00020000")
            k("v_mov_b32 v31, 0")
            k("buffer_load_dwordx4 v[72:75], v31, s[52:55], s43 offen")
        def prod_post(k):
            lab = k.label("cs")
            k("s_cmp_ge_u32 s25, 28")
            k(f"s_cbranch_scc1 {lab}")
            for q in range(4):
                k(f"v_lshlrev_b32 v{8+2*q}, 16, v{40+q}")
                k(f"v_and_b32 v{9+2*q}, 0xffff0000, v{40+q}")
                k(f"v_lshlrev_b32 v16, 16, v{44+q}")
                k(f"v_and_b32 v17, 0xffff0000, v{44+q}")
                k(f"v_add_f32 v{8+2*q}, v{8+2*q}, v16")
                k(f"v_add_f32 v{9+2*q}, v{9+2*q}, v17")
            for mode in ["row_shr:1", "row_shr:2", "row_shr:4", "row_shr:8", "row_bcast:15 row_mask:0xa", "row_bcast:31 row_mask:0xc"]:
                k("s_nop 1")
                for r in range(8):
                    m = mode if "row_mask" in mode else mode + " row_mask:0xf"
                    k(f"v_add_f32_dpp v{8+r}, v{8+r}, v{8+r} {m} bank_mask:0xf")
            k("s_lshl_b32 s40, s23, 5")
            k(f"s_add_u32 s40, s40, {XB}")
            k("v_mov_b32 v2, s40")
            k("v_mov_b32 v18, 1")
            k("s_mov_b32 exec_lo, 0")
            k("s_mov_b32 exec_hi, 0x80000000")
            k("ds_write_b128 v2, v[8:11]")
            k("ds_write_b128 v2, v[12:15] offset:16")
            k("s_waitcnt lgkmcnt(0)")
            k("ds_add_rtn_u32 v19, v29, v18")
            k("s_waitcnt lgkmcnt(0)")
            k("v_readlane_b32 s42, v19, 63")
            k("s_mov_b64 exec, -1")
            k(f"{lab}:")
        def prod_fin(k):
            lab = k.label("cs")
            k("s_cmp_lg_u32 s42, 3")
            k(f"s_cbranch_scc1 {lab}")
            k("s_mov_b32 exec_lo, 0")
            k("s_mov_b32 exec_hi, 0x80000000")
            k(f"v_mov_b32 v2, {XB}")
            for p_ in range(4):
                k(f"ds_read_b128 {vr(40+8*p_,4)}, v2 offset:{p_*32}")
                k(f"ds_read_b128 {vr(44+8*p_,4)}, v2 offset:{p_*32+16}")
            k("s_waitcnt lgkmcnt(0)")
            for r in range(8):
                k(f"v_add_f32 v{40+r}, v{40+r}, v{48+r}")
                k(f"v_add_f32 v{56+r}, v{56+r}, v{64+r}")
                k(f"v_add_f32 v{40+r}, v{40+r}, v{56+r}")
            for q in range(4):
                k(f"v_lshlrev_b32 v{16+2*q}, 16, v{72+q}")
                k(f"v_and_b32 v{17+2*q}, 0xffff0000, v{72+q}")
            k("s_lshl_b32 s40, s41, 5")
            k(f"s_add_u32 s40, s40, {WS_CS1}")
            k("s_mov_b32 s18, %d" % WS_END); k("s_mov_b32 s19, 0x00020000")
            k("v_mov_b32 v2, 0")
            k("buffer_store_dwordx4 v[40:43], v2, s[16:19], s40 offen")
            k("buffer_store_dwordx4 v[44:47], v2, s[16:19], s40 offen offset:16")
            k("s_add_u32 s40, s40, 8192")
            k("buffer_store_dwordx4 v[16:19], v2, s[16:19], s40 offen")
            k("buffer_store_dwordx4 v[20:23], v2, s[16:19], s40 offen offset:16")
            k("s_mov_b64 exec, -1")
            k(f"{lab}:")
        hk.update(prod_pre=prod_pre, prod_mid=prod_late, prod_chunk_post=lambda k, c, slot: prod_post(k) if c == 6 else None, prod_post=prod_fin)
        cfg["NMID"] = 3; cfg["MID_AT"] = 5
    gemm_core(k, name, cfg, hk)
    assert cfg["FREE"] <= EP
    k(f"{name}_done:")
    k("s_endpgm")
    return k

def colsum_chunk(k, addr_regs, slot, kstride, second, acc):
    for s_ in range(4):
        off = slot + s_*kstride
        hi = off >> 16; lo = off & 0xffff
        if lo + second > 65535: hi += 1; lo -= 65536
        assert lo >= 0
        k(f"ds_read_b64_tr_b16 {vr(32+4*s_,2)}, v{addr_regs[hi]} offset:{lo}")
        k(f"ds_read_b64_tr_b16 {vr(34+4*s_,2)}, v{addr_regs[hi]} offset:{lo+second}")
    for s_ in range(4):
        k(f"s_waitcnt lgkmcnt({2*(3-s_)})")
        for q in range(4):
            r = 32 + 4*s_ + q; t = 48 + 2*(q & 1)
            k(f"v_lshlrev_b32 v{t}, 16, v{r}")
            k(f"v_and_b32 v{t+1}, 0xffff0000, v{r}")
            k(f"v_pk_add_f32 v[{acc}:{acc+1}], v[{acc}:{acc+1}], v[{t}:{t+1}]")

def make_mlp1(ST=False):
    name = "mlp1_kernel"
    NS = 4; SZ = 32768; CSB = NS*SZ; STB = CSB + 1024
    k = Kern(name, 224, 768, CSB + 1024 + 2048, 128)
    common_head(k, name, 224, ST)
    k("s_load_dwordx2 s[16:17], s[0:1], 80")
    k("s_load_dwordx4 s[4:7], s[0:1], 32")
    k("s_load_dwordx2 s[44:45], s[0:1], 48")
    k("s_and_b32 s24, s2, 7")
    k("s_lshr_b32 s25, s2, 3")
    k("s_lshr_b32 s20, s24, 1")
    k("s_lshl_b32 s20, s20, 2")
    k("s_and_b32 s26, s25, 3")
    k("s_add_u32 s20, s20, s26")
    k("s_and_b32 s21, s24, 1")
    k("s_mul_i32 s21, s21, 7")
    k("s_lshr_b32 s29, s25, 2")
    k("s_add_u32 s21, s21, s29")
    if ROT[2] == "0": k("s_mov_b32 s29, 0")
    ids(k)
    k("s_lshl_b32 s30, s20, 17")
    k(f"s_add_u32 s30, s30, {WS_H}")
    k("s_lshl_b32 s32, s21, 8")
    cfg = dict(NTT=4, NG=4, KC=4, NCH=8, NS=NS, AHEAD=2, a_mode="frag", a_srd=16, w_srd=8, w_stride=3584, perm="pi",
               a_tile_stride=32768, wave_ntt=2, wave_ng=2, NSET=2, ST=ST)
    def srds_a(k):
        k("s_mov_b32 s18, %d" % WS_END); k("s_mov_b32 s19, 0x00020000")
    def srds_w(k):
        k.srd(8, 4, 512*3584)
    C0 = -2.0 * 1.4426950408889634 * 0.7978845608028654
    C1 = C0 * 0.044715
    def aprod_pre(k):
        k("v_and_b32 v3, 31, v1")
        k("v_lshrrev_b32 v4, 5, v1")
        k("v_lshlrev_b32 v6, 7, v3")
        k("v_lshl_add_u32 v6, v4, 6, v6")
        k("s_lshl_b32 s27, s20, 2")
        k("s_add_u32 s27, s27, s23")
        k("s_lshl_b32 s31, s27, 12")
        k(f"s_add_u32 s31, s31, {WS_ST}")
        for q in range(4):
            k(f"buffer_load_dwordx4 {vr(64+4*q,4)}, v6, s[16:19], s31 offen offset:{q*16}")
    def aprod_init(k, nafter):
        b = 64
        k(f"s_waitcnt vmcnt({nafter})")
        for q in range(1, 8):
            k(f"v_add_f32 v{b}, v{b}, v{b+2*q}")
            k(f"v_add_f32 v{b+1}, v{b+1}, v{b+1+2*q}")
        k(f"v_mov_b32 v{b+2}, v{b}")
        k(f"v_mov_b32 v{b+3}, v{b+1}")
        k("s_nop 1")
        k(f"v_permlane32_swap_b32 v{b}, v{b+2}")
        k(f"v_permlane32_swap_b32 v{b+1}, v{b+3}")
        k("s_nop 0")
        k(f"v_add_f32 v{b}, v{b}, v{b+2}")
        k(f"v_add_f32 v{b+1}, v{b+1}, v{b+3}")
        k(f"v_mul_f32 v{b}, {f32(1/512)}, v{b}")
        k(f"v_mul_f32 v{b+1}, {f32(1/512)}, v{b+1}")
        k(f"v_fma_f32 v{b+1}, -v{b}, v{b}, v{b+1}")
        k(f"v_max_f32 v{b+1}, 0, v{b+1}")
        k(f"v_add_f32 v{b+2}, {f32(1e-5)}, v{b+1}")
        k(f"v_rsq_f32 v{b+3}, v{b+2}")
        k(f"v_sub_f32 v{b+9}, 0, v{b}")
        k(f"v_mul_f32 v{b+4}, v{b+3}, v{b+3}")
        k(f"v_mul_f32 v{b+4}, v{b+4}, v{b+1}")
        k(f"v_add_f32 v{b+4}, {f32(1e-5)}, v{b+4}")
        k(f"v_rsq_f32 v{b+4}, v{b+4}")
        k("s_nop 0")
        k(f"v_mul_f32 v{b+5}, v{b+3}, v{b+4}")
        k(f"v_rcp_f32 v{b+8}, v{b+5}")
        k(f"v_mul_f32 v{b+10}, {f32(C0)}, v{b+5}")
        k(f"v_mul_f32 v{b+11}, v{b+5}, v{b+5}")
        k(f"v_mul_f32 v{b+11}, v{b+11}, v{b+5}")
        k(f"v_mul_f32 v{b+11}, {f32(C1)}, v{b+11}")
        k("v_lshlrev_b32 v5, 4, v3")
        k("s_lshl_b32 s26, s23, 9")
        k(f"s_add_u32 s26, s26, {STB}")
        k("v_add_u32 v5, s26, v5")
        k(f"ds_write_b128 v5, {vr(b+8,4)}")
        k("s_waitcnt lgkmcnt(0)")
        k("s_barrier")
    def aprod_post(k):
        if os.environ.get("PFW2", "1") == "1":
            k("s_mov_b32 s46, %d" % (1792*1024)); k("s_mov_b32 s47, 0x00020000")
            k("v_lshlrev_b32 v7, 7, v1")
            k("s_lshl_b32 s26, s25, 2"); k("s_add_u32 s26, s26, s23"); k("s_lshl_b32 s26, s26, 14")
            k("buffer_load_dword v8, v7, s[44:47], s26 offen")
            k("s_add_u32 s26, s26, 8192")
            k("buffer_load_dword v8, v7, s[44:47], s26 offen")
    def prod_pre(k):
        k("v_and_b32 v9, 31, v1")
        k("v_lshlrev_b32 v11, 2, v9")
        k("s_mov_b32 s18, %d" % WS_END); k("s_mov_b32 s19, 0x00020000")
        k("s_lshl_b32 s26, s21, 9")
        k("s_lshl_b32 s27, s23, 7")
        k("s_add_u32 s26, s26, s27")
        k(f"s_add_u32 s26, s26, {WS_CS1}")
        k("buffer_load_dword v24, v11, s[16:19], s26 offen")
        k("s_add_u32 s26, s26, 8192")
        k("buffer_load_dword v20, v11, s[16:19], s26 offen")
    def prod_init(k, nafter):
        k(f"s_waitcnt vmcnt({nafter})")
        k("s_lshl_b32 s26, s23, 7")
        k(f"s_add_u32 s26, s26, {CSB}")
        k("v_add_u32 v5, s26, v11")
        k("ds_write_b32 v5, v20 offset:512")
        k("ds_write_b32 v5, v24")
        k("s_waitcnt lgkmcnt(0)")
        k("s_barrier")
    def cons_pre(k):
        k("s_and_b32 s23, s22, 2")
        k("s_and_b32 s24, s22, 1")
        k("s_lshl_b32 s24, s24, 1")
        k("v_and_b32 v3, 31, v1")
        k("v_lshrrev_b32 v4, 5, v1")
        k("v_lshlrev_b32 v2, 4, v1")
        k("s_lshl_b32 s27, s20, 2")
        k("s_add_u32 s27, s27, s23")
        k("s_waitcnt lgkmcnt(0)")
        k("s_mov_b32 s18, %d" % WS_END); k("s_mov_b32 s19, 0x00020000")
        code_prefetch(k, "mlp2_kernel", 1, 124, 80, wave_val=0)
    def acc_init(k, cfg):
        ACC = cfg["ACC"]
        k("v_lshlrev_b32 v5, 4, v4")
        k("s_lshl_b32 s26, s24, 7")
        k(f"s_add_u32 s26, s26, {CSB}")
        k("v_add_u32 v5, s26, v5")
        k("v_lshlrev_b32 v6, 4, v3")
        k("s_lshl_b32 s26, s23, 9")
        k(f"s_add_u32 s26, s26, {STB}")
        k("v_add_u32 v6, s26, v6")
        k("s_barrier")
        F = 28
        k(f"ds_read_b128 v[8:11], v6")
        k(f"ds_read_b128 v[12:15], v6 offset:512")
        P2 = lambda b, r: vr(b+2*r, 2)
        for g in range(2):
            for rr in range(4):
                k(f"ds_read_b128 {vr(ACC+16*g+4*rr,4)}, v5 offset:{512+g*128+rr*32}")
                k(f"ds_read_b128 {vr(ACC+32+16*g+4*rr,4)}, v5 offset:{g*128+rr*32}")
        k("s_waitcnt lgkmcnt(15)")
        k("s_waitcnt lgkmcnt(8)")
        for i in range(2):
            k(f"v_mov_b32 v{F+8+4*i}, v{8+4*i}")
            k(f"v_mov_b32 v{F+9+4*i}, v{8+4*i}")
            k(f"v_mov_b32 v{F+10+4*i}, v{9+4*i}")
            k(f"v_mov_b32 v{F+11+4*i}, v{9+4*i}")
        T = F + 16
        for g in range(2):
            if g == 1: k("s_waitcnt lgkmcnt(0)")
            B = ACC + 16*g; C = ACC + 32 + 16*g
            for r in range(8): k(f"v_pk_mul_f32 {P2(T,r)}, {P2(B,r)}, {vr(F+12,2)}")
            for r in range(8): k(f"v_pk_mul_f32 {P2(B,r)}, {P2(B,r)}, {vr(F+8,2)}")
            for r in range(8): k(f"v_pk_fma_f32 {P2(B,r)}, {P2(C,r)}, {vr(F+10,2)}, {P2(B,r)}")
            for r in range(8): k(f"v_pk_fma_f32 {P2(C,r)}, {P2(C,r)}, {vr(F+14,2)}, {P2(T,r)}")
    def epilogue(k, cfg):
        ACC = cfg["ACC"]
        k(f"s_mul_i32 s30, s27, {112*1024}")
        k("s_lshl_b32 s26, s21, 13")
        k("s_add_u32 s30, s30, s26")
        k("s_lshl_b32 s26, s24, 11")
        k("s_add_u32 s30, s30, s26")
        k(f"s_add_u32 s30, s30, {WS_G}")
        for i in range(2):
            for j, src in enumerate([8+4*i, 10+4*i, 11+4*i]):
                k(f"v_mov_b32 v{16+6*i+2*j}, v{src}")
                k(f"v_mov_b32 v{17+6*i+2*j}, v{src}")
        P2 = lambda b, r: vr(b+2*r, 2)
        T = [28, 44]
        order = [(0,0), (1,0), (0,1), (1,1)]
        def stage1(n):
            i, g = order[n]; acc = ACC + 16*(i*2+g); TT = T[n & 1]; c = 16 + 6*i
            for r in range(8): k(f"v_pk_mul_f32 {P2(TT,r)}, {P2(acc,r)}, {P2(acc,r)}")
            for r in range(8): k(f"v_pk_fma_f32 {P2(TT,r)}, {P2(TT,r)}, {vr(c+4,2)}, {vr(c+2,2)}")
            for r in range(8): k(f"v_pk_mul_f32 {P2(TT,r)}, {P2(TT,r)}, {P2(acc,r)}")
        def stage2(n):
            i, g = order[n]; acc = ACC + 16*(i*2+g); TT = T[n & 1]; c = 16 + 6*i
            for r in range(16): k(f"v_exp_f32 v{TT+r}, v{TT+r}")
            for r in range(8): k(f"v_pk_fma_f32 {P2(TT,r)}, {P2(TT,r)}, {vr(c,2)}, {vr(c,2)}")
            for r in range(16): k(f"v_rcp_f32 v{TT+r}, v{TT+r}")
            for r in range(8): k(f"v_pk_mul_f32 {P2(acc,r)}, {P2(acc,r)}, {P2(TT,r)}")
            for r in range(8): k(f"v_cvt_pk_bf16_f32 v{acc+r}, v{acc+2*r}, v{acc+2*r+1}")
            k(f"s_add_u32 s26, s30, {i*112*1024 + g*2048}")
            k(f"buffer_store_dwordx4 {vr(acc,4)}, v2, s[16:19], s26 offen")
            k(f"buffer_store_dwordx4 {vr(acc+4,4)}, v2, s[16:19], s26 offen offset:1024")
        for n in range(4):
            stage1(n); stage2(n)
    gemm_core(k, name, cfg, dict(srds_a=srds_a, srds_w=srds_w, aprod_pre=aprod_pre, aprod_init=aprod_init, aprod_post=aprod_post, prod_pre=prod_pre, prod_init=prod_init,
                                 cons_pre=cons_pre, acc_init=acc_init, epilogue=epilogue))
    assert cfg["FREE"] <= 128 and cfg["ACC"] == 60
    k(f"{name}_done:")
    k("s_endpgm")
    return k

def make_qkv(ST=False):
    name = "qkv_kernel"
    NS = 5; SZ = 16384 + 12288
    SCR = NS*SZ; CSB = SCR + 16384; STB = CSB + 512
    ONES = 10; CSA = 112
    k = Kern(name, 256, 1024, 163840, 128)
    common_head(k, name, 256, ST)
    k("s_load_dwordx4 s[4:7], s[0:1], 0")
    k("s_load_dwordx2 s[16:17], s[0:1], 80")
    if os.environ.get("SELFPF", "1") == "1":
        sk = k.label("spf")
        k("s_cmp_ge_u32 s2, 8")
        k(f"s_cbranch_scc1 {sk}")
        lab = k.label("pc")
        k("s_getpc_b64 s[80:81]")
        k(f"{lab}:")
        k(f"s_sub_u32 s80, s80, {lab}-qkv_kernel")
        k("s_subb_u32 s81, s81, 0")
        k("v_lshlrev_b32 v103, 7, v0")
        k("v_min_u32 v103, qkv_kernel_end-qkv_kernel-4, v103")
        k("v_mov_b32 v101, s81")
        k("v_add_co_u32 v100, vcc, s80, v103")
        k("s_nop 1")
        k("v_addc_co_u32 v101, vcc, 0, v101, vcc")
        k("v_cmp_gt_u32 vcc, 128, v0")
        k("s_nop 1")
        k("s_and_saveexec_b64 s[84:85], vcc")
        k(f"s_cbranch_execz {sk}r")
        k("global_load_dword v102, v[100:101], off")
        k(f"{sk}r:")
        k("s_mov_b64 exec, s[84:85]")
        k(f"{sk}:")
    k("s_and_b32 s24, s2, 7")
    k("s_lshr_b32 s25, s2, 3")
    k("s_lshr_b32 s20, s24, 1")
    k("s_lshl_b32 s20, s20, 2")
    k("s_and_b32 s26, s25, 3")
    k("s_add_u32 s20, s20, s26")
    k("s_and_b32 s21, s24, 1")
    k("s_lshl_b32 s21, s21, 3")
    k("s_lshr_b32 s27, s25, 2")
    k("s_add_u32 s21, s21, s27")
    k("s_lshl_b32 s26, s26, 1")
    k("s_add_u32 s29, s26, s27")
    k("s_and_b32 s29, s29, 7")
    if ROT[0] == "0": k("s_mov_b32 s29, 0")
    ids(k)
    k("s_lshl_b32 s30, s20, 17")
    k("s_mul_i32 s32, s21, 192")
    cfg = dict(NTT=4, NG=3, KC=4, NCH=8, NS=NS, AHEAD=int(AH[0]), a_mode="rows", a_srd=8, w_srd=12, w_stride=3072, perm="nat",
               wave_ntt=1, wave_ng=3, NSET=2, ST=ST, NVAR=3)
    def srds_a(k):
        k.srd(8, 4, 2048*1024)
    def srds_w(k):
        k.srd(12, 6, 512*3072)
    def helper_pre(k):
        code_prefetch(k, "att_kernel", 2, 100, 80, wave_val=12)
        if os.environ.get("TLB", "0") == "1":
            lab = k.label("tlb")
            k("s_cmp_lg_u32 s25, 0")
            k(f"s_cbranch_scc1 {lab}")
            k("s_cmp_lg_u32 s23, 3")
            k(f"s_cbranch_scc1 {lab}")
            k("s_load_dwordx4 s[40:43], s[0:1], 16")
            k("s_load_dwordx8 s[44:51], s[0:1], 32")
            k("s_load_dwordx2 s[52:53], s[0:1], 64")
            k("s_waitcnt lgkmcnt(0)")
            k("s_mov_b32 s18, %d" % WS_END); k("s_mov_b32 s19, 0x00020000")
            k("v_lshlrev_b32 v100, 21, v1")
            k("buffer_load_dword v101, v100, s[16:19], 0 offen")
            k("v_mov_b32 v100, 0")
            for base, size in [(40, 512*1024), (44, 512*3584), (46, 3584), (48, 1792*1024), (50, 1024), (52, 2048*1024)]:
                k.srd(56, base, size)
                k("buffer_load_dword v101, v100, s[56:59], 0 offen")
            k(f"{lab}:")
        if os.environ.get("TOUCH", "0") == "1":
            k("s_waitcnt lgkmcnt(0)")
            k.srd(8, 4, 2048*1024)
            k.srd(12, 6, 512*3072)
            k("s_and_b32 s40, s25, 3")
            k("s_lshr_b32 s41, s25, 2")
            lab = k.label("t"); lab2 = k.label("t")
            k("s_cmp_ge_u32 s23, 2")
            k(f"s_cbranch_scc1 {lab}")
            k("v_lshlrev_b32 v40, 7, v1")
            k("s_lshl_b32 s42, s41, 14"); k("s_lshl_b32 s43, s23, 13"); k("s_add_u32 s42, s42, s43"); k("s_add_u32 s42, s42, s30")
            k("buffer_load_dword v41, v40, s[8:11], s42 offen")
            k(f"{lab}:")
            k("v_lshrrev_b32 v40, 1, v1")
            k("v_mul_u32_u24 v40, 3072, v40")
            k("v_and_b32 v42, 1, v1")
            k("v_lshl_add_u32 v40, v42, 7, v40")
            k("s_lshl_b32 s42, s40, 7"); k("s_lshl_b32 s43, s23, 5"); k("s_add_u32 s42, s42, s43"); k("s_mul_i32 s42, s42, 3072"); k("s_add_u32 s42, s42, s32")
            k("buffer_load_dword v41, v40, s[12:15], s42 offen")
        k("v_lshrrev_b32 v4, 5, v1")
        k("v_and_b32 v5, 31, v1")
        k("v_bfe_u32 v6, v1, 1, 3")
        k("v_xor_b32 v6, v6, v4")
        k("v_lshlrev_b32 v6, 4, v6")
        k("v_lshl_add_u32 v6, v5, 7, v6")
        k("s_lshl_b32 s26, s23, 12")
        k("v_add_u32 v20, s26, v6")
        for s_ in range(1, 4): k(f"v_xor_b32 v{20+s_}, {s_*32}, v20")
        for s_ in range(4): k(f"v_add_u32 v{24+s_}, 0x10000, v{20+s_}")
        for r in range(28, 32): k(f"v_mov_b32 v{r}, 0")
    def stat_ops(k, base):
        for s_ in range(4):
            for q in range(4):
                r = base + 4*s_ + q
                t = 64 + 2*(q & 1)
                k(f"v_lshlrev_b32 v{t}, 16, v{r}")
                k(f"v_and_b32 v{t+1}, 0xffff0000, v{r}")
                k(f"v_add_f32 v28, v28, v{t}")
                k(f"v_add_f32 v29, v29, v{t+1}")
                k(f"v_fmac_f32 v30, v{t}, v{t}")
                k(f"v_fmac_f32 v31, v{t+1}, v{t+1}")
    def helper_chunk(k, c, slot):
        base = 32 + 16*(c & 1)
        for s_ in range(4):
            if slot >= 65536: k(f"ds_read_b128 {vr(base+4*s_,4)}, v{24+s_} offset:{slot-65536}")
            else: k(f"ds_read_b128 {vr(base+4*s_,4)}, v{20+s_} offset:{slot}")
        if c > 0: stat_ops(k, 32 + 16*((c-1) & 1))
        k("s_waitcnt lgkmcnt(0)")
        if c == 7: stat_ops(k, base)
    def helper_post(k):
        k("v_add_f32 v28, v28, v29")
        k("v_add_f32 v30, v30, v31")
        k("v_mov_b32 v29, v28")
        k("v_mov_b32 v31, v30")
        k("s_nop 1")
        k("v_permlane32_swap_b32 v28, v29")
        k("v_permlane32_swap_b32 v30, v31")
        k("s_nop 0")
        k("v_add_f32 v28, v28, v29")
        k("v_add_f32 v30, v30, v31")
        k(f"v_mul_f32 v28, {f32(1/512)}, v28")
        k(f"v_mul_f32 v30, {f32(1/512)}, v30")
        k("v_fma_f32 v30, -v28, v28, v30")
        k("v_max_f32 v30, 0, v30")
        k(f"v_add_f32 v30, {f32(1e-5)}, v30")
        k("v_rsq_f32 v30, v30")
        k("v_lshlrev_b32 v5, 3, v1")
        k("v_mul_f32 v31, v28, v30")
        k("v_sub_f32 v31, 0, v31")
        k("s_lshl_b32 s26, s23, 9")
        k(f"s_add_u32 s26, s26, {STB}")
        k("v_add_u32 v5, s26, v5")
        k("ds_write_b64 v5, v[30:31]")
        k("s_waitcnt lgkmcnt(0)")
        k("s_barrier")
    def cons_pre(k):
        k("s_mov_b32 s23, s22")
        k("s_mov_b32 s24, 0")
        k("v_and_b32 v3, 31, v1")
        k("v_lshrrev_b32 v4, 5, v1")
        k("v_lshlrev_b32 v2, 4, v1")
        for r in range(4): k(f"v_mov_b32 v{ONES+r}, 0x3f803f80")
        for r in range(16): k(f"v_mov_b32 v{CSA+r}, 0")
        k("s_min_u32 s36, s22, 2")
        k("s_waitcnt lgkmcnt(0)")
        k("s_mov_b32 s18, %d" % (6 << 20)); k("s_mov_b32 s19, 0x00020000")
    def after_step(k, s_, fwf):
        k(f"v_mfma_f32_32x32x16_bf16 {vr(CSA,16)}, {vr(fwf(cfg['VAR']),4)}, {vr(ONES,4)}, {vr(CSA,16)}")
    def epilogue(k, cfg):
        ACC = cfg["ACC"]
        k("v_lshlrev_b32 v5, 4, v4")
        k("s_lshl_b32 s26, s36, 7")
        k(f"s_add_u32 s26, s26, {CSB}")
        k("v_add_u32 v11, s26, v5")
        k("s_mov_b32 exec_lo, 1")
        k("s_mov_b32 exec_hi, 1")
        k("s_nop 4")
        for rr in range(4):
            k(f"ds_write_b128 v11, {vr(CSA+4*rr,4)} offset:{rr*32}")
        k("s_mov_b64 exec, -1")
        k("s_lshl_b32 s27, s20, 2")
        k("s_add_u32 s27, s27, s22")
        k("s_lshl_b32 s27, s27, 10")
        k("s_mul_i32 s28, s21, 3")
        QS = 0.25 * 1.4426950408889634
        k("s_lshl_b32 s31, s22, 13")
        k("v_mul_u32_u24 v6, 72, v3")
        k("v_lshl_add_u32 v6, v4, 3, v6")
        k("v_add_u32 v6, s31, v6")
        k("v_bfe_u32 v7, v1, 2, 2")
        k("v_lshl_add_u32 v8, v4, 2, v7")
        k("v_mul_u32_u24 v8, 72, v8")
        k("v_bfe_u32 v7, v1, 4, 1")
        k("v_lshl_add_u32 v8, v7, 5, v8")
        k("v_and_b32 v7, 3, v1")
        k("v_lshl_add_u32 v8, v7, 3, v8")
        k("v_add_u32 v8, s31, v8")
        k("v_bfe_u32 v9, v1, 4, 1")
        k("v_lshlrev_b32 v9, 16, v9")
        k("v_lshl_add_u32 v9, v4, 8, v9")
        k("v_and_b32 v7, 15, v1")
        k("v_lshl_add_u32 v9, v7, 4, v9")
        k("v_lshlrev_b32 v5, 4, v4")
        k(f"v_add_u32 v5, {CSB}, v5")
        k("v_lshlrev_b32 v10, 3, v1")
        k("s_lshl_b32 s26, s22, 9")
        k(f"s_add_u32 s26, s26, {STB}")
        k("v_add_u32 v10, s26, v10")
        k("s_waitcnt lgkmcnt(0)")
        k("s_barrier")
        k("ds_read_b64 v[12:13], v10")
        CSR = [16, 32, 48]
        for g in range(3):
            for rr in range(4):
                k(f"ds_read_b128 {vr(CSR[g]+4*rr,4)}, v5 offset:{g*128+rr*32}")
        P2 = lambda b, r: vr(b+2*r, 2)
        for g in range(3):
            acc = ACC + 16*g; cs = CSR[g]
            lq = k.label("q"); lv = k.label("v"); le = k.label("e")
            k(f"s_add_u32 s33, s28, {g}")
            k(f"s_waitcnt lgkmcnt({8-4*g})")
            k("v_mov_b32 v114, v12")
            k("v_mov_b32 v116, v13")
            k("s_cmp_ge_u32 s33, 16")
            k(f"s_cbranch_scc1 {lq}")
            k(f"v_mul_f32 v114, {f32(QS)}, v114")
            k(f"v_mul_f32 v116, {f32(QS)}, v116")
            k(f"{lq}:")
            k("v_mov_b32 v115, v114")
            k("v_mov_b32 v117, v116")
            for r in range(8): k(f"v_pk_mul_f32 {P2(cs,r)}, {P2(cs,r)}, v[116:117]")
            for r in range(8): k(f"v_pk_fma_f32 {P2(acc,r)}, {P2(acc,r)}, v[114:115], {P2(cs,r)}")
            for r in range(8): k(f"v_cvt_pk_bf16_f32 v{acc+r}, v{acc+2*r}, v{acc+2*r+1}")
            k("s_lshr_b32 s34, s33, 4")
            k("s_lshl_b32 s34, s34, 21")
            k("s_and_b32 s35, s33, 15")
            k("s_lshl_b32 s35, s35, 17")
            k("s_add_u32 s34, s34, s35")
            k("s_add_u32 s34, s34, s27")
            k(f"s_mov_b32 s{40+g}, s34")
            k("s_cmp_ge_u32 s33, 32")
            k(f"s_cbranch_scc1 {lv}")
            k(f"buffer_store_dwordx4 {vr(acc,4)}, v2, s[16:19], s34 offen")
            k("s_add_u32 s34, s34, 65536")
            k(f"buffer_store_dwordx4 {vr(acc+4,4)}, v2, s[16:19], s34 offen")
            k(f"s_branch {le}")
            k(f"{lv}:")
            for rr in range(4):
                k(f"ds_write_b64 v6, {vr(acc+2*rr,2)} offset:{g*2304+rr*16}")
            k(f"{le}:")
        lend = k.label("ve")
        k("s_add_u32 s33, s28, 2")
        k("s_cmp_lt_u32 s33, 32")
        k(f"s_cbranch_scc1 {lend}")
        k("s_waitcnt lgkmcnt(0)")
        for g in range(3):
            acc = ACC + 16*g
            for j in range(2):
                k(f"ds_read_b64_tr_b16 {vr(acc+8+4*j,2)}, v8 offset:{g*2304+j*16*72}")
                k(f"ds_read_b64_tr_b16 {vr(acc+8+4*j+2,2)}, v8 offset:{g*2304+j*16*72+8*72}")
        for g in range(3):
            acc = ACC + 16*g
            ls = k.label("vs")
            k(f"s_waitcnt lgkmcnt({8-4*g})")
            k(f"s_add_u32 s33, s28, {g}")
            k("s_cmp_lt_u32 s33, 32")
            k(f"s_cbranch_scc1 {ls}")
            k(f"buffer_store_dwordx4 {vr(acc+8,4)}, v9, s[16:19], s{40+g} offen")
            k(f"buffer_store_dwordx4 {vr(acc+12,4)}, v9, s[16:19], s{40+g} offen offset:512")
            k(f"{ls}:")
        k(f"{lend}:")
    gemm_core(k, name, cfg, dict(srds_a=srds_a, srds_w=srds_w,
                                 helper_pre=helper_pre, helper_chunk=helper_chunk, helper_post=helper_post,
                                 cons_pre=cons_pre, pre_step=after_step, epilogue=epilogue))
    assert cfg["FREE"] <= 112 and cfg["ACC"] == 64
    k(f"{name}_done:")
    k("s_endpgm")
    return k
```

```python
from dsl import *
from gemm import gemm_core
import os
ROT = os.environ.get("ROT", "0010")
AH = os.environ.get("AH", "2424")

def common_head(k, name, nwg, ST):
    k(f"s_cmp_ge_u32 s2, {nwg}")
    k(f"s_cbranch_scc1 {name}_done")
    if ST: stamp_rt(k, 0)
    stamp(k, 1, ST)

def ids(k):
    k("v_lshrrev_b32 v2, 6, v0")
    k("v_and_b32 v1, 63, v0")
    k("v_readfirstlane_b32 s22, v2")
    if os.environ.get("WREMAP", "1") == "1":
        k("s_nop 3")
        k("s_add_u32 s36, s22, 4")
        k("s_sub_u32 s37, s22, 8")
        k("s_cmp_lt_u32 s22, 8")
        k("s_cselect_b32 s36, s36, s37")
        k("s_cmp_ge_u32 s22, 12")
        k("s_cselect_b32 s22, s22, s36")

def make_g64(kind, ST=False):
    name = kind + "_kernel"
    KS = 32 if kind == "wo" else 112
    NCH = KS // 4
    NS = 8
    SZ = 16384
    k = Kern(name, 256, 768, NS*SZ + 256, 128)
    A_WS = WS_O if kind == "wo" else WS_G
    common_head(k, name, 256, ST)
    k("s_load_dwordx2 s[16:17], s[0:1], 80")
    if kind == "wo":
        k("s_load_dwordx2 s[4:5], s[0:1], 16")
        k("s_load_dwordx2 s[6:7], s[0:1], 0")
        k("s_load_dwordx2 s[48:49], s[0:1], 32")
        k("s_load_dwordx2 s[52:53], s[0:1], 40")
    else:
        k("s_load_dwordx2 s[4:5], s[0:1], 48")
        k("s_load_dwordx4 s[40:43], s[0:1], 56")
    k("s_and_b32 s24, s2, 7")
    k("s_lshr_b32 s25, s2, 3")
    k("s_lshl_b32 s20, s24, 2")
    k("s_and_b32 s26, s25, 3")
    k("s_add_u32 s20, s20, s26")
    k("s_lshr_b32 s21, s25, 2")
    ids(k)
    k(f"s_mul_i32 s29, s21, {NCH}")
    k("s_lshr_b32 s29, s29, 3")
    if ROT[1 if kind == "wo" else 3] == "0": k("s_mov_b32 s29, 0")
    k(f"s_mul_i32 s30, s20, {2*KS*1024}")
    k(f"s_add_u32 s30, s30, {A_WS}")
    k("s_lshl_b32 s32, s21, 7")
    cfg = dict(NTT=2, NG=2, KC=4, NCH=NCH, NS=NS, AHEAD=int(AH[1 if kind == "wo" else 3]), a_mode="frag", a_srd=16, w_srd=8, w_stride=1024, perm="pi",
               a_tile_stride=KS*1024, wave_ntt=1, wave_ng=1, NSET=4, ST=ST)
    def srds_a(k):
        k("s_mov_b32 s18, %d" % WS_END); k("s_mov_b32 s19, 0x00020000")
    def srds_w(k):
        k.srd(8, 4, KS*16*1024)
    EP = 96
    def cons_pre(k):
        k("s_lshr_b32 s23, s22, 1")
        k("s_and_b32 s24, s22, 1")
        k("v_and_b32 v3, 31, v1")
        k("v_lshrrev_b32 v4, 5, v1")
        k("v_lshlrev_b32 v2, 4, v1")
        k("s_lshl_b32 s27, s20, 1")
        k("s_add_u32 s27, s27, s23")
        k("s_waitcnt lgkmcnt(0)")
        k("s_mov_b32 s18, %d" % WS_END); k("s_mov_b32 s19, 0x00020000")
        if kind == "wo": code_prefetch(k, "mlp1_kernel", 1, 120, 80, wave_val=0)
        if os.environ.get("TOUCHA", "0") == "1":
            SH = 2*KS*1024//8
            k("v_lshlrev_b32 v9, 7, v1")
            k(f"s_mul_i32 s26, s21, {SH}")
            k(f"s_mul_i32 s28, s22, {SH//4}")
            k("s_add_u32 s26, s26, s28")
            k("s_add_u32 s26, s26, s30")
            nl = SH//4//128
            if nl < 64:
                k(f"v_min_u32 v9, {(nl-1)*128}, v9")
            k("buffer_load_dword v10, v9, s[16:19], s26 offen")
        if kind == "wo":
            k.srd(12, 6, 2048*1024)
            k("v_lshlrev_b32 v5, 10, v3")
            k("v_lshl_add_u32 v5, v4, 3, v5")
            k("s_lshl_b32 s28, s27, 15")
            k("s_lshl_b32 s26, s21, 7")
            k("s_add_u32 s28, s28, s26")
            k("s_lshl_b32 s26, s24, 6")
            k("s_add_u32 s28, s28, s26")
            for rr in range(4):
                k(f"buffer_load_dwordx2 {vr(EP+2*rr,2)}, v5, s[12:15], s28 offen offset:{rr*16}")
        else:
            k.srd(12, 40, 1024)
            k.srd(44, 42, 2048*1024)
            k("s_lshl_b32 s28, s27, 15")
            k("s_lshl_b32 s26, s21, 12")
            k("s_add_u32 s28, s28, s26")
            k("s_lshl_b32 s26, s24, 11")
            k("s_add_u32 s28, s28, s26")
            k(f"s_add_u32 s28, s28, {WS_H}")
            k(f"buffer_load_dwordx4 {vr(EP,4)}, v2, s[16:19], s28 offen")
            k(f"buffer_load_dwordx4 {vr(EP+4,4)}, v2, s[16:19], s28 offen offset:1024")
            k("v_lshlrev_b32 v5, 3, v4")
            k("s_lshl_b32 s28, s21, 7")
            k("s_lshl_b32 s26, s24, 6")
            k("s_add_u32 s28, s28, s26")
            for rr in range(4):
                k(f"buffer_load_dwordx2 {vr(EP+8+2*rr,2)}, v5, s[12:15], s28 offen offset:{rr*16}")
    def epilogue(k, cfg):
        A0 = cfg["ACC"]; T = 112; PK = 116
        k("s_waitcnt vmcnt(0)")
        k("s_nop 11")
        if kind == "wo":
            for r in range(8):
                d = EP + r
                k(f"v_lshlrev_b32 v{T}, 16, v{d}")
                k(f"v_and_b32 v{T+1}, 0xffff0000, v{d}")
                k(f"v_add_f32 v{A0+2*r}, v{A0+2*r}, v{T}")
                k(f"v_add_f32 v{A0+2*r+1}, v{A0+2*r+1}, v{T+1}")
            for r in range(8):
                k(f"v_cvt_pk_bf16_f32 v{PK+r}, v{A0+2*r}, v{A0+2*r+1}")
            k("s_lshl_b32 s28, s27, 15")
            k("s_lshl_b32 s26, s21, 12")
            k("s_add_u32 s28, s28, s26")
            k("s_lshl_b32 s26, s24, 11")
            k("s_add_u32 s28, s28, s26")
            k(f"s_add_u32 s28, s28, {WS_H}")
            k(f"buffer_store_dwordx4 {vr(PK,4)}, v2, s[16:19], s28 offen")
            k(f"buffer_store_dwordx4 {vr(PK+4,4)}, v2, s[16:19], s28 offen offset:1024")
            k(f"v_add_f32 v{T}, v{A0}, v{A0+1}")
            k(f"v_mul_f32 v{T+1}, v{A0}, v{A0}")
            k(f"v_fmac_f32 v{T+1}, v{A0+1}, v{A0+1}")
            k(f"v_add_f32 v{T+2}, v{A0+2}, v{A0+3}")
            k(f"v_mul_f32 v{T+3}, v{A0+2}, v{A0+2}")
            k(f"v_fmac_f32 v{T+3}, v{A0+3}, v{A0+3}")
            for r in range(4, 16, 2):
                k(f"v_add_f32 v{T+(r&2)}, v{T+(r&2)}, v{A0+r}")
                k(f"v_fmac_f32 v{T+1+(r&2)}, v{A0+r}, v{A0+r}")
                k(f"v_add_f32 v{T+(r&2)}, v{T+(r&2)}, v{A0+r+1}")
                k(f"v_fmac_f32 v{T+1+(r&2)}, v{A0+r+1}, v{A0+r+1}")
            k(f"v_add_f32 v{T}, v{T}, v{T+2}")
            k(f"v_add_f32 v{T+1}, v{T+1}, v{T+3}")
            k(f"v_mov_b32 v{T+2}, v{T}")
            k(f"v_mov_b32 v{T+3}, v{T+1}")
            k("v_lshlrev_b32 v5, 7, v3")
            k("s_lshl_b32 s28, s27, 12")
            k(f"v_permlane32_swap_b32 v{T}, v{T+2}")
            k(f"v_permlane32_swap_b32 v{T+1}, v{T+3}")
            k("s_lshl_b32 s26, s21, 4")
            k("s_add_u32 s28, s28, s26")
            k(f"v_add_f32 v{T}, v{T}, v{T+2}")
            k(f"v_add_f32 v{T+1}, v{T+1}, v{T+3}")
            k("s_lshl_b32 s26, s24, 3")
            k("s_add_u32 s28, s28, s26")
            k(f"s_add_u32 s28, s28, {WS_ST}")
            k("s_mov_b32 exec_hi, 0")
            k(f"buffer_store_dwordx2 v[{T}:{T+1}], v5, s[16:19], s28 offen")
        else:
            for r in range(8):
                k(f"v_lshlrev_b32 v{T}, 16, v{EP+r}")
                k(f"v_and_b32 v{T+1}, 0xffff0000, v{EP+r}")
                k(f"v_lshlrev_b32 v{T+2}, 16, v{EP+8+r}")
                k(f"v_and_b32 v{T+3}, 0xffff0000, v{EP+8+r}")
                k(f"v_add_f32 v{A0+2*r}, v{A0+2*r}, v{T+2}")
                k(f"v_add_f32 v{A0+2*r+1}, v{A0+2*r+1}, v{T+3}")
                k(f"v_add_f32 v{A0+2*r}, v{A0+2*r}, v{T}")
                k(f"v_add_f32 v{A0+2*r+1}, v{A0+2*r+1}, v{T+1}")
            for r in range(8):
                k(f"v_cvt_pk_bf16_f32 v{PK+r}, v{A0+2*r}, v{A0+2*r+1}")
            k("v_lshlrev_b32 v5, 10, v3")
            k("v_lshl_add_u32 v5, v4, 4, v5")
            for pr in range(2):
                k(f"v_permlane32_swap_b32 v{PK+4*pr}, v{PK+2+4*pr}")
                k(f"v_permlane32_swap_b32 v{PK+1+4*pr}, v{PK+3+4*pr}")
            k("s_lshl_b32 s28, s27, 15")
            k("s_lshl_b32 s26, s21, 7")
            k("s_add_u32 s28, s28, s26")
            k("s_lshl_b32 s26, s24, 6")
            k("s_add_u32 s28, s28, s26")
            k(f"buffer_store_dwordx4 {vr(PK,4)}, v5, s[44:47], s28 offen")
            k(f"buffer_store_dwordx4 {vr(PK+4,4)}, v5, s[44:47], s28 offen offset:32")
    hk = dict(srds_a=srds_a, srds_w=srds_w, cons_pre=cons_pre, epilogue=epilogue)
    if kind == "wo":
        XB = NS*SZ
        def prod_pre(k):
            k("v_mov_b32 v28, 0")
            k(f"v_mov_b32 v29, {XB + 128}")
            k("s_mov_b32 s42, 0")
            k("ds_write_b32 v29, v28")
            k("s_waitcnt lgkmcnt(0)")
        def prod_late(k):
            k("s_mov_b32 s50, %d" % (512*3584)); k("s_mov_b32 s51, 0x00020000")
            k("s_and_b32 s40, s2, 7")
            k("s_lshr_b32 s41, s40, 1"); k("s_mul_i32 s41, s41, 28"); k("s_add_u32 s41, s41, s25")
            k("s_and_b32 s40, s40, 1"); k("s_mul_i32 s40, s40, 112"); k("s_add_u32 s41, s41, s40")
            k("s_min_u32 s41, s41, 223")
            k("s_lshl_b32 s43, s41, 4")
            k("s_mul_i32 s44, s23, %d" % (128*3584)); k("s_add_u32 s40, s43, s44")
            k("v_mul_u32_u24 v30, 3584, v1")
            k("buffer_load_dwordx4 v[40:43], v30, s[48:51], s40 offen")
            k("s_add_u32 s40, s40, %d" % (64*3584))
            k("buffer_load_dwordx4 v[44:47], v30, s[48:51], s40 offen")
            k("s_mov_b32 s54, 3584"); k("s_mov_b32 s55, 0x00020000")
            k("v_mov_b32 v31, 0")
            k("buffer_load_dwordx4 v[72:75], v31, s[52:55], s43 offen")
        def prod_post(k):
            lab = k.label("cs")
            k("s_cmp_ge_u32 s25, 28")
            k(f"s_cbranch_scc1 {lab}")
            for q in range(4):
                k(f"v_lshlrev_b32 v{8+2*q}, 16, v{40+q}")
                k(f"v_and_b32 v{9+2*q}, 0xffff0000, v{40+q}")
                k(f"v_lshlrev_b32 v16, 16, v{44+q}")
                k(f"v_and_b32 v17, 0xffff0000, v{44+q}")
                k(f"v_add_f32 v{8+2*q}, v{8+2*q}, v16")
                k(f"v_add_f32 v{9+2*q}, v{9+2*q}, v17")
            for mode in ["row_shr:1", "row_shr:2", "row_shr:4", "row_shr:8", "row_bcast:15 row_mask:0xa", "row_bcast:31 row_mask:0xc"]:
                k("s_nop 1")
                for r in range(8):
                    m = mode if "row_mask" in mode else mode + " row_mask:0xf"
                    k(f"v_add_f32_dpp v{8+r}, v{8+r}, v{8+r} {m} bank_mask:0xf")
            k("s_lshl_b32 s40, s23, 5")
            k(f"s_add_u32 s40, s40, {XB}")
            k("v_mov_b32 v2, s40")
            k("v_mov_b32 v18, 1")
            k("s_mov_b32 exec_lo, 0")
            k("s_mov_b32 exec_hi, 0x80000000")
            k("ds_write_b128 v2, v[8:11]")
            k("ds_write_b128 v2, v[12:15] offset:16")
            k("s_waitcnt lgkmcnt(0)")
            k("ds_add_rtn_u32 v19, v29, v18")
            k("s_waitcnt lgkmcnt(0)")
            k("v_readlane_b32 s42, v19, 63")
            k("s_mov_b64 exec, -1")
            k(f"{lab}:")
        def prod_fin(k):
            lab = k.label("cs")
            k("s_cmp_lg_u32 s42, 3")
            k(f"s_cbranch_scc1 {lab}")
            k("s_mov_b32 exec_lo, 0")
            k("s_mov_b32 exec_hi, 0x80000000")
            k(f"v_mov_b32 v2, {XB}")
            for p_ in range(4):
                k(f"ds_read_b128 {vr(40+8*p_,4)}, v2 offset:{p_*32}")
                k(f"ds_read_b128 {vr(44+8*p_,4)}, v2 offset:{p_*32+16}")
            k("s_waitcnt lgkmcnt(0)")
            for r in range(8):
                k(f"v_add_f32 v{40+r}, v{40+r}, v{48+r}")
                k(f"v_add_f32 v{56+r}, v{56+r}, v{64+r}")
                k(f"v_add_f32 v{40+r}, v{40+r}, v{56+r}")
            for q in range(4):
                k(f"v_lshlrev_b32 v{16+2*q}, 16, v{72+q}")
                k(f"v_and_b32 v{17+2*q}, 0xffff0000, v{72+q}")
            k("s_lshl_b32 s40, s41, 5")
            k(f"s_add_u32 s40, s40, {WS_CS1}")
            k("s_mov_b32 s18, %d" % WS_END); k("s_mov_b32 s19, 0x00020000")
            k("v_mov_b32 v2, 0")
            k("buffer_store_dwordx4 v[40:43], v2, s[16:19], s40 offen")
            k("buffer_store_dwordx4 v[44:47], v2, s[16:19], s40 offen offset:16")
            k("s_add_u32 s40, s40, 8192")
            k("buffer_store_dwordx4 v[16:19], v2, s[16:19], s40 offen")
            k("buffer_store_dwordx4 v[20:23], v2, s[16:19], s40 offen offset:16")
            k("s_mov_b64 exec, -1")
            k(f"{lab}:")
        hk.update(prod_pre=prod_pre, prod_mid=prod_late, prod_chunk_post=lambda k, c, slot: prod_post(k) if c == 6 else None, prod_post=prod_fin)
        cfg["NMID"] = 3; cfg["MID_AT"] = 5
    gemm_core(k, name, cfg, hk)
    assert cfg["FREE"] <= EP
    k(f"{name}_done:")
    k("s_endpgm")
    return k

def colsum_chunk(k, addr_regs, slot, kstride, second, acc):
    for s_ in range(4):
        off = slot + s_*kstride
        hi = off >> 16; lo = off & 0xffff
        if lo + second > 65535: hi += 1; lo -= 65536
        assert lo >= 0
        k(f"ds_read_b64_tr_b16 {vr(32+4*s_,2)}, v{addr_regs[hi]} offset:{lo}")
        k(f"ds_read_b64_tr_b16 {vr(34+4*s_,2)}, v{addr_regs[hi]} offset:{lo+second}")
    for s_ in range(4):
        k(f"s_waitcnt lgkmcnt({2*(3-s_)})")
        for q in range(4):
            r = 32 + 4*s_ + q; t = 48 + 2*(q & 1)
            k(f"v_lshlrev_b32 v{t}, 16, v{r}")
            k(f"v_and_b32 v{t+1}, 0xffff0000, v{r}")
            k(f"v_pk_add_f32 v[{acc}:{acc+1}], v[{acc}:{acc+1}], v[{t}:{t+1}]")

def make_mlp1(ST=False):
    name = "mlp1_kernel"
    NS = 4; SZ = 32768; CSB = NS*SZ; STB = CSB + 1024
    k = Kern(name, 224, 768, CSB + 1024 + 2048, 128)
    common_head(k, name, 224, ST)
    k("s_load_dwordx2 s[16:17], s[0:1], 80")
    k("s_load_dwordx4 s[4:7], s[0:1], 32")
    k("s_load_dwordx2 s[44:45], s[0:1], 48")
    k("s_and_b32 s24, s2, 7")
    k("s_lshr_b32 s25, s2, 3")
    k("s_lshr_b32 s20, s24, 1")
    k("s_lshl_b32 s20, s20, 2")
    k("s_and_b32 s26, s25, 3")
    k("s_add_u32 s20, s20, s26")
    k("s_and_b32 s21, s24, 1")
    k("s_mul_i32 s21, s21, 7")
    k("s_lshr_b32 s29, s25, 2")
    k("s_add_u32 s21, s21, s29")
    if ROT[2] == "0": k("s_mov_b32 s29, 0")
    ids(k)
    k("s_lshl_b32 s30, s20, 17")
    k(f"s_add_u32 s30, s30, {WS_H}")
    k("s_lshl_b32 s32, s21, 8")
    cfg = dict(NTT=4, NG=4, KC=4, NCH=8, NS=NS, AHEAD=2, a_mode="frag", a_srd=16, w_srd=8, w_stride=3584, perm="pi",
               a_tile_stride=32768, wave_ntt=2, wave_ng=2, NSET=2, ST=ST)
    def srds_a(k):
        k("s_mov_b32 s18, %d" % WS_END); k("s_mov_b32 s19, 0x00020000")
    def srds_w(k):
        k.srd(8, 4, 512*3584)
    C0 = -2.0 * 1.4426950408889634 * 0.7978845608028654
    C1 = C0 * 0.044715
    def aprod_pre(k):
        k("v_and_b32 v3, 31, v1")
        k("v_lshrrev_b32 v4, 5, v1")
        k("v_lshlrev_b32 v6, 7, v3")
        k("v_lshl_add_u32 v6, v4, 6, v6")
        k("s_lshl_b32 s27, s20, 2")
        k("s_add_u32 s27, s27, s23")
        k("s_lshl_b32 s31, s27, 12")
        k(f"s_add_u32 s31, s31, {WS_ST}")
        for q in range(4):
            k(f"buffer_load_dwordx4 {vr(64+4*q,4)}, v6, s[16:19], s31 offen offset:{q*16}")
    def aprod_init(k, nafter):
        b = 64
        k(f"s_waitcnt vmcnt({nafter})")
        for q in range(1, 8):
            k(f"v_add_f32 v{b}, v{b}, v{b+2*q}")
            k(f"v_add_f32 v{b+1}, v{b+1}, v{b+1+2*q}")
        k(f"v_mov_b32 v{b+2}, v{b}")
        k(f"v_mov_b32 v{b+3}, v{b+1}")
        k("s_nop 1")
        k(f"v_permlane32_swap_b32 v{b}, v{b+2}")
        k(f"v_permlane32_swap_b32 v{b+1}, v{b+3}")
        k("s_nop 0")
        k(f"v_add_f32 v{b}, v{b}, v{b+2}")
        k(f"v_add_f32 v{b+1}, v{b+1}, v{b+3}")
        k(f"v_mul_f32 v{b}, {f32(1/512)}, v{b}")
        k(f"v_mul_f32 v{b+1}, {f32(1/512)}, v{b+1}")
        k(f"v_fma_f32 v{b+1}, -v{b}, v{b}, v{b+1}")
        k(f"v_max_f32 v{b+1}, 0, v{b+1}")
        k(f"v_add_f32 v{b+2}, {f32(1e-5)}, v{b+1}")
        k(f"v_rsq_f32 v{b+3}, v{b+2}")
        k(f"v_sub_f32 v{b+9}, 0, v{b}")
        k(f"v_mul_f32 v{b+4}, v{b+3}, v{b+3}")
        k(f"v_mul_f32 v{b+4}, v{b+4}, v{b+1}")
        k(f"v_add_f32 v{b+4}, {f32(1e-5)}, v{b+4}")
        k(f"v_rsq_f32 v{b+4}, v{b+4}")
        k("s_nop 0")
        k(f"v_mul_f32 v{b+5}, v{b+3}, v{b+4}")
        k(f"v_rcp_f32 v{b+8}, v{b+5}")
        k(f"v_mul_f32 v{b+10}, {f32(C0)}, v{b+5}")
        k(f"v_mul_f32 v{b+11}, v{b+5}, v{b+5}")
        k(f"v_mul_f32 v{b+11}, v{b+11}, v{b+5}")
        k(f"v_mul_f32 v{b+11}, {f32(C1)}, v{b+11}")
        k("v_lshlrev_b32 v5, 4, v3")
        k("s_lshl_b32 s26, s23, 9")
        k(f"s_add_u32 s26, s26, {STB}")
        k("v_add_u32 v5, s26, v5")
        k(f"ds_write_b128 v5, {vr(b+8,4)}")
        k("s_waitcnt lgkmcnt(0)")
        k("s_barrier")
    def aprod_post(k):
        if os.environ.get("PFW2", "1") == "1":
            k("s_mov_b32 s46, %d" % (1792*1024)); k("s_mov_b32 s47, 0x00020000")
            k("v_lshlrev_b32 v7, 7, v1")
            k("s_lshl_b32 s26, s25, 2"); k("s_add_u32 s26, s26, s23"); k("s_lshl_b32 s26, s26, 14")
            k("buffer_load_dword v8, v7, s[44:47], s26 offen")
            k("s_add_u32 s26, s26, 8192")
            k("buffer_load_dword v8, v7, s[44:47], s26 offen")
    def prod_pre(k):
        k("v_and_b32 v9, 31, v1")
        k("v_lshlrev_b32 v11, 2, v9")
        k("s_mov_b32 s18, %d" % WS_END); k("s_mov_b32 s19, 0x00020000")
        k("s_lshl_b32 s26, s21, 9")
        k("s_lshl_b32 s27, s23, 7")
        k("s_add_u32 s26, s26, s27")
        k(f"s_add_u32 s26, s26, {WS_CS1}")
        k("buffer_load_dword v24, v11, s[16:19], s26 offen")
        k("s_add_u32 s26, s26, 8192")
        k("buffer_load_dword v20, v11, s[16:19], s26 offen")
    def prod_init(k, nafter):
        k(f"s_waitcnt vmcnt({nafter})")
        k("s_lshl_b32 s26, s23, 7")
        k(f"s_add_u32 s26, s26, {CSB}")
        k("v_add_u32 v5, s26, v11")
        k("ds_write_b32 v5, v20 offset:512")
        k("ds_write_b32 v5, v24")
        k("s_waitcnt lgkmcnt(0)")
        k("s_barrier")
    def cons_pre(k):
        k("s_and_b32 s23, s22, 2")
        k("s_and_b32 s24, s22, 1")
        k("s_lshl_b32 s24, s24, 1")
        k("v_and_b32 v3, 31, v1")
        k("v_lshrrev_b32 v4, 5, v1")
        k("v_lshlrev_b32 v2, 4, v1")
        k("s_lshl_b32 s27, s20, 2")
        k("s_add_u32 s27, s27, s23")
        k("s_waitcnt lgkmcnt(0)")
        k("s_mov_b32 s18, %d" % WS_END); k("s_mov_b32 s19, 0x00020000")
        code_prefetch(k, "mlp2_kernel", 1, 124, 80, wave_val=0)
    def acc_init(k, cfg):
        ACC = cfg["ACC"]
        k("v_lshlrev_b32 v5, 4, v4")
        k("s_lshl_b32 s26, s24, 7")
        k(f"s_add_u32 s26, s26, {CSB}")
        k("v_add_u32 v5, s26, v5")
        k("v_lshlrev_b32 v6, 4, v3")
        k("s_lshl_b32 s26, s23, 9")
        k(f"s_add_u32 s26, s26, {STB}")
        k("v_add_u32 v6, s26, v6")
        k("s_barrier")
        F = 28
        k(f"ds_read_b128 v[8:11], v6")
        k(f"ds_read_b128 v[12:15], v6 offset:512")
        P2 = lambda b, r: vr(b+2*r, 2)
        for g in range(2):
            for rr in range(4):
                k(f"ds_read_b128 {vr(ACC+16*g+4*rr,4)}, v5 offset:{512+g*128+rr*32}")
                k(f"ds_read_b128 {vr(ACC+32+16*g+4*rr,4)}, v5 offset:{g*128+rr*32}")
        k("s_waitcnt lgkmcnt(15)")
        k("s_waitcnt lgkmcnt(8)")
        for i in range(2):
            k(f"v_mov_b32 v{F+8+4*i}, v{8+4*i}")
            k(f"v_mov_b32 v{F+9+4*i}, v{8+4*i}")
            k(f"v_mov_b32 v{F+10+4*i}, v{9+4*i}")
            k(f"v_mov_b32 v{F+11+4*i}, v{9+4*i}")
        T = F + 16
        for g in range(2):
            if g == 1: k("s_waitcnt lgkmcnt(0)")
            B = ACC + 16*g; C = ACC + 32 + 16*g
            for r in range(8): k(f"v_pk_mul_f32 {P2(T,r)}, {P2(B,r)}, {vr(F+12,2)}")
            for r in range(8): k(f"v_pk_mul_f32 {P2(B,r)}, {P2(B,r)}, {vr(F+8,2)}")
            for r in range(8): k(f"v_pk_fma_f32 {P2(B,r)}, {P2(C,r)}, {vr(F+10,2)}, {P2(B,r)}")
            for r in range(8): k(f"v_pk_fma_f32 {P2(C,r)}, {P2(C,r)}, {vr(F+14,2)}, {P2(T,r)}")
    def epilogue(k, cfg):
        ACC = cfg["ACC"]
        k(f"s_mul_i32 s30, s27, {112*1024}")
        k("s_lshl_b32 s26, s21, 13")
        k("s_add_u32 s30, s30, s26")
        k("s_lshl_b32 s26, s24, 11")
        k("s_add_u32 s30, s30, s26")
        k(f"s_add_u32 s30, s30, {WS_G}")
        for i in range(2):
            for j, src in enumerate([8+4*i, 10+4*i, 11+4*i]):
                k(f"v_mov_b32 v{16+6*i+2*j}, v{src}")
                k(f"v_mov_b32 v{17+6*i+2*j}, v{src}")
        P2 = lambda b, r: vr(b+2*r, 2)
        T = [28, 44]
        order = [(0,0), (1,0), (0,1), (1,1)]
        def stage1(n):
            i, g = order[n]; acc = ACC + 16*(i*2+g); TT = T[n & 1]; c = 16 + 6*i
            for r in range(8): k(f"v_pk_mul_f32 {P2(TT,r)}, {P2(acc,r)}, {P2(acc,r)}")
            for r in range(8): k(f"v_pk_fma_f32 {P2(TT,r)}, {P2(TT,r)}, {vr(c+4,2)}, {vr(c+2,2)}")
            for r in range(8): k(f"v_pk_mul_f32 {P2(TT,r)}, {P2(TT,r)}, {P2(acc,r)}")
        def stage2(n):
            i, g = order[n]; acc = ACC + 16*(i*2+g); TT = T[n & 1]; c = 16 + 6*i
            for r in range(16): k(f"v_exp_f32 v{TT+r}, v{TT+r}")
            for r in range(8): k(f"v_pk_fma_f32 {P2(TT,r)}, {P2(TT,r)}, {vr(c,2)}, {vr(c,2)}")
            for r in range(16): k(f"v_rcp_f32 v{TT+r}, v{TT+r}")
            for r in range(8): k(f"v_pk_mul_f32 {P2(acc,r)}, {P2(acc,r)}, {P2(TT,r)}")
            for r in range(8): k(f"v_cvt_pk_bf16_f32 v{acc+r}, v{acc+2*r}, v{acc+2*r+1}")
            k(f"s_add_u32 s26, s30, {i*112*1024 + g*2048}")
            k(f"buffer_store_dwordx4 {vr(acc,4)}, v2, s[16:19], s26 offen")
            k(f"buffer_store_dwordx4 {vr(acc+4,4)}, v2, s[16:19], s26 offen offset:1024")
        for n in range(4):
            stage1(n); stage2(n)
    gemm_core(k, name, cfg, dict(srds_a=srds_a, srds_w=srds_w, aprod_pre=aprod_pre, aprod_init=aprod_init, aprod_post=aprod_post, prod_pre=prod_pre, prod_init=prod_init,
                                 cons_pre=cons_pre, acc_init=acc_init, epilogue=epilogue))
    assert cfg["FREE"] <= 128 and cfg["ACC"] == 60
    k(f"{name}_done:")
    k("s_endpgm")
    return k

def make_qkv(ST=False):
    name = "qkv_kernel"
    NS = 5; SZ = 16384 + 12288
    SCR = NS*SZ; CSB = SCR + 16384; STB = CSB + 512
    ONES = 10; CSA = 112
    k = Kern(name, 256, 1024, 163840, 128)
    common_head(k, name, 256, ST)
    k("s_load_dwordx4 s[4:7], s[0:1], 0")
    k("s_load_dwordx2 s[16:17], s[0:1], 80")
    if os.environ.get("SELFPF", "1") == "1":
        sk = k.label("spf")
        k("s_cmp_ge_u32 s2, 8")
        k(f"s_cbranch_scc1 {sk}")
        lab = k.label("pc")
        k("s_getpc_b64 s[80:81]")
        k(f"{lab}:")
        k(f"s_sub_u32 s80, s80, {lab}-qkv_kernel")
        k("s_subb_u32 s81, s81, 0")
        k("v_lshlrev_b32 v103, 7, v0")
        k("v_min_u32 v103, qkv_kernel_end-qkv_kernel-4, v103")
        k("v_mov_b32 v101, s81")
        k("v_add_co_u32 v100, vcc, s80, v103")
        k("v_cmp_gt_u32 s[82:83], 128, v0")
        k("v_addc_co_u32 v101, vcc, 0, v101, vcc")
        k("s_and_saveexec_b64 s[84:85], s[82:83]")
        k(f"s_cbranch_execz {sk}r")
        k("global_load_dword v102, v[100:101], off")
        k(f"{sk}r:")
        k("s_mov_b64 exec, s[84:85]")
        k(f"{sk}:")
    k("s_and_b32 s24, s2, 7")
    k("s_lshr_b32 s25, s2, 3")
    k("s_lshr_b32 s20, s24, 1")
    k("s_lshl_b32 s20, s20, 2")
    k("s_and_b32 s26, s25, 3")
    k("s_add_u32 s20, s20, s26")
    k("s_and_b32 s21, s24, 1")
    k("s_lshl_b32 s21, s21, 3")
    k("s_lshr_b32 s27, s25, 2")
    k("s_add_u32 s21, s21, s27")
    k("s_lshl_b32 s26, s26, 1")
    k("s_add_u32 s29, s26, s27")
    k("s_and_b32 s29, s29, 7")
    if ROT[0] == "0": k("s_mov_b32 s29, 0")
    ids(k)
    k("s_lshl_b32 s30, s20, 17")
    k("s_mul_i32 s32, s21, 192")
    cfg = dict(NTT=4, NG=3, KC=4, NCH=8, NS=NS, AHEAD=int(AH[0]), a_mode="rows", a_srd=8, w_srd=12, w_stride=3072, perm="nat",
               wave_ntt=1, wave_ng=3, NSET=2, ST=ST, NVAR=3)
    def srds_a(k):
        k.srd(8, 4, 2048*1024)
    def srds_w(k):
        k.srd(12, 6, 512*3072)
    def helper_pre(k):
        code_prefetch(k, "att_kernel", 2, 100, 80, wave_val=12)
        if os.environ.get("TLB", "0") == "1":
            lab = k.label("tlb")
            k("s_cmp_lg_u32 s25, 0")
            k(f"s_cbranch_scc1 {lab}")
            k("s_cmp_lg_u32 s23, 3")
            k(f"s_cbranch_scc1 {lab}")
            k("s_load_dwordx4 s[40:43], s[0:1], 16")
            k("s_load_dwordx8 s[44:51], s[0:1], 32")
            k("s_load_dwordx2 s[52:53], s[0:1], 64")
            k("s_waitcnt lgkmcnt(0)")
            k("s_mov_b32 s18, %d" % WS_END); k("s_mov_b32 s19, 0x00020000")
            k("v_lshlrev_b32 v100, 21, v1")
            k("buffer_load_dword v101, v100, s[16:19], 0 offen")
            k("v_mov_b32 v100, 0")
            for base, size in [(40, 512*1024), (44, 512*3584), (46, 3584), (48, 1792*1024), (50, 1024), (52, 2048*1024)]:
                k.srd(56, base, size)
                k("buffer_load_dword v101, v100, s[56:59], 0 offen")
            k(f"{lab}:")
        if os.environ.get("TOUCH", "0") == "1":
            k("s_waitcnt lgkmcnt(0)")
            k.srd(8, 4, 2048*1024)
            k.srd(12, 6, 512*3072)
            k("s_and_b32 s40, s25, 3")
            k("s_lshr_b32 s41, s25, 2")
            lab = k.label("t"); lab2 = k.label("t")
            k("s_cmp_ge_u32 s23, 2")
            k(f"s_cbranch_scc1 {lab}")
            k("v_lshlrev_b32 v40, 7, v1")
            k("s_lshl_b32 s42, s41, 14"); k("s_lshl_b32 s43, s23, 13"); k("s_add_u32 s42, s42, s43"); k("s_add_u32 s42, s42, s30")
            k("buffer_load_dword v41, v40, s[8:11], s42 offen")
            k(f"{lab}:")
            k("v_lshrrev_b32 v40, 1, v1")
            k("v_mul_u32_u24 v40, 3072, v40")
            k("v_and_b32 v42, 1, v1")
            k("v_lshl_add_u32 v40, v42, 7, v40")
            k("s_lshl_b32 s42, s40, 7"); k("s_lshl_b32 s43, s23, 5"); k("s_add_u32 s42, s42, s43"); k("s_mul_i32 s42, s42, 3072"); k("s_add_u32 s42, s42, s32")
            k("buffer_load_dword v41, v40, s[12:15], s42 offen")
        k("v_lshrrev_b32 v4, 5, v1")
        k("v_and_b32 v5, 31, v1")
        k("v_bfe_u32 v6, v1, 1, 3")
        k("v_xor_b32 v6, v6, v4")
        k("v_lshlrev_b32 v6, 4, v6")
        k("v_lshl_add_u32 v6, v5, 7, v6")
        k("s_lshl_b32 s26, s23, 12")
        k("v_add_u32 v20, s26, v6")
        for s_ in range(1, 4): k(f"v_xor_b32 v{20+s_}, {s_*32}, v20")
        for s_ in range(4): k(f"v_add_u32 v{24+s_}, 0x10000, v{20+s_}")
        for r in range(28, 32): k(f"v_mov_b32 v{r}, 0")
    def stat_ops(k, base):
        for s_ in range(4):
            for q in range(4):
                r = base + 4*s_ + q
                t = 64 + 2*(q & 1)
                k(f"v_lshlrev_b32 v{t}, 16, v{r}")
                k(f"v_and_b32 v{t+1}, 0xffff0000, v{r}")
                k(f"v_add_f32 v28, v28, v{t}")
                k(f"v_add_f32 v29, v29, v{t+1}")
                k(f"v_fmac_f32 v30, v{t}, v{t}")
                k(f"v_fmac_f32 v31, v{t+1}, v{t+1}")
    def helper_chunk(k, c, slot):
        base = 32 + 16*(c & 1)
        for s_ in range(4):
            if slot >= 65536: k(f"ds_read_b128 {vr(base+4*s_,4)}, v{24+s_} offset:{slot-65536}")
            else: k(f"ds_read_b128 {vr(base+4*s_,4)}, v{20+s_} offset:{slot}")
        if c > 0: stat_ops(k, 32 + 16*((c-1) & 1))
        k("s_waitcnt lgkmcnt(0)")
        if c == 7: stat_ops(k, base)
    def helper_post(k):
        k("v_add_f32 v28, v28, v29")
        k("v_add_f32 v30, v30, v31")
        k("v_mov_b32 v29, v28")
        k("v_mov_b32 v31, v30")
        k("s_nop 1")
        k("v_permlane32_swap_b32 v28, v29")
        k("v_permlane32_swap_b32 v30, v31")
        k("s_nop 0")
        k("v_add_f32 v28, v28, v29")
        k("v_add_f32 v30, v30, v31")
        k(f"v_mul_f32 v28, {f32(1/512)}, v28")
        k(f"v_mul_f32 v30, {f32(1/512)}, v30")
        k("v_fma_f32 v30, -v28, v28, v30")
        k("v_max_f32 v30, 0, v30")
        k(f"v_add_f32 v30, {f32(1e-5)}, v30")
        k("v_rsq_f32 v30, v30")
        k("v_lshlrev_b32 v5, 3, v1")
        k("v_mul_f32 v31, v28, v30")
        k("v_sub_f32 v31, 0, v31")
        k("s_lshl_b32 s26, s23, 9")
        k(f"s_add_u32 s26, s26, {STB}")
        k("v_add_u32 v5, s26, v5")
        k("ds_write_b64 v5, v[30:31]")
        k("s_waitcnt lgkmcnt(0)")
        k("s_barrier")
    def cons_pre(k):
        k("s_mov_b32 s23, s22")
        k("s_mov_b32 s24, 0")
        k("v_and_b32 v3, 31, v1")
        k("v_lshrrev_b32 v4, 5, v1")
        k("v_lshlrev_b32 v2, 4, v1")
        for r in range(4): k(f"v_mov_b32 v{ONES+r}, 0x3f803f80")
        for r in range(16): k(f"v_mov_b32 v{CSA+r}, 0")
        k("s_min_u32 s36, s22, 2")
        k("s_waitcnt lgkmcnt(0)")
        k("s_mov_b32 s18, %d" % (6 << 20)); k("s_mov_b32 s19, 0x00020000")
    def after_step(k, s_, fwf):
        k(f"v_mfma_f32_32x32x16_bf16 {vr(CSA,16)}, {vr(fwf(cfg['VAR']),4)}, {vr(ONES,4)}, {vr(CSA,16)}")
    def epilogue(k, cfg):
        ACC = cfg["ACC"]
        k("v_lshlrev_b32 v5, 4, v4")
        k("s_lshl_b32 s26, s36, 7")
        k(f"s_add_u32 s26, s26, {CSB}")
        k("v_add_u32 v11, s26, v5")
        k("s_mov_b32 exec_lo, 1")
        k("s_mov_b32 exec_hi, 1")
        k("s_nop 4")
        for rr in range(4):
            k(f"ds_write_b128 v11, {vr(CSA+4*rr,4)} offset:{rr*32}")
        k("s_mov_b64 exec, -1")
        k("s_lshl_b32 s27, s20, 2")
        k("s_add_u32 s27, s27, s22")
        k("s_lshl_b32 s27, s27, 10")
        k("s_mul_i32 s28, s21, 3")
        QS = 0.25 * 1.4426950408889634
        k("s_lshl_b32 s31, s22, 13")
        k("v_mul_u32_u24 v6, 72, v3")
        k("v_lshl_add_u32 v6, v4, 3, v6")
        k("v_add_u32 v6, s31, v6")
        k("v_bfe_u32 v7, v1, 2, 2")
        k("v_lshl_add_u32 v8, v4, 2, v7")
        k("v_mul_u32_u24 v8, 72, v8")
        k("v_bfe_u32 v7, v1, 4, 1")
        k("v_lshl_add_u32 v8, v7, 5, v8")
        k("v_and_b32 v7, 3, v1")
        k("v_lshl_add_u32 v8, v7, 3, v8")
        k("v_add_u32 v8, s31, v8")
        k("v_bfe_u32 v9, v1, 4, 1")
        k("v_lshlrev_b32 v9, 16, v9")
        k("v_lshl_add_u32 v9, v4, 8, v9")
        k("v_and_b32 v7, 15, v1")
        k("v_lshl_add_u32 v9, v7, 4, v9")
        k("v_lshlrev_b32 v5, 4, v4")
        k(f"v_add_u32 v5, {CSB}, v5")
        k("v_lshlrev_b32 v10, 3, v1")
        k("s_lshl_b32 s26, s22, 9")
        k(f"s_add_u32 s26, s26, {STB}")
        k("v_add_u32 v10, s26, v10")
        k("s_waitcnt lgkmcnt(0)")
        k("s_barrier")
        k("ds_read_b64 v[12:13], v10")
        CSR = [16, 32, 48]
        for g in range(3):
            for rr in range(4):
                k(f"ds_read_b128 {vr(CSR[g]+4*rr,4)}, v5 offset:{g*128+rr*32}")
        P2 = lambda b, r: vr(b+2*r, 2)
        for g in range(3):
            acc = ACC + 16*g; cs = CSR[g]
            lq = k.label("q"); lv = k.label("v"); le = k.label("e")
            k(f"s_add_u32 s33, s28, {g}")
            k(f"s_waitcnt lgkmcnt({8-4*g})")
            k("v_mov_b32 v114, v12")
            k("v_mov_b32 v116, v13")
            k("s_cmp_ge_u32 s33, 16")
            k(f"s_cbranch_scc1 {lq}")
            k(f"v_mul_f32 v114, {f32(QS)}, v114")
            k(f"v_mul_f32 v116, {f32(QS)}, v116")
            k(f"{lq}:")
            k("v_mov_b32 v115, v114")
            k("v_mov_b32 v117, v116")
            for r in range(8): k(f"v_pk_mul_f32 {P2(cs,r)}, {P2(cs,r)}, v[116:117]")
            for r in range(8): k(f"v_pk_fma_f32 {P2(acc,r)}, {P2(acc,r)}, v[114:115], {P2(cs,r)}")
            for r in range(8): k(f"v_cvt_pk_bf16_f32 v{acc+r}, v{acc+2*r}, v{acc+2*r+1}")
            k("s_lshr_b32 s34, s33, 4")
            k("s_lshl_b32 s34, s34, 21")
            k("s_and_b32 s35, s33, 15")
            k("s_lshl_b32 s35, s35, 17")
            k("s_add_u32 s34, s34, s35")
            k("s_add_u32 s34, s34, s27")
            k(f"s_mov_b32 s{40+g}, s34")
            k("s_cmp_ge_u32 s33, 32")
            k(f"s_cbranch_scc1 {lv}")
            k(f"buffer_store_dwordx4 {vr(acc,4)}, v2, s[16:19], s34 offen")
            k("s_add_u32 s34, s34, 65536")
            k(f"buffer_store_dwordx4 {vr(acc+4,4)}, v2, s[16:19], s34 offen")
            k(f"s_branch {le}")
            k(f"{lv}:")
            for rr in range(4):
                k(f"ds_write_b64 v6, {vr(acc+2*rr,2)} offset:{g*2304+rr*16}")
            k(f"{le}:")
        lend = k.label("ve")
        k("s_add_u32 s33, s28, 2")
        k("s_cmp_lt_u32 s33, 32")
        k(f"s_cbranch_scc1 {lend}")
        k("s_waitcnt lgkmcnt(0)")
        for g in range(3):
            acc = ACC + 16*g
            for j in range(2):
                k(f"ds_read_b64_tr_b16 {vr(acc+8+4*j,2)}, v8 offset:{g*2304+j*16*72}")
                k(f"ds_read_b64_tr_b16 {vr(acc+8+4*j+2,2)}, v8 offset:{g*2304+j*16*72+8*72}")
        for g in range(3):
            acc = ACC + 16*g
            ls = k.label("vs")
            k(f"s_waitcnt lgkmcnt({8-4*g})")
            k(f"s_add_u32 s33, s28, {g}")
            k("s_cmp_lt_u32 s33, 32")
            k(f"s_cbranch_scc1 {ls}")
            k(f"buffer_store_dwordx4 {vr(acc+8,4)}, v9, s[16:19], s{40+g} offen")
            k(f"buffer_store_dwordx4 {vr(acc+12,4)}, v9, s[16:19], s{40+g} offen offset:512")
            k(f"{ls}:")
        k(f"{lend}:")
    gemm_core(k, name, cfg, dict(srds_a=srds_a, srds_w=srds_w,
                                 helper_pre=helper_pre, helper_chunk=helper_chunk, helper_post=helper_post,
                                 cons_pre=cons_pre, pre_step=after_step, epilogue=epilogue))
    assert cfg["FREE"] <= 112 and cfg["ACC"] == 64
    k(f"{name}_done:")
    k("s_endpgm")
    return k
```

```python
from dsl import *
from gemm import gemm_core
import os
ROT = os.environ.get("ROT", "0010")
AH = os.environ.get("AH", "2424")

def common_head(k, name, nwg, ST):
    k(f"s_cmp_ge_u32 s2, {nwg}")
    k(f"s_cbranch_scc1 {name}_done")
    if ST: stamp_rt(k, 0)
    stamp(k, 1, ST)

def ids(k):
    k("v_lshrrev_b32 v2, 6, v0")
    k("v_and_b32 v1, 63, v0")
    k("v_readfirstlane_b32 s22, v2")
    if os.environ.get("WREMAP", "1") == "1":
        k("s_nop 3")
        k("s_add_u32 s36, s22, 4")
        k("s_sub_u32 s37, s22, 8")
        k("s_cmp_lt_u32 s22, 8")
        k("s_cselect_b32 s36, s36, s37")
        k("s_cmp_ge_u32 s22, 12")
        k("s_cselect_b32 s22, s22, s36")

def make_g64(kind, ST=False):
    name = kind + "_kernel"
    KS = 32 if kind == "wo" else 112
    NCH = KS // 4
    NS = 8
    SZ = 16384
    k = Kern(name, 256, 768, NS*SZ + 256, 128)
    A_WS = WS_O if kind == "wo" else WS_G
    common_head(k, name, 256, ST)
    k("s_load_dwordx2 s[16:17], s[0:1], 80")
    if kind == "wo":
        k("s_load_dwordx2 s[4:5], s[0:1], 16")
        k("s_load_dwordx2 s[6:7], s[0:1], 0")
        k("s_load_dwordx2 s[48:49], s[0:1], 32")
        k("s_load_dwordx2 s[52:53], s[0:1], 40")
    else:
        k("s_load_dwordx2 s[4:5], s[0:1], 48")
        k("s_load_dwordx4 s[40:43], s[0:1], 56")
    k("s_and_b32 s24, s2, 7")
    k("s_lshr_b32 s25, s2, 3")
    k("s_lshl_b32 s20, s24, 2")
    k("s_and_b32 s26, s25, 3")
    k("s_add_u32 s20, s20, s26")
    k("s_lshr_b32 s21, s25, 2")
    ids(k)
    k(f"s_mul_i32 s29, s21, {NCH}")
    k("s_lshr_b32 s29, s29, 3")
    if ROT[1 if kind == "wo" else 3] == "0": k("s_mov_b32 s29, 0")
    k(f"s_mul_i32 s30, s20, {2*KS*1024}")
    k(f"s_add_u32 s30, s30, {A_WS}")
    k("s_lshl_b32 s32, s21, 7")
    cfg = dict(NTT=2, NG=2, KC=4, NCH=NCH, NS=NS, AHEAD=int(AH[1 if kind == "wo" else 3]), a_mode="frag", a_srd=16, w_srd=8, w_stride=1024, perm="pi",
               a_tile_stride=KS*1024, wave_ntt=1, wave_ng=1, NSET=4, ST=ST)
    def srds_a(k):
        k("s_mov_b32 s18, %d" % WS_END); k("s_mov_b32 s19, 0x00020000")
    def srds_w(k):
        k.srd(8, 4, KS*16*1024)
    EP = 96
    def cons_pre(k):
        k("s_lshr_b32 s23, s22, 1")
        k("s_and_b32 s24, s22, 1")
        k("v_and_b32 v3, 31, v1")
        k("v_lshrrev_b32 v4, 5, v1")
        k("v_lshlrev_b32 v2, 4, v1")
        k("s_lshl_b32 s27, s20, 1")
        k("s_add_u32 s27, s27, s23")
        k("s_waitcnt lgkmcnt(0)")
        k("s_mov_b32 s18, %d" % WS_END); k("s_mov_b32 s19, 0x00020000")
        if kind == "wo": code_prefetch(k, "mlp1_kernel", 1, 120, 80, wave_val=0)
        if os.environ.get("TOUCHA", "0") == "1":
            SH = 2*KS*1024//8
            k("v_lshlrev_b32 v9, 7, v1")
            k(f"s_mul_i32 s26, s21, {SH}")
            k(f"s_mul_i32 s28, s22, {SH//4}")
            k("s_add_u32 s26, s26, s28")
            k("s_add_u32 s26, s26, s30")
            nl = SH//4//128
            if nl < 64:
                k(f"v_min_u32 v9, {(nl-1)*128}, v9")
            k("buffer_load_dword v10, v9, s[16:19], s26 offen")
        if kind == "wo":
            k.srd(12, 6, 2048*1024)
            k("v_lshlrev_b32 v5, 10, v3")
            k("v_lshl_add_u32 v5, v4, 3, v5")
            k("s_lshl_b32 s28, s27, 15")
            k("s_lshl_b32 s26, s21, 7")
            k("s_add_u32 s28, s28, s26")
            k("s_lshl_b32 s26, s24, 6")
            k("s_add_u32 s28, s28, s26")
            for rr in range(4):
                k(f"buffer_load_dwordx2 {vr(EP+2*rr,2)}, v5, s[12:15], s28 offen offset:{rr*16}")
        else:
            k.srd(12, 40, 1024)
            k.srd(44, 42, 2048*1024)
            k("s_lshl_b32 s28, s27, 15")
            k("s_lshl_b32 s26, s21, 12")
            k("s_add_u32 s28, s28, s26")
            k("s_lshl_b32 s26, s24, 11")
            k("s_add_u32 s28, s28, s26")
            k(f"s_add_u32 s28, s28, {WS_H}")
            k(f"buffer_load_dwordx4 {vr(EP,4)}, v2, s[16:19], s28 offen")
            k(f"buffer_load_dwordx4 {vr(EP+4,4)}, v2, s[16:19], s28 offen offset:1024")
            k("v_lshlrev_b32 v5, 3, v4")
            k("s_lshl_b32 s28, s21, 7")
            k("s_lshl_b32 s26, s24, 6")
            k("s_add_u32 s28, s28, s26")
            for rr in range(4):
                k(f"buffer_load_dwordx2 {vr(EP+8+2*rr,2)}, v5, s[12:15], s28 offen offset:{rr*16}")
    def epilogue(k, cfg):
        A0 = cfg["ACC"]; T = 112; PK = 116
        k("s_waitcnt vmcnt(0)")
        k("s_nop 11")
        if kind == "wo":
            for r in range(8):
                d = EP + r
                k(f"v_lshlrev_b32 v{T}, 16, v{d}")
                k(f"v_and_b32 v{T+1}, 0xffff0000, v{d}")
                k(f"v_add_f32 v{A0+2*r}, v{A0+2*r}, v{T}")
                k(f"v_add_f32 v{A0+2*r+1}, v{A0+2*r+1}, v{T+1}")
            for r in range(8):
                k(f"v_cvt_pk_bf16_f32 v{PK+r}, v{A0+2*r}, v{A0+2*r+1}")
            k("s_lshl_b32 s28, s27, 15")
            k("s_lshl_b32 s26, s21, 12")
            k("s_add_u32 s28, s28, s26")
            k("s_lshl_b32 s26, s24, 11")
            k("s_add_u32 s28, s28, s26")
            k(f"s_add_u32 s28, s28, {WS_H}")
            k(f"buffer_store_dwordx4 {vr(PK,4)}, v2, s[16:19], s28 offen")
            k(f"buffer_store_dwordx4 {vr(PK+4,4)}, v2, s[16:19], s28 offen offset:1024")
            k(f"v_add_f32 v{T}, v{A0}, v{A0+1}")
            k(f"v_mul_f32 v{T+1}, v{A0}, v{A0}")
            k(f"v_fmac_f32 v{T+1}, v{A0+1}, v{A0+1}")
            k(f"v_add_f32 v{T+2}, v{A0+2}, v{A0+3}")
            k(f"v_mul_f32 v{T+3}, v{A0+2}, v{A0+2}")
            k(f"v_fmac_f32 v{T+3}, v{A0+3}, v{A0+3}")
            for r in range(4, 16, 2):
                k(f"v_add_f32 v{T+(r&2)}, v{T+(r&2)}, v{A0+r}")
                k(f"v_fmac_f32 v{T+1+(r&2)}, v{A0+r}, v{A0+r}")
                k(f"v_add_f32 v{T+(r&2)}, v{T+(r&2)}, v{A0+r+1}")
                k(f"v_fmac_f32 v{T+1+(r&2)}, v{A0+r+1}, v{A0+r+1}")
            k(f"v_add_f32 v{T}, v{T}, v{T+2}")
            k(f"v_add_f32 v{T+1}, v{T+1}, v{T+3}")
            k(f"v_mov_b32 v{T+2}, v{T}")
            k(f"v_mov_b32 v{T+3}, v{T+1}")
            k("v_lshlrev_b32 v5, 7, v3")
            k("s_lshl_b32 s28, s27, 12")
            k(f"v_permlane32_swap_b32 v{T}, v{T+2}")
            k(f"v_permlane32_swap_b32 v{T+1}, v{T+3}")
            k("s_lshl_b32 s26, s21, 4")
            k("s_add_u32 s28, s28, s26")
            k(f"v_add_f32 v{T}, v{T}, v{T+2}")
            k(f"v_add_f32 v{T+1}, v{T+1}, v{T+3}")
            k("s_lshl_b32 s26, s24, 3")
            k("s_add_u32 s28, s28, s26")
            k(f"s_add_u32 s28, s28, {WS_ST}")
            k("s_mov_b32 exec_hi, 0")
            k(f"buffer_store_dwordx2 v[{T}:{T+1}], v5, s[16:19], s28 offen")
        else:
            for r in range(8):
                k(f"v_lshlrev_b32 v{T}, 16, v{EP+r}")
                k(f"v_and_b32 v{T+1}, 0xffff0000, v{EP+r}")
                k(f"v_lshlrev_b32 v{T+2}, 16, v{EP+8+r}")
                k(f"v_and_b32 v{T+3}, 0xffff0000, v{EP+8+r}")
                k(f"v_add_f32 v{A0+2*r}, v{A0+2*r}, v{T+2}")
                k(f"v_add_f32 v{A0+2*r+1}, v{A0+2*r+1}, v{T+3}")
                k(f"v_add_f32 v{A0+2*r}, v{A0+2*r}, v{T}")
                k(f"v_add_f32 v{A0+2*r+1}, v{A0+2*r+1}, v{T+1}")
            for r in range(8):
                k(f"v_cvt_pk_bf16_f32 v{PK+r}, v{A0+2*r}, v{A0+2*r+1}")
            k("v_lshlrev_b32 v5, 10, v3")
            k("v_lshl_add_u32 v5, v4, 4, v5")
            for pr in range(2):
                k(f"v_permlane32_swap_b32 v{PK+4*pr}, v{PK+2+4*pr}")
                k(f"v_permlane32_swap_b32 v{PK+1+4*pr}, v{PK+3+4*pr}")
            k("s_lshl_b32 s28, s27, 15")
            k("s_lshl_b32 s26, s21, 7")
            k("s_add_u32 s28, s28, s26")
            k("s_lshl_b32 s26, s24, 6")
            k("s_add_u32 s28, s28, s26")
            k(f"buffer_store_dwordx4 {vr(PK,4)}, v5, s[44:47], s28 offen")
            k(f"buffer_store_dwordx4 {vr(PK+4,4)}, v5, s[44:47], s28 offen offset:32")
    hk = dict(srds_a=srds_a, srds_w=srds_w, cons_pre=cons_pre, epilogue=epilogue)
    if kind == "wo":
        XB = NS*SZ
        def prod_pre(k):
            k("v_mov_b32 v28, 0")
            k(f"v_mov_b32 v29, {XB + 128}")
            k("s_mov_b32 s42, 0")
            k("ds_write_b32 v29, v28")
            k("s_waitcnt lgkmcnt(0)")
        def prod_late(k):
            k("s_mov_b32 s50, %d" % (512*3584)); k("s_mov_b32 s51, 0x00020000")
            k("s_and_b32 s40, s2, 7")
            k("s_lshr_b32 s41, s40, 1"); k("s_mul_i32 s41, s41, 28"); k("s_add_u32 s41, s41, s25")
            k("s_and_b32 s40, s40, 1"); k("s_mul_i32 s40, s40, 112"); k("s_add_u32 s41, s41, s40")
            k("s_min_u32 s41, s41, 223")
            k("s_lshl_b32 s43, s41, 4")
            k("s_mul_i32 s44, s23, %d" % (128*3584)); k("s_add_u32 s40, s43, s44")
            k("v_mul_u32_u24 v30, 3584, v1")
            k("buffer_load_dwordx4 v[40:43], v30, s[48:51], s40 offen")
            k("s_add_u32 s40, s40, %d" % (64*3584))
            k("buffer_load_dwordx4 v[44:47], v30, s[48:51], s40 offen")
            k("s_mov_b32 s54, 3584"); k("s_mov_b32 s55, 0x00020000")
            k("v_mov_b32 v31, 0")
            k("buffer_load_dwordx4 v[72:75], v31, s[52:55], s43 offen")
        def prod_post(k):
            lab = k.label("cs")
            k("s_cmp_ge_u32 s25, 28")
            k(f"s_cbranch_scc1 {lab}")
            for q in range(4):
                k(f"v_lshlrev_b32 v{8+2*q}, 16, v{40+q}")
                k(f"v_and_b32 v{9+2*q}, 0xffff0000, v{40+q}")
                k(f"v_lshlrev_b32 v16, 16, v{44+q}")
                k(f"v_and_b32 v17, 0xffff0000, v{44+q}")
                k(f"v_add_f32 v{8+2*q}, v{8+2*q}, v16")
                k(f"v_add_f32 v{9+2*q}, v{9+2*q}, v17")
            for mode in ["row_shr:1", "row_shr:2", "row_shr:4", "row_shr:8", "row_bcast:15 row_mask:0xa", "row_bcast:31 row_mask:0xc"]:
                k("s_nop 1")
                for r in range(8):
                    m = mode if "row_mask" in mode else mode + " row_mask:0xf"
                    k(f"v_add_f32_dpp v{8+r}, v{8+r}, v{8+r} {m} bank_mask:0xf")
            k("s_lshl_b32 s40, s23, 5")
            k(f"s_add_u32 s40, s40, {XB}")
            k("v_mov_b32 v2, s40")
            k("v_mov_b32 v18, 1")
            k("s_mov_b32 exec_lo, 0")
            k("s_mov_b32 exec_hi, 0x80000000")
            k("ds_write_b128 v2, v[8:11]")
            k("ds_write_b128 v2, v[12:15] offset:16")
            k("s_waitcnt lgkmcnt(0)")
            k("ds_add_rtn_u32 v19, v29, v18")
            k("s_waitcnt lgkmcnt(0)")
            k("v_readlane_b32 s42, v19, 63")
            k("s_mov_b64 exec, -1")
            k(f"{lab}:")
        def prod_fin(k):
            lab = k.label("cs")
            k("s_cmp_lg_u32 s42, 3")
            k(f"s_cbranch_scc1 {lab}")
            k("s_mov_b32 exec_lo, 0")
            k("s_mov_b32 exec_hi, 0x80000000")
            k(f"v_mov_b32 v2, {XB}")
            for p_ in range(4):
                k(f"ds_read_b128 {vr(40+8*p_,4)}, v2 offset:{p_*32}")
                k(f"ds_read_b128 {vr(44+8*p_,4)}, v2 offset:{p_*32+16}")
            k("s_waitcnt lgkmcnt(0)")
            for r in range(8):
                k(f"v_add_f32 v{40+r}, v{40+r}, v{48+r}")
                k(f"v_add_f32 v{56+r}, v{56+r}, v{64+r}")
                k(f"v_add_f32 v{40+r}, v{40+r}, v{56+r}")
            for q in range(4):
                k(f"v_lshlrev_b32 v{16+2*q}, 16, v{72+q}")
                k(f"v_and_b32 v{17+2*q}, 0xffff0000, v{72+q}")
            k("s_lshl_b32 s40, s41, 5")
            k(f"s_add_u32 s40, s40, {WS_CS1}")
            k("s_mov_b32 s18, %d" % WS_END); k("s_mov_b32 s19, 0x00020000")
            k("v_mov_b32 v2, 0")
            k("buffer_store_dwordx4 v[40:43], v2, s[16:19], s40 offen")
            k("buffer_store_dwordx4 v[44:47], v2, s[16:19], s40 offen offset:16")
            k("s_add_u32 s40, s40, 8192")
            k("buffer_store_dwordx4 v[16:19], v2, s[16:19], s40 offen")
            k("buffer_store_dwordx4 v[20:23], v2, s[16:19], s40 offen offset:16")
            k("s_mov_b64 exec, -1")
            k(f"{lab}:")
        hk.update(prod_pre=prod_pre, prod_mid=prod_late, prod_chunk_post=lambda k, c, slot: prod_post(k) if c == 6 else None, prod_post=prod_fin)
        cfg["NMID"] = 3; cfg["MID_AT"] = 5
    gemm_core(k, name, cfg, hk)
    assert cfg["FREE"] <= EP
    k(f"{name}_done:")
    k("s_endpgm")
    return k

def colsum_chunk(k, addr_regs, slot, kstride, second, acc):
    for s_ in range(4):
        off = slot + s_*kstride
        hi = off >> 16; lo = off & 0xffff
        if lo + second > 65535: hi += 1; lo -= 65536
        assert lo >= 0
        k(f"ds_read_b64_tr_b16 {vr(32+4*s_,2)}, v{addr_regs[hi]} offset:{lo}")
        k(f"ds_read_b64_tr_b16 {vr(34+4*s_,2)}, v{addr_regs[hi]} offset:{lo+second}")
    for s_ in range(4):
        k(f"s_waitcnt lgkmcnt({2*(3-s_)})")
        for q in range(4):
            r = 32 + 4*s_ + q; t = 48 + 2*(q & 1)
            k(f"v_lshlrev_b32 v{t}, 16, v{r}")
            k(f"v_and_b32 v{t+1}, 0xffff0000, v{r}")
            k(f"v_pk_add_f32 v[{acc}:{acc+1}], v[{acc}:{acc+1}], v[{t}:{t+1}]")

def make_mlp1(ST=False):
    name = "mlp1_kernel"
    NS = 4; SZ = 32768; CSB = NS*SZ; STB = CSB + 1024
    k = Kern(name, 224, 768, CSB + 1024 + 2048, 128)
    common_head(k, name, 224, ST)
    k("s_load_dwordx2 s[16:17], s[0:1], 80")
    k("s_load_dwordx4 s[4:7], s[0:1], 32")
    k("s_load_dwordx2 s[44:45], s[0:1], 48")
    k("s_and_b32 s24, s2, 7")
    k("s_lshr_b32 s25, s2, 3")
    k("s_lshr_b32 s20, s24, 1")
    k("s_lshl_b32 s20, s20, 2")
    k("s_and_b32 s26, s25, 3")
    k("s_add_u32 s20, s20, s26")
    k("s_and_b32 s21, s24, 1")
    k("s_mul_i32 s21, s21, 7")
    k("s_lshr_b32 s29, s25, 2")
    k("s_add_u32 s21, s21, s29")
    if ROT[2] == "0": k("s_mov_b32 s29, 0")
    ids(k)
    k("s_lshl_b32 s30, s20, 17")
    k(f"s_add_u32 s30, s30, {WS_H}")
    k("s_lshl_b32 s32, s21, 8")
    cfg = dict(NTT=4, NG=4, KC=4, NCH=8, NS=NS, AHEAD=2, a_mode="frag", a_srd=16, w_srd=8, w_stride=3584, perm="pi",
               a_tile_stride=32768, wave_ntt=2, wave_ng=2, NSET=2, ST=ST)
    def srds_a(k):
        k("s_mov_b32 s18, %d" % WS_END); k("s_mov_b32 s19, 0x00020000")
    def srds_w(k):
        k.srd(8, 4, 512*3584)
    C0 = -2.0 * 1.4426950408889634 * 0.7978845608028654
    C1 = C0 * 0.044715
    def aprod_pre(k):
        k("v_and_b32 v3, 31, v1")
        k("v_lshrrev_b32 v4, 5, v1")
        k("v_lshlrev_b32 v6, 7, v3")
        k("v_lshl_add_u32 v6, v4, 6, v6")
        k("s_lshl_b32 s27, s20, 2")
        k("s_add_u32 s27, s27, s23")
        k("s_lshl_b32 s31, s27, 12")
        k(f"s_add_u32 s31, s31, {WS_ST}")
        for q in range(4):
            k(f"buffer_load_dwordx4 {vr(64+4*q,4)}, v6, s[16:19], s31 offen offset:{q*16}")
    def aprod_init(k, nafter):
        b = 64
        k(f"s_waitcnt vmcnt({nafter})")
        for q in range(1, 8):
            k(f"v_add_f32 v{b}, v{b}, v{b+2*q}")
            k(f"v_add_f32 v{b+1}, v{b+1}, v{b+1+2*q}")
        k(f"v_mov_b32 v{b+2}, v{b}")
        k(f"v_mov_b32 v{b+3}, v{b+1}")
        k("s_nop 1")
        k(f"v_permlane32_swap_b32 v{b}, v{b+2}")
        k(f"v_permlane32_swap_b32 v{b+1}, v{b+3}")
        k("s_nop 0")
        k(f"v_add_f32 v{b}, v{b}, v{b+2}")
        k(f"v_add_f32 v{b+1}, v{b+1}, v{b+3}")
        k(f"v_mul_f32 v{b}, {f32(1/512)}, v{b}")
        k(f"v_mul_f32 v{b+1}, {f32(1/512)}, v{b+1}")
        k(f"v_fma_f32 v{b+1}, -v{b}, v{b}, v{b+1}")
        k(f"v_max_f32 v{b+1}, 0, v{b+1}")
        k(f"v_add_f32 v{b+2}, {f32(1e-5)}, v{b+1}")
        k(f"v_rsq_f32 v{b+3}, v{b+2}")
        k(f"v_sub_f32 v{b+9}, 0, v{b}")
        k(f"v_mul_f32 v{b+4}, v{b+3}, v{b+3}")
        k(f"v_mul_f32 v{b+4}, v{b+4}, v{b+1}")
        k(f"v_add_f32 v{b+4}, {f32(1e-5)}, v{b+4}")
        k(f"v_rsq_f32 v{b+4}, v{b+4}")
        k("s_nop 0")
        k(f"v_mul_f32 v{b+5}, v{b+3}, v{b+4}")
        k(f"v_rcp_f32 v{b+8}, v{b+5}")
        k(f"v_mul_f32 v{b+10}, {f32(C0)}, v{b+5}")
        k(f"v_mul_f32 v{b+11}, v{b+5}, v{b+5}")
        k(f"v_mul_f32 v{b+11}, v{b+11}, v{b+5}")
        k(f"v_mul_f32 v{b+11}, {f32(C1)}, v{b+11}")
        k("v_lshlrev_b32 v5, 4, v3")
        k("s_lshl_b32 s26, s23, 9")
        k(f"s_add_u32 s26, s26, {STB}")
        k("v_add_u32 v5, s26, v5")
        k(f"ds_write_b128 v5, {vr(b+8,4)}")
        k("s_waitcnt lgkmcnt(0)")
        k("s_barrier")
    def aprod_post(k):
        if os.environ.get("PFW2", "1") == "1":
            k("s_mov_b32 s46, %d" % (1792*1024)); k("s_mov_b32 s47, 0x00020000")
            k("v_lshlrev_b32 v7, 7, v1")
            k("s_lshl_b32 s26, s25, 2"); k("s_add_u32 s26, s26, s23"); k("s_lshl_b32 s26, s26, 14")
            k("buffer_load_dword v8, v7, s[44:47], s26 offen")
            k("s_add_u32 s26, s26, 8192")
            k("buffer_load_dword v8, v7, s[44:47], s26 offen")
    def prod_pre(k):
        k("v_and_b32 v9, 31, v1")
        k("v_lshlrev_b32 v11, 2, v9")
        k("s_mov_b32 s18, %d" % WS_END); k("s_mov_b32 s19, 0x00020000")
        k("s_lshl_b32 s26, s21, 9")
        k("s_lshl_b32 s27, s23, 7")
        k("s_add_u32 s26, s26, s27")
        k(f"s_add_u32 s26, s26, {WS_CS1}")
        k("buffer_load_dword v24, v11, s[16:19], s26 offen")
        k("s_add_u32 s26, s26, 8192")
        k("buffer_load_dword v20, v11, s[16:19], s26 offen")
    def prod_init(k, nafter):
        k(f"s_waitcnt vmcnt({nafter})")
        k("s_lshl_b32 s26, s23, 7")
        k(f"s_add_u32 s26, s26, {CSB}")
        k("v_add_u32 v5, s26, v11")
        k("ds_write_b32 v5, v20 offset:512")
        k("ds_write_b32 v5, v24")
        k("s_waitcnt lgkmcnt(0)")
        k("s_barrier")
    def cons_pre(k):
        k("s_and_b32 s23, s22, 2")
        k("s_and_b32 s24, s22, 1")
        k("s_lshl_b32 s24, s24, 1")
        k("v_and_b32 v3, 31, v1")
        k("v_lshrrev_b32 v4, 5, v1")
        k("v_lshlrev_b32 v2, 4, v1")
        k("s_lshl_b32 s27, s20, 2")
        k("s_add_u32 s27, s27, s23")
        k("s_waitcnt lgkmcnt(0)")
        k("s_mov_b32 s18, %d" % WS_END); k("s_mov_b32 s19, 0x00020000")
        code_prefetch(k, "mlp2_kernel", 1, 124, 80, wave_val=0)
    def acc_init(k, cfg):
        ACC = cfg["ACC"]
        k("v_lshlrev_b32 v5, 4, v4")
        k("s_lshl_b32 s26, s24, 7")
        k(f"s_add_u32 s26, s26, {CSB}")
        k("v_add_u32 v5, s26, v5")
        k("v_lshlrev_b32 v6, 4, v3")
        k("s_lshl_b32 s26, s23, 9")
        k(f"s_add_u32 s26, s26, {STB}")
        k("v_add_u32 v6, s26, v6")
        k("s_barrier")
        F = 28
        k(f"ds_read_b128 v[8:11], v6")
        k(f"ds_read_b128 v[12:15], v6 offset:512")
        P2 = lambda b, r: vr(b+2*r, 2)
        for g in range(2):
            for rr in range(4):
                k(f"ds_read_b128 {vr(ACC+16*g+4*rr,4)}, v5 offset:{512+g*128+rr*32}")
                k(f"ds_read_b128 {vr(ACC+32+16*g+4*rr,4)}, v5 offset:{g*128+rr*32}")
        k("s_waitcnt lgkmcnt(15)")
        k("s_waitcnt lgkmcnt(8)")
        for i in range(2):
            k(f"v_mov_b32 v{F+8+4*i}, v{8+4*i}")
            k(f"v_mov_b32 v{F+9+4*i}, v{8+4*i}")
            k(f"v_mov_b32 v{F+10+4*i}, v{9+4*i}")
            k(f"v_mov_b32 v{F+11+4*i}, v{9+4*i}")
        T = F + 16
        for g in range(2):
            if g == 1: k("s_waitcnt lgkmcnt(0)")
            B = ACC + 16*g; C = ACC + 32 + 16*g
            for r in range(8): k(f"v_pk_mul_f32 {P2(T,r)}, {P2(B,r)}, {vr(F+12,2)}")
            for r in range(8): k(f"v_pk_mul_f32 {P2(B,r)}, {P2(B,r)}, {vr(F+8,2)}")
            for r in range(8): k(f"v_pk_fma_f32 {P2(B,r)}, {P2(C,r)}, {vr(F+10,2)}, {P2(B,r)}")
            for r in range(8): k(f"v_pk_fma_f32 {P2(C,r)}, {P2(C,r)}, {vr(F+14,2)}, {P2(T,r)}")
    def epilogue(k, cfg):
        ACC = cfg["ACC"]
        k(f"s_mul_i32 s30, s27, {112*1024}")
        k("s_lshl_b32 s26, s21, 13")
        k("s_add_u32 s30, s30, s26")
        k("s_lshl_b32 s26, s24, 11")
        k("s_add_u32 s30, s30, s26")
        k(f"s_add_u32 s30, s30, {WS_G}")
        for i in range(2):
            for j, src in enumerate([8+4*i, 10+4*i, 11+4*i]):
                k(f"v_mov_b32 v{16+6*i+2*j}, v{src}")
                k(f"v_mov_b32 v{17+6*i+2*j}, v{src}")
        P2 = lambda b, r: vr(b+2*r, 2)
        T = [28, 44]
        order = [(0,0), (1,0), (0,1), (1,1)]
        def stage1(n):
            i, g = order[n]; acc = ACC + 16*(i*2+g); TT = T[n & 1]; c = 16 + 6*i
            for r in range(8): k(f"v_pk_mul_f32 {P2(TT,r)}, {P2(acc,r)}, {P2(acc,r)}")
            for r in range(8): k(f"v_pk_fma_f32 {P2(TT,r)}, {P2(TT,r)}, {vr(c+4,2)}, {vr(c+2,2)}")
            for r in range(8): k(f"v_pk_mul_f32 {P2(TT,r)}, {P2(TT,r)}, {P2(acc,r)}")
        def stage2(n):
            i, g = order[n]; acc = ACC + 16*(i*2+g); TT = T[n & 1]; c = 16 + 6*i
            for r in range(16): k(f"v_exp_f32 v{TT+r}, v{TT+r}")
            for r in range(8): k(f"v_pk_fma_f32 {P2(TT,r)}, {P2(TT,r)}, {vr(c,2)}, {vr(c,2)}")
            for r in range(16): k(f"v_rcp_f32 v{TT+r}, v{TT+r}")
            for r in range(8): k(f"v_pk_mul_f32 {P2(acc,r)}, {P2(acc,r)}, {P2(TT,r)}")
            for r in range(8): k(f"v_cvt_pk_bf16_f32 v{acc+r}, v{acc+2*r}, v{acc+2*r+1}")
            k(f"s_add_u32 s26, s30, {i*112*1024 + g*2048}")
            k(f"buffer_store_dwordx4 {vr(acc,4)}, v2, s[16:19], s26 offen")
            k(f"buffer_store_dwordx4 {vr(acc+4,4)}, v2, s[16:19], s26 offen offset:1024")
        for n in range(4):
            stage1(n); stage2(n)
    gemm_core(k, name, cfg, dict(srds_a=srds_a, srds_w=srds_w, aprod_pre=aprod_pre, aprod_init=aprod_init, aprod_post=aprod_post, prod_pre=prod_pre, prod_init=prod_init,
                                 cons_pre=cons_pre, acc_init=acc_init, epilogue=epilogue))
    assert cfg["FREE"] <= 128 and cfg["ACC"] == 60
    k(f"{name}_done:")
    k("s_endpgm")
    return k

def make_qkv(ST=False):
    name = "qkv_kernel"
    NS = 5; SZ = 16384 + 12288
    SCR = NS*SZ; CSB = SCR + 16384; STB = CSB + 512
    ONES = 10; CSA = 112
    k = Kern(name, 256, 1024, 163840, 128)
    common_head(k, name, 256, ST)
    k("s_load_dwordx4 s[4:7], s[0:1], 0")
    k("s_load_dwordx2 s[16:17], s[0:1], 80")
    if os.environ.get("SELFPF", "0") == "1":
        sk = k.label("spf")
        k("s_cmp_ge_u32 s2, 8")
        k(f"s_cbranch_scc1 {sk}")
        lab = k.label("pc")
        k("s_getpc_b64 s[80:81]")
        k(f"{lab}:")
        k(f"s_sub_u32 s80, s80, {lab}-qkv_kernel")
        k("s_subb_u32 s81, s81, 0")
        k("v_lshlrev_b32 v103, 7, v0")
        k("v_min_u32 v103, qkv_kernel_end-qkv_kernel-4, v103")
        k("v_mov_b32 v101, s81")
        k("v_add_co_u32 v100, vcc, s80, v103")
        k("s_nop 1")
        k("v_addc_co_u32 v101, vcc, 0, v101, vcc")
        k("v_cmp_gt_u32 vcc, 128, v0")
        k("s_nop 1")
        k("s_and_saveexec_b64 s[84:85], vcc")
        k(f"s_cbranch_execz {sk}r")
        k("global_load_dword v102, v[100:101], off")
        k(f"{sk}r:")
        k("s_mov_b64 exec, s[84:85]")
        k(f"{sk}:")
    k("s_and_b32 s24, s2, 7")
    k("s_lshr_b32 s25, s2, 3")
    k("s_lshr_b32 s20, s24, 1")
    k("s_lshl_b32 s20, s20, 2")
    k("s_and_b32 s26, s25, 3")
    k("s_add_u32 s20, s20, s26")
    k("s_and_b32 s21, s24, 1")
    k("s_lshl_b32 s21, s21, 3")
    k("s_lshr_b32 s27, s25, 2")
    k("s_add_u32 s21, s21, s27")
    k("s_lshl_b32 s26, s26, 1")
    k("s_add_u32 s29, s26, s27")
    k("s_and_b32 s29, s29, 7")
    if ROT[0] == "0": k("s_mov_b32 s29, 0")
    ids(k)
    k("s_lshl_b32 s30, s20, 17")
    k("s_mul_i32 s32, s21, 192")
    cfg = dict(NTT=4, NG=3, KC=4, NCH=8, NS=NS, AHEAD=int(AH[0]), a_mode="rows", a_srd=8, w_srd=12, w_stride=3072, perm="nat",
               wave_ntt=1, wave_ng=3, NSET=2, ST=ST, NVAR=3)
    def srds_a(k):
        k.srd(8, 4, 2048*1024)
    def srds_w(k):
        k.srd(12, 6, 512*3072)
    def helper_pre(k):
        if os.environ.get("SELFPF", "0") == "2": code_prefetch(k, "qkv_kernel", 2, 104, 80, wave_val=13)
        code_prefetch(k, "att_kernel", 2, 100, 80, wave_val=12)
        if os.environ.get("TLB", "0") == "1":
            lab = k.label("tlb")
            k("s_cmp_lg_u32 s25, 0")
            k(f"s_cbranch_scc1 {lab}")
            k("s_cmp_lg_u32 s23, 3")
            k(f"s_cbranch_scc1 {lab}")
            k("s_load_dwordx4 s[40:43], s[0:1], 16")
            k("s_load_dwordx8 s[44:51], s[0:1], 32")
            k("s_load_dwordx2 s[52:53], s[0:1], 64")
            k("s_waitcnt lgkmcnt(0)")
            k("s_mov_b32 s18, %d" % WS_END); k("s_mov_b32 s19, 0x00020000")
            k("v_lshlrev_b32 v100, 21, v1")
            k("buffer_load_dword v101, v100, s[16:19], 0 offen")
            k("v_mov_b32 v100, 0")
            for base, size in [(40, 512*1024), (44, 512*3584), (46, 3584), (48, 1792*1024), (50, 1024), (52, 2048*1024)]:
                k.srd(56, base, size)
                k("buffer_load_dword v101, v100, s[56:59], 0 offen")
            k(f"{lab}:")
        if os.environ.get("TOUCH", "0") == "1":
            k("s_waitcnt lgkmcnt(0)")
            k.srd(8, 4, 2048*1024)
            k.srd(12, 6, 512*3072)
            k("s_and_b32 s40, s25, 3")
            k("s_lshr_b32 s41, s25, 2")
            lab = k.label("t"); lab2 = k.label("t")
            k("s_cmp_ge_u32 s23, 2")
            k(f"s_cbranch_scc1 {lab}")
            k("v_lshlrev_b32 v40, 7, v1")
            k("s_lshl_b32 s42, s41, 14"); k("s_lshl_b32 s43, s23, 13"); k("s_add_u32 s42, s42, s43"); k("s_add_u32 s42, s42, s30")
            k("buffer_load_dword v41, v40, s[8:11], s42 offen")
            k(f"{lab}:")
            k("v_lshrrev_b32 v40, 1, v1")
            k("v_mul_u32_u24 v40, 3072, v40")
            k("v_and_b32 v42, 1, v1")
            k("v_lshl_add_u32 v40, v42, 7, v40")
            k("s_lshl_b32 s42, s40, 7"); k("s_lshl_b32 s43, s23, 5"); k("s_add_u32 s42, s42, s43"); k("s_mul_i32 s42, s42, 3072"); k("s_add_u32 s42, s42, s32")
            k("buffer_load_dword v41, v40, s[12:15], s42 offen")
        k("v_lshrrev_b32 v4, 5, v1")
        k("v_and_b32 v5, 31, v1")
        k("v_bfe_u32 v6, v1, 1, 3")
        k("v_xor_b32 v6, v6, v4")
        k("v_lshlrev_b32 v6, 4, v6")
        k("v_lshl_add_u32 v6, v5, 7, v6")
        k("s_lshl_b32 s26, s23, 12")
        k("v_add_u32 v20, s26, v6")
        for s_ in range(1, 4): k(f"v_xor_b32 v{20+s_}, {s_*32}, v20")
        for s_ in range(4): k(f"v_add_u32 v{24+s_}, 0x10000, v{20+s_}")
        for r in range(28, 32): k(f"v_mov_b32 v{r}, 0")
    def stat_ops(k, base):
        for s_ in range(4):
            for q in range(4):
                r = base + 4*s_ + q
                t = 64 + 2*(q & 1)
                k(f"v_lshlrev_b32 v{t}, 16, v{r}")
                k(f"v_and_b32 v{t+1}, 0xffff0000, v{r}")
                k(f"v_add_f32 v28, v28, v{t}")
                k(f"v_add_f32 v29, v29, v{t+1}")
                k(f"v_fmac_f32 v30, v{t}, v{t}")
                k(f"v_fmac_f32 v31, v{t+1}, v{t+1}")
    def helper_chunk(k, c, slot):
        base = 32 + 16*(c & 1)
        for s_ in range(4):
            if slot >= 65536: k(f"ds_read_b128 {vr(base+4*s_,4)}, v{24+s_} offset:{slot-65536}")
            else: k(f"ds_read_b128 {vr(base+4*s_,4)}, v{20+s_} offset:{slot}")
        if c > 0: stat_ops(k, 32 + 16*((c-1) & 1))
        k("s_waitcnt lgkmcnt(0)")
        if c == 7: stat_ops(k, base)
    def helper_post(k):
        k("v_add_f32 v28, v28, v29")
        k("v_add_f32 v30, v30, v31")
        k("v_mov_b32 v29, v28")
        k("v_mov_b32 v31, v30")
        k("s_nop 1")
        k("v_permlane32_swap_b32 v28, v29")
        k("v_permlane32_swap_b32 v30, v31")
        k("s_nop 0")
        k("v_add_f32 v28, v28, v29")
        k("v_add_f32 v30, v30, v31")
        k(f"v_mul_f32 v28, {f32(1/512)}, v28")
        k(f"v_mul_f32 v30, {f32(1/512)}, v30")
        k("v_fma_f32 v30, -v28, v28, v30")
        k("v_max_f32 v30, 0, v30")
        k(f"v_add_f32 v30, {f32(1e-5)}, v30")
        k("v_rsq_f32 v30, v30")
        k("v_lshlrev_b32 v5, 3, v1")
        k("v_mul_f32 v31, v28, v30")
        k("v_sub_f32 v31, 0, v31")
        k("s_lshl_b32 s26, s23, 9")
        k(f"s_add_u32 s26, s26, {STB}")
        k("v_add_u32 v5, s26, v5")
        k("ds_write_b64 v5, v[30:31]")
        k("s_waitcnt lgkmcnt(0)")
        k("s_barrier")
    def cons_pre(k):
        k("s_mov_b32 s23, s22")
        k("s_mov_b32 s24, 0")
        k("v_and_b32 v3, 31, v1")
        k("v_lshrrev_b32 v4, 5, v1")
        k("v_lshlrev_b32 v2, 4, v1")
        for r in range(4): k(f"v_mov_b32 v{ONES+r}, 0x3f803f80")
        for r in range(16): k(f"v_mov_b32 v{CSA+r}, 0")
        k("s_min_u32 s36, s22, 2")
        k("s_waitcnt lgkmcnt(0)")
        k("s_mov_b32 s18, %d" % (6 << 20)); k("s_mov_b32 s19, 0x00020000")
    def after_step(k, s_, fwf):
        k(f"v_mfma_f32_32x32x16_bf16 {vr(CSA,16)}, {vr(fwf(cfg['VAR']),4)}, {vr(ONES,4)}, {vr(CSA,16)}")
    def epilogue(k, cfg):
        ACC = cfg["ACC"]
        k("v_lshlrev_b32 v5, 4, v4")
        k("s_lshl_b32 s26, s36, 7")
        k(f"s_add_u32 s26, s26, {CSB}")
        k("v_add_u32 v11, s26, v5")
        k("s_mov_b32 exec_lo, 1")
        k("s_mov_b32 exec_hi, 1")
        k("s_nop 4")
        for rr in range(4):
            k(f"ds_write_b128 v11, {vr(CSA+4*rr,4)} offset:{rr*32}")
        k("s_mov_b64 exec, -1")
        k("s_lshl_b32 s27, s20, 2")
        k("s_add_u32 s27, s27, s22")
        k("s_lshl_b32 s27, s27, 10")
        k("s_mul_i32 s28, s21, 3")
        QS = 0.25 * 1.4426950408889634
        k("s_lshl_b32 s31, s22, 13")
        k("v_mul_u32_u24 v6, 72, v3")
        k("v_lshl_add_u32 v6, v4, 3, v6")
        k("v_add_u32 v6, s31, v6")
        k("v_bfe_u32 v7, v1, 2, 2")
        k("v_lshl_add_u32 v8, v4, 2, v7")
        k("v_mul_u32_u24 v8, 72, v8")
        k("v_bfe_u32 v7, v1, 4, 1")
        k("v_lshl_add_u32 v8, v7, 5, v8")
        k("v_and_b32 v7, 3, v1")
        k("v_lshl_add_u32 v8, v7, 3, v8")
        k("v_add_u32 v8, s31, v8")
        k("v_bfe_u32 v9, v1, 4, 1")
        k("v_lshlrev_b32 v9, 16, v9")
        k("v_lshl_add_u32 v9, v4, 8, v9")
        k("v_and_b32 v7, 15, v1")
        k("v_lshl_add_u32 v9, v7, 4, v9")
        k("v_lshlrev_b32 v5, 4, v4")
        k(f"v_add_u32 v5, {CSB}, v5")
        k("v_lshlrev_b32 v10, 3, v1")
        k("s_lshl_b32 s26, s22, 9")
        k(f"s_add_u32 s26, s26, {STB}")
        k("v_add_u32 v10, s26, v10")
        k("s_waitcnt lgkmcnt(0)")
        k("s_barrier")
        k("ds_read_b64 v[12:13], v10")
        CSR = [16, 32, 48]
        for g in range(3):
            for rr in range(4):
                k(f"ds_read_b128 {vr(CSR[g]+4*rr,4)}, v5 offset:{g*128+rr*32}")
        P2 = lambda b, r: vr(b+2*r, 2)
        for g in range(3):
            acc = ACC + 16*g; cs = CSR[g]
            lq = k.label("q"); lv = k.label("v"); le = k.label("e")
            k(f"s_add_u32 s33, s28, {g}")
            k(f"s_waitcnt lgkmcnt({8-4*g})")
            k("v_mov_b32 v114, v12")
            k("v_mov_b32 v116, v13")
            k("s_cmp_ge_u32 s33, 16")
            k(f"s_cbranch_scc1 {lq}")
            k(f"v_mul_f32 v114, {f32(QS)}, v114")
            k(f"v_mul_f32 v116, {f32(QS)}, v116")
            k(f"{lq}:")
            k("v_mov_b32 v115, v114")
            k("v_mov_b32 v117, v116")
            for r in range(8): k(f"v_pk_mul_f32 {P2(cs,r)}, {P2(cs,r)}, v[116:117]")
            for r in range(8): k(f"v_pk_fma_f32 {P2(acc,r)}, {P2(acc,r)}, v[114:115], {P2(cs,r)}")
            for r in range(8): k(f"v_cvt_pk_bf16_f32 v{acc+r}, v{acc+2*r}, v{acc+2*r+1}")
            k("s_lshr_b32 s34, s33, 4")
            k("s_lshl_b32 s34, s34, 21")
            k("s_and_b32 s35, s33, 15")
            k("s_lshl_b32 s35, s35, 17")
            k("s_add_u32 s34, s34, s35")
            k("s_add_u32 s34, s34, s27")
            k(f"s_mov_b32 s{40+g}, s34")
            k("s_cmp_ge_u32 s33, 32")
            k(f"s_cbranch_scc1 {lv}")
            k(f"buffer_store_dwordx4 {vr(acc,4)}, v2, s[16:19], s34 offen")
            k("s_add_u32 s34, s34, 65536")
            k(f"buffer_store_dwordx4 {vr(acc+4,4)}, v2, s[16:19], s34 offen")
            k(f"s_branch {le}")
            k(f"{lv}:")
            for rr in range(4):
                k(f"ds_write_b64 v6, {vr(acc+2*rr,2)} offset:{g*2304+rr*16}")
            k(f"{le}:")
        lend = k.label("ve")
        k("s_add_u32 s33, s28, 2")
        k("s_cmp_lt_u32 s33, 32")
        k(f"s_cbranch_scc1 {lend}")
        k("s_waitcnt lgkmcnt(0)")
        for g in range(3):
            acc = ACC + 16*g
            for j in range(2):
                k(f"ds_read_b64_tr_b16 {vr(acc+8+4*j,2)}, v8 offset:{g*2304+j*16*72}")
                k(f"ds_read_b64_tr_b16 {vr(acc+8+4*j+2,2)}, v8 offset:{g*2304+j*16*72+8*72}")
        for g in range(3):
            acc = ACC + 16*g
            ls = k.label("vs")
            k(f"s_waitcnt lgkmcnt({8-4*g})")
            k(f"s_add_u32 s33, s28, {g}")
            k("s_cmp_lt_u32 s33, 32")
            k(f"s_cbranch_scc1 {ls}")
            k(f"buffer_store_dwordx4 {vr(acc+8,4)}, v9, s[16:19], s{40+g} offen")
            k(f"buffer_store_dwordx4 {vr(acc+12,4)}, v9, s[16:19], s{40+g} offen offset:512")
            k(f"{ls}:")
        k(f"{lend}:")
    gemm_core(k, name, cfg, dict(srds_a=srds_a, srds_w=srds_w,
                                 helper_pre=helper_pre, helper_chunk=helper_chunk, helper_post=helper_post,
                                 cons_pre=cons_pre, pre_step=after_step, epilogue=epilogue))
    assert cfg["FREE"] <= 112 and cfg["ACC"] == 64
    k(f"{name}_done:")
    k("s_endpgm")
    return k
```

```python
import struct
def v(n): return f"v{n}"
def vr(n, c): return f"v[{n}:{n+c-1}]"
def a(n): return f"a{n}"
def ar(n, c): return f"a[{n}:{n+c-1}]"
def s(n): return f"s{n}"
def sr(n, c): return f"s[{n}:{n+c-1}]"
def f32(x): return "0x%08x" % struct.unpack("<I", struct.pack("<f", x))[0]

class Kern:
    def __init__(self, name, grid, block, lds, nvgpr, nsgpr=96, accum=None):
        self.name = name; self.grid = grid; self.block = block; self.lds = lds
        self.nvgpr = nvgpr; self.nsgpr = nsgpr
        self.accum = accum if accum is not None else ((nvgpr + 3) // 4 * 4)
        self.L = []
        self.lab = 0
    def __call__(self, line):
        for l in line.split("\n"):
            l = l.strip()
            if l: self.L.append("    " + l if not l.endswith(":") else l)
    def label(self, base="L"):
        self.lab += 1
        return f"{self.name}_{base}{self.lab}"
    def srd(self, sreg, ptr_lo, nbytes):
        self(f"s_mov_b32 s{sreg}, s{ptr_lo}")
        self(f"s_mov_b32 s{sreg+1}, s{ptr_lo+1}")
        self(f"s_mov_b32 s{sreg+2}, {nbytes}")
        self(f"s_mov_b32 s{sreg+3}, 0x00020000")
    def text(self):
        h = f".globl {self.name}\n.p2align 8\n.type {self.name},@function\n{self.name}:\n"
        return h + "\n".join(self.L) + f"\n{self.name}_end:\n"
    def desc(self):
        return f""".amdhsa_kernel {self.name}
  .amdhsa_next_free_vgpr {self.nvgpr}
  .amdhsa_next_free_sgpr {self.nsgpr}
  .amdhsa_accum_offset {self.accum}
  .amdhsa_group_segment_fixed_size 0
  .amdhsa_kernarg_size 88
  .amdhsa_user_sgpr_count 2
  .amdhsa_user_sgpr_kernarg_segment_ptr 1
  .amdhsa_system_sgpr_workgroup_id_x 1
.end_amdhsa_kernel
"""
    def launch_line(self):
        g = self.grid; b = self.block
        return f"; @launch kernel={self.name} grid=({g},1,1) block=({b},1,1) lds={self.lds}\n"

HEADER = """; Kernarg layout for this problem (88 bytes, ptrs only, base s[0:1]):
;
"""
import os, re
STORE_FLAGS = os.environ.get("SC", "sc1")
def build(kernels, path):
    if STORE_FLAGS:
        for k in kernels:
            if k.name in os.environ.get("SCK", "qkv_kernel,att_kernel,wo_kernel,mlp1_kernel").split(","):
                k.L = [(l + " " + STORE_FLAGS) if ("buffer_store_dwordx4" in l and "s[56:59]" not in l) else l for l in k.L]
    src = HEADER
    for k in kernels: src += k.launch_line()
    src += '.amdgcn_target "amdgcn-amd-amdhsa--gfx950"\n.text\n'
    for k in kernels: src += k.text()
    src += '.section .rodata,"a"\n.p2align 6\n'
    for k in kernels: src += k.desc()
    open(path, "w").write(src)
    return src

WS_Q = 0
WS_K = 2 << 20
WS_V = 4 << 20
WS_O = 6 << 20
WS_H = 8 << 20
WS_G = 10 << 20
WS_END = 18 << 20

STAMP_BASE = 64 << 20
def stamp(k, idx, on=True):
    if not on: return
    k(f"s_memtime s[{60+2*idx}:{61+2*idx}]")
def stamp_rt(k, idx):
    k(f"s_memrealtime s[{60+2*idx}:{61+2*idx}]")
KIDX = {"qkv_kernel":0, "att_kernel":1, "wo_kernel":2, "mlp1_kernel":3, "mlp2_kernel":4}
def stamp_flush(k, n, ws_lo, wave_sgpr, nwaves):
    k("s_waitcnt lgkmcnt(0)")
    k(f"s_add_u32 s56, s{ws_lo}, {STAMP_BASE + KIDX.get(k.name, 0)*(1<<20)}")
    k(f"s_addc_u32 s57, s{ws_lo+1}, 0")
    k("s_mov_b32 s58, 0x1000000")
    k("s_mov_b32 s59, 0x00020000")
    k(f"s_mul_i32 s55, s2, {nwaves}")
    k(f"s_add_u32 s55, s55, s{wave_sgpr}")
    k("s_lshl_b32 s55, s55, 6")
    k("v_mov_b32 v1, s55")
    k("s_mov_b64 exec, 1")
    for i in range(n):
        k(f"v_mov_b32 v2, s{60+2*i}")
        k(f"buffer_store_dword v2, v1, s[56:59], 0 offen offset:{4*i}")
    k("s_waitcnt vmcnt(0)")
WS_ST = 17 << 20
WS_CS1 = (17 << 20) + (512 << 10)

def code_prefetch(k, target, ninstr, v0_=100, s0_=70, lane="v1", wave_sgpr=22, wave_val=None, t_sgpr=25, backward=False):
    if os.environ.get("CPF", "1") != "1": return
    skip = k.label("pcs")
    k(f"s_cmp_lg_u32 s{t_sgpr}, 0")
    k(f"s_cbranch_scc1 {skip}")
    if wave_val is not None:
        k(f"s_cmp_lg_u32 s{wave_sgpr}, {wave_val}")
        k(f"s_cbranch_scc1 {skip}")
    lab = k.label("pc")
    k(f"s_getpc_b64 s[{s0_}:{s0_+1}]")
    k(f"{lab}:")
    if backward:
        k(f"s_sub_u32 s{s0_}, s{s0_}, {lab}-{target}")
        k(f"s_subb_u32 s{s0_+1}, s{s0_+1}, 0")
    else:
        k(f"s_add_u32 s{s0_}, s{s0_}, {target}-{lab}")
        k(f"s_addc_u32 s{s0_+1}, s{s0_+1}, 0")
    for i in range(ninstr):
        k(f"v_lshlrev_b32 v{v0_+3}, 7, {lane}")
        if i: k(f"v_add_u32 v{v0_+3}, {i*8192}, v{v0_+3}")
        k(f"v_min_u32 v{v0_+3}, {target}_end-{target}-4, v{v0_+3}")
        k(f"v_mov_b32 v{v0_+1}, s{s0_+1}")
        k(f"v_add_co_u32 v{v0_}, vcc, s{s0_}, v{v0_+3}")
        k("s_nop 1")
        k(f"v_addc_co_u32 v{v0_+1}, vcc, 0, v{v0_+1}, vcc")
        k(f"global_load_dword v{v0_+2}, v[{v0_}:{v0_+1}], off")
    k(f"{skip}:")
WS_CNT = (17 << 20) + (768 << 10)
KIDX["post_kernel"] = 1
```

```python
from dsl import *
from gemm import gemm_core
import os
ROT = os.environ.get("ROT", "0010")
AH = os.environ.get("AH", "2424")

def common_head(k, name, nwg, ST):
    k(f"s_cmp_ge_u32 s2, {nwg}")
    k(f"s_cbranch_scc1 {name}_done")
    if ST: stamp_rt(k, 0)
    stamp(k, 1, ST)

def ids(k):
    k("v_lshrrev_b32 v2, 6, v0")
    k("v_and_b32 v1, 63, v0")
    k("v_readfirstlane_b32 s22, v2")
    if os.environ.get("WREMAP", "1") == "1":
        k("s_nop 3")
        k("s_add_u32 s36, s22, 4")
        k("s_sub_u32 s37, s22, 8")
        k("s_cmp_lt_u32 s22, 8")
        k("s_cselect_b32 s36, s36, s37")
        k("s_cmp_ge_u32 s22, 12")
        k("s_cselect_b32 s22, s22, s36")

def make_g64(kind, ST=False):
    name = kind + "_kernel"
    KS = 32 if kind == "wo" else 112
    NCH = KS // 4
    NS = 8
    SZ = 16384
    k = Kern(name, 256, 768, NS*SZ + 256, 128)
    A_WS = WS_O if kind == "wo" else WS_G
    common_head(k, name, 256, ST)
    k("s_load_dwordx2 s[16:17], s[0:1], 80")
    if kind == "wo":
        k("s_load_dwordx2 s[4:5], s[0:1], 16")
        k("s_load_dwordx2 s[6:7], s[0:1], 0")
        k("s_load_dwordx2 s[48:49], s[0:1], 32")
        k("s_load_dwordx2 s[52:53], s[0:1], 40")
    else:
        k("s_load_dwordx2 s[4:5], s[0:1], 48")
        k("s_load_dwordx4 s[40:43], s[0:1], 56")
    k("s_and_b32 s24, s2, 7")
    k("s_lshr_b32 s25, s2, 3")
    k("s_lshl_b32 s20, s24, 2")
    k("s_and_b32 s26, s25, 3")
    k("s_add_u32 s20, s20, s26")
    k("s_lshr_b32 s21, s25, 2")
    ids(k)
    k(f"s_mul_i32 s29, s21, {NCH}")
    k("s_lshr_b32 s29, s29, 3")
    if ROT[1 if kind == "wo" else 3] == "0": k("s_mov_b32 s29, 0")
    k(f"s_mul_i32 s30, s20, {2*KS*1024}")
    k(f"s_add_u32 s30, s30, {A_WS}")
    k("s_lshl_b32 s32, s21, 7")
    cfg = dict(NTT=2, NG=2, KC=4, NCH=NCH, NS=NS, AHEAD=int(AH[1 if kind == "wo" else 3]), a_mode="frag", a_srd=16, w_srd=8, w_stride=1024, perm="pi",
               a_tile_stride=KS*1024, wave_ntt=1, wave_ng=1, NSET=4, ST=ST)
    def srds_a(k):
        k("s_mov_b32 s18, %d" % WS_END); k("s_mov_b32 s19, 0x00020000")
    def srds_w(k):
        k.srd(8, 4, KS*16*1024)
    EP = 96
    def cons_pre(k):
        k("s_lshr_b32 s23, s22, 1")
        k("s_and_b32 s24, s22, 1")
        k("v_and_b32 v3, 31, v1")
        k("v_lshrrev_b32 v4, 5, v1")
        k("v_lshlrev_b32 v2, 4, v1")
        k("s_lshl_b32 s27, s20, 1")
        k("s_add_u32 s27, s27, s23")
        k("s_waitcnt lgkmcnt(0)")
        k("s_mov_b32 s18, %d" % WS_END); k("s_mov_b32 s19, 0x00020000")
        if kind == "wo": code_prefetch(k, "mlp1_kernel", 1, 120, 80, wave_val=0)
        if os.environ.get("TOUCHA", "0") == "1":
            SH = 2*KS*1024//8
            k("v_lshlrev_b32 v9, 7, v1")
            k(f"s_mul_i32 s26, s21, {SH}")
            k(f"s_mul_i32 s28, s22, {SH//4}")
            k("s_add_u32 s26, s26, s28")
            k("s_add_u32 s26, s26, s30")
            nl = SH//4//128
            if nl < 64:
                k(f"v_min_u32 v9, {(nl-1)*128}, v9")
            k("buffer_load_dword v10, v9, s[16:19], s26 offen")
        if kind == "wo":
            k.srd(12, 6, 2048*1024)
            k("v_lshlrev_b32 v5, 10, v3")
            k("v_lshl_add_u32 v5, v4, 3, v5")
            k("s_lshl_b32 s28, s27, 15")
            k("s_lshl_b32 s26, s21, 7")
            k("s_add_u32 s28, s28, s26")
            k("s_lshl_b32 s26, s24, 6")
            k("s_add_u32 s28, s28, s26")
            for rr in range(4):
                k(f"buffer_load_dwordx2 {vr(EP+2*rr,2)}, v5, s[12:15], s28 offen offset:{rr*16}")
        else:
            k.srd(12, 40, 1024)
            k.srd(44, 42, 2048*1024)
            k("s_lshl_b32 s28, s27, 15")
            k("s_lshl_b32 s26, s21, 12")
            k("s_add_u32 s28, s28, s26")
            k("s_lshl_b32 s26, s24, 11")
            k("s_add_u32 s28, s28, s26")
            k(f"s_add_u32 s28, s28, {WS_H}")
            k(f"buffer_load_dwordx4 {vr(EP,4)}, v2, s[16:19], s28 offen")
            k(f"buffer_load_dwordx4 {vr(EP+4,4)}, v2, s[16:19], s28 offen offset:1024")
            k("v_lshlrev_b32 v5, 3, v4")
            k("s_lshl_b32 s28, s21, 7")
            k("s_lshl_b32 s26, s24, 6")
            k("s_add_u32 s28, s28, s26")
            for rr in range(4):
                k(f"buffer_load_dwordx2 {vr(EP+8+2*rr,2)}, v5, s[12:15], s28 offen offset:{rr*16}")
    def epilogue(k, cfg):
        A0 = cfg["ACC"]; T = 112; PK = 116
        k("s_waitcnt vmcnt(0)")
        k("s_nop 11")
        if kind == "wo":
            for r in range(8):
                d = EP + r
                k(f"v_lshlrev_b32 v{T}, 16, v{d}")
                k(f"v_and_b32 v{T+1}, 0xffff0000, v{d}")
                k(f"v_add_f32 v{A0+2*r}, v{A0+2*r}, v{T}")
                k(f"v_add_f32 v{A0+2*r+1}, v{A0+2*r+1}, v{T+1}")
            for r in range(8):
                k(f"v_cvt_pk_bf16_f32 v{PK+r}, v{A0+2*r}, v{A0+2*r+1}")
            k("s_lshl_b32 s28, s27, 15")
            k("s_lshl_b32 s26, s21, 12")
            k("s_add_u32 s28, s28, s26")
            k("s_lshl_b32 s26, s24, 11")
            k("s_add_u32 s28, s28, s26")
            k(f"s_add_u32 s28, s28, {WS_H}")
            k(f"buffer_store_dwordx4 {vr(PK,4)}, v2, s[16:19], s28 offen")
            k(f"buffer_store_dwordx4 {vr(PK+4,4)}, v2, s[16:19], s28 offen offset:1024")
            k(f"v_add_f32 v{T}, v{A0}, v{A0+1}")
            k(f"v_mul_f32 v{T+1}, v{A0}, v{A0}")
            k(f"v_fmac_f32 v{T+1}, v{A0+1}, v{A0+1}")
            k(f"v_add_f32 v{T+2}, v{A0+2}, v{A0+3}")
            k(f"v_mul_f32 v{T+3}, v{A0+2}, v{A0+2}")
            k(f"v_fmac_f32 v{T+3}, v{A0+3}, v{A0+3}")
            for r in range(4, 16, 2):
                k(f"v_add_f32 v{T+(r&2)}, v{T+(r&2)}, v{A0+r}")
                k(f"v_fmac_f32 v{T+1+(r&2)}, v{A0+r}, v{A0+r}")
                k(f"v_add_f32 v{T+(r&2)}, v{T+(r&2)}, v{A0+r+1}")
                k(f"v_fmac_f32 v{T+1+(r&2)}, v{A0+r+1}, v{A0+r+1}")
            k(f"v_add_f32 v{T}, v{T}, v{T+2}")
            k(f"v_add_f32 v{T+1}, v{T+1}, v{T+3}")
            k(f"v_mov_b32 v{T+2}, v{T}")
            k(f"v_mov_b32 v{T+3}, v{T+1}")
            k("v_lshlrev_b32 v5, 7, v3")
            k("s_lshl_b32 s28, s27, 12")
            k(f"v_permlane32_swap_b32 v{T}, v{T+2}")
            k(f"v_permlane32_swap_b32 v{T+1}, v{T+3}")
            k("s_lshl_b32 s26, s21, 4")
            k("s_add_u32 s28, s28, s26")
            k(f"v_add_f32 v{T}, v{T}, v{T+2}")
            k(f"v_add_f32 v{T+1}, v{T+1}, v{T+3}")
            k("s_lshl_b32 s26, s24, 3")
            k("s_add_u32 s28, s28, s26")
            k(f"s_add_u32 s28, s28, {WS_ST}")
            k("s_mov_b32 exec_hi, 0")
            k(f"buffer_store_dwordx2 v[{T}:{T+1}], v5, s[16:19], s28 offen")
        else:
            for r in range(8):
                k(f"v_lshlrev_b32 v{T}, 16, v{EP+r}")
                k(f"v_and_b32 v{T+1}, 0xffff0000, v{EP+r}")
                k(f"v_lshlrev_b32 v{T+2}, 16, v{EP+8+r}")
                k(f"v_and_b32 v{T+3}, 0xffff0000, v{EP+8+r}")
                k(f"v_add_f32 v{A0+2*r}, v{A0+2*r}, v{T+2}")
                k(f"v_add_f32 v{A0+2*r+1}, v{A0+2*r+1}, v{T+3}")
                k(f"v_add_f32 v{A0+2*r}, v{A0+2*r}, v{T}")
                k(f"v_add_f32 v{A0+2*r+1}, v{A0+2*r+1}, v{T+1}")
            for r in range(8):
                k(f"v_cvt_pk_bf16_f32 v{PK+r}, v{A0+2*r}, v{A0+2*r+1}")
            k("v_lshlrev_b32 v5, 10, v3")
            k("v_lshl_add_u32 v5, v4, 4, v5")
            for pr in range(2):
                k(f"v_permlane32_swap_b32 v{PK+4*pr}, v{PK+2+4*pr}")
                k(f"v_permlane32_swap_b32 v{PK+1+4*pr}, v{PK+3+4*pr}")
            k("s_lshl_b32 s28, s27, 15")
            k("s_lshl_b32 s26, s21, 7")
            k("s_add_u32 s28, s28, s26")
            k("s_lshl_b32 s26, s24, 6")
            k("s_add_u32 s28, s28, s26")
            k(f"buffer_store_dwordx4 {vr(PK,4)}, v5, s[44:47], s28 offen")
            k(f"buffer_store_dwordx4 {vr(PK+4,4)}, v5, s[44:47], s28 offen offset:32")
    hk = dict(srds_a=srds_a, srds_w=srds_w, cons_pre=cons_pre, epilogue=epilogue)
    if kind == "wo":
        XB = NS*SZ
        def prod_pre(k):
            k("v_mov_b32 v28, 0")
            k(f"v_mov_b32 v29, {XB + 128}")
            k("s_mov_b32 s42, 0")
            k("ds_write_b32 v29, v28")
            k("s_waitcnt lgkmcnt(0)")
        def prod_late(k):
            k("s_mov_b32 s50, %d" % (512*3584)); k("s_mov_b32 s51, 0x00020000")
            k("s_and_b32 s40, s2, 7")
            k("s_lshr_b32 s41, s40, 1"); k("s_mul_i32 s41, s41, 28"); k("s_add_u32 s41, s41, s25")
            k("s_and_b32 s40, s40, 1"); k("s_mul_i32 s40, s40, 112"); k("s_add_u32 s41, s41, s40")
            k("s_min_u32 s41, s41, 223")
            k("s_lshl_b32 s43, s41, 4")
            k("s_mul_i32 s44, s23, %d" % (128*3584)); k("s_add_u32 s40, s43, s44")
            k("v_mul_u32_u24 v30, 3584, v1")
            k("buffer_load_dwordx4 v[40:43], v30, s[48:51], s40 offen")
            k("s_add_u32 s40, s40, %d" % (64*3584))
            k("buffer_load_dwordx4 v[44:47], v30, s[48:51], s40 offen")
            k("s_mov_b32 s54, 3584"); k("s_mov_b32 s55, 0x00020000")
            k("v_mov_b32 v31, 0")
            k("buffer_load_dwordx4 v[72:75], v31, s[52:55], s43 offen")
        def prod_post(k):
            lab = k.label("cs")
            k("s_cmp_ge_u32 s25, 28")
            k(f"s_cbranch_scc1 {lab}")
            for q in range(4):
                k(f"v_lshlrev_b32 v{8+2*q}, 16, v{40+q}")
                k(f"v_and_b32 v{9+2*q}, 0xffff0000, v{40+q}")
                k(f"v_lshlrev_b32 v16, 16, v{44+q}")
                k(f"v_and_b32 v17, 0xffff0000, v{44+q}")
                k(f"v_add_f32 v{8+2*q}, v{8+2*q}, v16")
                k(f"v_add_f32 v{9+2*q}, v{9+2*q}, v17")
            for mode in ["row_shr:1", "row_shr:2", "row_shr:4", "row_shr:8", "row_bcast:15 row_mask:0xa", "row_bcast:31 row_mask:0xc"]:
                k("s_nop 1")
                for r in range(8):
                    m = mode if "row_mask" in mode else mode + " row_mask:0xf"
                    k(f"v_add_f32_dpp v{8+r}, v{8+r}, v{8+r} {m} bank_mask:0xf")
            k("s_lshl_b32 s40, s23, 5")
            k(f"s_add_u32 s40, s40, {XB}")
            k("v_mov_b32 v2, s40")
            k("v_mov_b32 v18, 1")
            k("s_mov_b32 exec_lo, 0")
            k("s_mov_b32 exec_hi, 0x80000000")
            k("ds_write_b128 v2, v[8:11]")
            k("ds_write_b128 v2, v[12:15] offset:16")
            k("s_waitcnt lgkmcnt(0)")
            k("ds_add_rtn_u32 v19, v29, v18")
            k("s_waitcnt lgkmcnt(0)")
            k("v_readlane_b32 s42, v19, 63")
            k("s_mov_b64 exec, -1")
            k(f"{lab}:")
        def prod_fin(k):
            lab = k.label("cs")
            k("s_cmp_lg_u32 s42, 3")
            k(f"s_cbranch_scc1 {lab}")
            k("s_mov_b32 exec_lo, 0")
            k("s_mov_b32 exec_hi, 0x80000000")
            k(f"v_mov_b32 v2, {XB}")
            for p_ in range(4):
                k(f"ds_read_b128 {vr(40+8*p_,4)}, v2 offset:{p_*32}")
                k(f"ds_read_b128 {vr(44+8*p_,4)}, v2 offset:{p_*32+16}")
            k("s_waitcnt lgkmcnt(0)")
            for r in range(8):
                k(f"v_add_f32 v{40+r}, v{40+r}, v{48+r}")
                k(f"v_add_f32 v{56+r}, v{56+r}, v{64+r}")
                k(f"v_add_f32 v{40+r}, v{40+r}, v{56+r}")
            for q in range(4):
                k(f"v_lshlrev_b32 v{16+2*q}, 16, v{72+q}")
                k(f"v_and_b32 v{17+2*q}, 0xffff0000, v{72+q}")
            k("s_lshl_b32 s40, s41, 5")
            k(f"s_add_u32 s40, s40, {WS_CS1}")
            k("s_mov_b32 s18, %d" % WS_END); k("s_mov_b32 s19, 0x00020000")
            k("v_mov_b32 v2, 0")
            k("buffer_store_dwordx4 v[40:43], v2, s[16:19], s40 offen")
            k("buffer_store_dwordx4 v[44:47], v2, s[16:19], s40 offen offset:16")
            k("s_add_u32 s40, s40, 8192")
            k("buffer_store_dwordx4 v[16:19], v2, s[16:19], s40 offen")
            k("buffer_store_dwordx4 v[20:23], v2, s[16:19], s40 offen offset:16")
            k("s_mov_b64 exec, -1")
            k(f"{lab}:")
        def aprod_post(k):
            if os.environ.get("PFW1", "0") == "1":
                k("s_mov_b32 s50, %d" % (512*3584)); k("s_mov_b32 s51, 0x00020000")
                k("v_and_b32 v9, 15, v1")
                k("v_min_u32 v9, 13, v9")
                k("v_lshlrev_b32 v9, 7, v9")
                k("v_lshrrev_b32 v10, 4, v1")
                k("v_mul_u32_u24 v10, 3584, v10")
                k("v_add_u32 v9, v9, v10")
                k("s_lshl_b32 s26, s25, 2"); k("s_add_u32 s26, s26, s23"); k("s_mul_i32 s26, s26, %d" % (4*3584))
                k("s_and_b32 s40, s2, 1"); k("s_mul_i32 s40, s40, 1792"); k("s_add_u32 s26, s26, s40")
                k("buffer_load_dword v10, v9, s[48:51], s26 offen")
        hk.update(aprod_post=aprod_post)
        hk.update(prod_pre=prod_pre, prod_mid=prod_late, prod_chunk_post=lambda k, c, slot: prod_post(k) if c == 6 else None, prod_post=prod_fin)
        cfg["NMID"] = 3; cfg["MID_AT"] = 5
    gemm_core(k, name, cfg, hk)
    assert cfg["FREE"] <= EP
    k(f"{name}_done:")
    k("s_endpgm")
    return k

def colsum_chunk(k, addr_regs, slot, kstride, second, acc):
    for s_ in range(4):
        off = slot + s_*kstride
        hi = off >> 16; lo = off & 0xffff
        if lo + second > 65535: hi += 1; lo -= 65536
        assert lo >= 0
        k(f"ds_read_b64_tr_b16 {vr(32+4*s_,2)}, v{addr_regs[hi]} offset:{lo}")
        k(f"ds_read_b64_tr_b16 {vr(34+4*s_,2)}, v{addr_regs[hi]} offset:{lo+second}")
    for s_ in range(4):
        k(f"s_waitcnt lgkmcnt({2*(3-s_)})")
        for q in range(4):
            r = 32 + 4*s_ + q; t = 48 + 2*(q & 1)
            k(f"v_lshlrev_b32 v{t}, 16, v{r}")
            k(f"v_and_b32 v{t+1}, 0xffff0000, v{r}")
            k(f"v_pk_add_f32 v[{acc}:{acc+1}], v[{acc}:{acc+1}], v[{t}:{t+1}]")

def make_mlp1(ST=False):
    name = "mlp1_kernel"
    NS = 4; SZ = 32768; CSB = NS*SZ; STB = CSB + 1024
    k = Kern(name, 224, 768, CSB + 1024 + 2048, 128)
    common_head(k, name, 224, ST)
    k("s_load_dwordx2 s[16:17], s[0:1], 80")
    k("s_load_dwordx4 s[4:7], s[0:1], 32")
    k("s_load_dwordx2 s[44:45], s[0:1], 48")
    k("s_and_b32 s24, s2, 7")
    k("s_lshr_b32 s25, s2, 3")
    k("s_lshr_b32 s20, s24, 1")
    k("s_lshl_b32 s20, s20, 2")
    k("s_and_b32 s26, s25, 3")
    k("s_add_u32 s20, s20, s26")
    k("s_and_b32 s21, s24, 1")
    k("s_mul_i32 s21, s21, 7")
    k("s_lshr_b32 s29, s25, 2")
    k("s_add_u32 s21, s21, s29")
    if ROT[2] == "0": k("s_mov_b32 s29, 0")
    ids(k)
    k("s_lshl_b32 s30, s20, 17")
    k(f"s_add_u32 s30, s30, {WS_H}")
    k("s_lshl_b32 s32, s21, 8")
    cfg = dict(NTT=4, NG=4, KC=4, NCH=8, NS=NS, AHEAD=2, a_mode="frag", a_srd=16, w_srd=8, w_stride=3584, perm="pi",
               a_tile_stride=32768, wave_ntt=2, wave_ng=2, NSET=2, ST=ST)
    def srds_a(k):
        k("s_mov_b32 s18, %d" % WS_END); k("s_mov_b32 s19, 0x00020000")
    def srds_w(k):
        k.srd(8, 4, 512*3584)
    C0 = -2.0 * 1.4426950408889634 * 0.7978845608028654
    C1 = C0 * 0.044715
    def aprod_pre(k):
        k("v_and_b32 v3, 31, v1")
        k("v_lshrrev_b32 v4, 5, v1")
        k("v_lshlrev_b32 v6, 7, v3")
        k("v_lshl_add_u32 v6, v4, 6, v6")
        k("s_lshl_b32 s27, s20, 2")
        k("s_add_u32 s27, s27, s23")
        k("s_lshl_b32 s31, s27, 12")
        k(f"s_add_u32 s31, s31, {WS_ST}")
        for q in range(4):
            k(f"buffer_load_dwordx4 {vr(64+4*q,4)}, v6, s[16:19], s31 offen offset:{q*16}")
    def aprod_init(k, nafter):
        b = 64
        k(f"s_waitcnt vmcnt({nafter})")
        for q in range(1, 8):
            k(f"v_add_f32 v{b}, v{b}, v{b+2*q}")
            k(f"v_add_f32 v{b+1}, v{b+1}, v{b+1+2*q}")
        k(f"v_mov_b32 v{b+2}, v{b}")
        k(f"v_mov_b32 v{b+3}, v{b+1}")
        k("s_nop 1")
        k(f"v_permlane32_swap_b32 v{b}, v{b+2}")
        k(f"v_permlane32_swap_b32 v{b+1}, v{b+3}")
        k("s_nop 0")
        k(f"v_add_f32 v{b}, v{b}, v{b+2}")
        k(f"v_add_f32 v{b+1}, v{b+1}, v{b+3}")
        k(f"v_mul_f32 v{b}, {f32(1/512)}, v{b}")
        k(f"v_mul_f32 v{b+1}, {f32(1/512)}, v{b+1}")
        k(f"v_fma_f32 v{b+1}, -v{b}, v{b}, v{b+1}")
        k(f"v_max_f32 v{b+1}, 0, v{b+1}")
        k(f"v_add_f32 v{b+2}, {f32(1e-5)}, v{b+1}")
        k(f"v_rsq_f32 v{b+3}, v{b+2}")
        k(f"v_sub_f32 v{b+9}, 0, v{b}")
        k(f"v_mul_f32 v{b+4}, v{b+3}, v{b+3}")
        k(f"v_mul_f32 v{b+4}, v{b+4}, v{b+1}")
        k(f"v_add_f32 v{b+4}, {f32(1e-5)}, v{b+4}")
        k(f"v_rsq_f32 v{b+4}, v{b+4}")
        k("s_nop 0")
        k(f"v_mul_f32 v{b+5}, v{b+3}, v{b+4}")
        k(f"v_rcp_f32 v{b+8}, v{b+5}")
        k(f"v_mul_f32 v{b+10}, {f32(C0)}, v{b+5}")
        k(f"v_mul_f32 v{b+11}, v{b+5}, v{b+5}")
        k(f"v_mul_f32 v{b+11}, v{b+11}, v{b+5}")
        k(f"v_mul_f32 v{b+11}, {f32(C1)}, v{b+11}")
        k("v_lshlrev_b32 v5, 4, v3")
        k("s_lshl_b32 s26, s23, 9")
        k(f"s_add_u32 s26, s26, {STB}")
        k("v_add_u32 v5, s26, v5")
        k(f"ds_write_b128 v5, {vr(b+8,4)}")
        k("s_waitcnt lgkmcnt(0)")
        k("s_barrier")
    def aprod_post(k):
        if os.environ.get("PFW2", "1") == "1":
            k("s_mov_b32 s46, %d" % (1792*1024)); k("s_mov_b32 s47, 0x00020000")
            k("v_lshlrev_b32 v7, 7, v1")
            k("s_lshl_b32 s26, s25, 2"); k("s_add_u32 s26, s26, s23"); k("s_lshl_b32 s26, s26, 14")
            k("buffer_load_dword v8, v7, s[44:47], s26 offen")
            k("s_add_u32 s26, s26, 8192")
            k("buffer_load_dword v8, v7, s[44:47], s26 offen")
    def prod_pre(k):
        k("v_and_b32 v9, 31, v1")
        k("v_lshlrev_b32 v11, 2, v9")
        k("s_mov_b32 s18, %d" % WS_END); k("s_mov_b32 s19, 0x00020000")
        k("s_lshl_b32 s26, s21, 9")
        k("s_lshl_b32 s27, s23, 7")
        k("s_add_u32 s26, s26, s27")
        k(f"s_add_u32 s26, s26, {WS_CS1}")
        k("buffer_load_dword v24, v11, s[16:19], s26 offen")
        k("s_add_u32 s26, s26, 8192")
        k("buffer_load_dword v20, v11, s[16:19], s26 offen")
    def prod_init(k, nafter):
        k(f"s_waitcnt vmcnt({nafter})")
        k("s_lshl_b32 s26, s23, 7")
        k(f"s_add_u32 s26, s26, {CSB}")
        k("v_add_u32 v5, s26, v11")
        k("ds_write_b32 v5, v20 offset:512")
        k("ds_write_b32 v5, v24")
        k("s_waitcnt lgkmcnt(0)")
        k("s_barrier")
    def cons_pre(k):
        k("s_and_b32 s23, s22, 2")
        k("s_and_b32 s24, s22, 1")
        k("s_lshl_b32 s24, s24, 1")
        k("v_and_b32 v3, 31, v1")
        k("v_lshrrev_b32 v4, 5, v1")
        k("v_lshlrev_b32 v2, 4, v1")
        k("s_lshl_b32 s27, s20, 2")
        k("s_add_u32 s27, s27, s23")
        k("s_waitcnt lgkmcnt(0)")
        k("s_mov_b32 s18, %d" % WS_END); k("s_mov_b32 s19, 0x00020000")
        code_prefetch(k, "mlp2_kernel", 1, 124, 80, wave_val=0)
    def acc_init(k, cfg):
        ACC = cfg["ACC"]
        k("v_lshlrev_b32 v5, 4, v4")
        k("s_lshl_b32 s26, s24, 7")
        k(f"s_add_u32 s26, s26, {CSB}")
        k("v_add_u32 v5, s26, v5")
        k("v_lshlrev_b32 v6, 4, v3")
        k("s_lshl_b32 s26, s23, 9")
        k(f"s_add_u32 s26, s26, {STB}")
        k("v_add_u32 v6, s26, v6")
        k("s_barrier")
        F = 28
        k(f"ds_read_b128 v[8:11], v6")
        k(f"ds_read_b128 v[12:15], v6 offset:512")
        P2 = lambda b, r: vr(b+2*r, 2)
        for g in range(2):
            for rr in range(4):
                k(f"ds_read_b128 {vr(ACC+16*g+4*rr,4)}, v5 offset:{512+g*128+rr*32}")
                k(f"ds_read_b128 {vr(ACC+32+16*g+4*rr,4)}, v5 offset:{g*128+rr*32}")
        k("s_waitcnt lgkmcnt(15)")
        k("s_waitcnt lgkmcnt(8)")
        for i in range(2):
            k(f"v_mov_b32 v{F+8+4*i}, v{8+4*i}")
            k(f"v_mov_b32 v{F+9+4*i}, v{8+4*i}")
            k(f"v_mov_b32 v{F+10+4*i}, v{9+4*i}")
            k(f"v_mov_b32 v{F+11+4*i}, v{9+4*i}")
        T = F + 16
        for g in range(2):
            if g == 1: k("s_waitcnt lgkmcnt(0)")
            B = ACC + 16*g; C = ACC + 32 + 16*g
            for r in range(8): k(f"v_pk_mul_f32 {P2(T,r)}, {P2(B,r)}, {vr(F+12,2)}")
            for r in range(8): k(f"v_pk_mul_f32 {P2(B,r)}, {P2(B,r)}, {vr(F+8,2)}")
            for r in range(8): k(f"v_pk_fma_f32 {P2(B,r)}, {P2(C,r)}, {vr(F+10,2)}, {P2(B,r)}")
            for r in range(8): k(f"v_pk_fma_f32 {P2(C,r)}, {P2(C,r)}, {vr(F+14,2)}, {P2(T,r)}")
    def epilogue(k, cfg):
        ACC = cfg["ACC"]
        k(f"s_mul_i32 s30, s27, {112*1024}")
        k("s_lshl_b32 s26, s21, 13")
        k("s_add_u32 s30, s30, s26")
        k("s_lshl_b32 s26, s24, 11")
        k("s_add_u32 s30, s30, s26")
        k(f"s_add_u32 s30, s30, {WS_G}")
        for i in range(2):
            for j, src in enumerate([8+4*i, 10+4*i, 11+4*i]):
                k(f"v_mov_b32 v{16+6*i+2*j}, v{src}")
                k(f"v_mov_b32 v{17+6*i+2*j}, v{src}")
        P2 = lambda b, r: vr(b+2*r, 2)
        T = [28, 44]
        order = [(0,0), (1,0), (0,1), (1,1)]
        def stage1(n):
            i, g = order[n]; acc = ACC + 16*(i*2+g); TT = T[n & 1]; c = 16 + 6*i
            for r in range(8): k(f"v_pk_mul_f32 {P2(TT,r)}, {P2(acc,r)}, {P2(acc,r)}")
            for r in range(8): k(f"v_pk_fma_f32 {P2(TT,r)}, {P2(TT,r)}, {vr(c+4,2)}, {vr(c+2,2)}")
            for r in range(8): k(f"v_pk_mul_f32 {P2(TT,r)}, {P2(TT,r)}, {P2(acc,r)}")
        def stage2(n):
            i, g = order[n]; acc = ACC + 16*(i*2+g); TT = T[n & 1]; c = 16 + 6*i
            for r in range(16): k(f"v_exp_f32 v{TT+r}, v{TT+r}")
            for r in range(8): k(f"v_pk_fma_f32 {P2(TT,r)}, {P2(TT,r)}, {vr(c,2)}, {vr(c,2)}")
            for r in range(16): k(f"v_rcp_f32 v{TT+r}, v{TT+r}")
            for r in range(8): k(f"v_pk_mul_f32 {P2(acc,r)}, {P2(acc,r)}, {P2(TT,r)}")
            for r in range(8): k(f"v_cvt_pk_bf16_f32 v{acc+r}, v{acc+2*r}, v{acc+2*r+1}")
            k(f"s_add_u32 s26, s30, {i*112*1024 + g*2048}")
            k(f"buffer_store_dwordx4 {vr(acc,4)}, v2, s[16:19], s26 offen")
            k(f"buffer_store_dwordx4 {vr(acc+4,4)}, v2, s[16:19], s26 offen offset:1024")
        for n in range(4):
            stage1(n); stage2(n)
    gemm_core(k, name, cfg, dict(srds_a=srds_a, srds_w=srds_w, aprod_pre=aprod_pre, aprod_init=aprod_init, aprod_post=aprod_post, prod_pre=prod_pre, prod_init=prod_init,
                                 cons_pre=cons_pre, acc_init=acc_init, epilogue=epilogue))
    assert cfg["FREE"] <= 128 and cfg["ACC"] == 60
    k(f"{name}_done:")
    k("s_endpgm")
    return k

def make_qkv(ST=False):
    name = "qkv_kernel"
    NS = 5; SZ = 16384 + 12288
    SCR = NS*SZ; CSB = SCR + 16384; STB = CSB + 512
    ONES = 10; CSA = 112
    k = Kern(name, 256, 1024, 163840, 128)
    common_head(k, name, 256, ST)
    k("s_load_dwordx4 s[4:7], s[0:1], 0")
    k("s_load_dwordx2 s[16:17], s[0:1], 80")
    if os.environ.get("SELFPF", "0") == "1":
        sk = k.label("spf")
        k("s_cmp_ge_u32 s2, 8")
        k(f"s_cbranch_scc1 {sk}")
        lab = k.label("pc")
        k("s_getpc_b64 s[80:81]")
        k(f"{lab}:")
        k(f"s_sub_u32 s80, s80, {lab}-qkv_kernel")
        k("s_subb_u32 s81, s81, 0")
        k("v_lshlrev_b32 v103, 7, v0")
        k("v_min_u32 v103, qkv_kernel_end-qkv_kernel-4, v103")
        k("v_mov_b32 v101, s81")
        k("v_add_co_u32 v100, vcc, s80, v103")
        k("s_nop 1")
        k("v_addc_co_u32 v101, vcc, 0, v101, vcc")
        k("v_cmp_gt_u32 vcc, 128, v0")
        k("s_nop 1")
        k("s_and_saveexec_b64 s[84:85], vcc")
        k(f"s_cbranch_execz {sk}r")
        k("global_load_dword v102, v[100:101], off")
        k(f"{sk}r:")
        k("s_mov_b64 exec, s[84:85]")
        k(f"{sk}:")
    k("s_and_b32 s24, s2, 7")
    k("s_lshr_b32 s25, s2, 3")
    k("s_lshr_b32 s20, s24, 1")
    k("s_lshl_b32 s20, s20, 2")
    k("s_and_b32 s26, s25, 3")
    k("s_add_u32 s20, s20, s26")
    k("s_and_b32 s21, s24, 1")
    k("s_lshl_b32 s21, s21, 3")
    k("s_lshr_b32 s27, s25, 2")
    k("s_add_u32 s21, s21, s27")
    k("s_lshl_b32 s26, s26, 1")
    k("s_add_u32 s29, s26, s27")
    k("s_and_b32 s29, s29, 7")
    if ROT[0] == "0": k("s_mov_b32 s29, 0")
    ids(k)
    k("s_lshl_b32 s30, s20, 17")
    k("s_mul_i32 s32, s21, 192")
    cfg = dict(NTT=4, NG=3, KC=4, NCH=8, NS=NS, AHEAD=int(AH[0]), a_mode="rows", a_srd=8, w_srd=12, w_stride=3072, perm="nat",
               wave_ntt=1, wave_ng=3, NSET=2, ST=ST, NVAR=3)
    def srds_a(k):
        k.srd(8, 4, 2048*1024)
    def srds_w(k):
        k.srd(12, 6, 512*3072)
    def helper_pre(k):
        if os.environ.get("SELFPF", "0") == "2": code_prefetch(k, "qkv_kernel", 2, 104, 80, wave_val=13, backward=True)
        code_prefetch(k, "att_kernel", 2, 100, 80, wave_val=12)
        if os.environ.get("TLB", "0") == "1":
            lab = k.label("tlb")
            k("s_cmp_lg_u32 s25, 0")
            k(f"s_cbranch_scc1 {lab}")
            k("s_cmp_lg_u32 s23, 3")
            k(f"s_cbranch_scc1 {lab}")
            k("s_load_dwordx4 s[40:43], s[0:1], 16")
            k("s_load_dwordx8 s[44:51], s[0:1], 32")
            k("s_load_dwordx2 s[52:53], s[0:1], 64")
            k("s_waitcnt lgkmcnt(0)")
            k("s_mov_b32 s18, %d" % WS_END); k("s_mov_b32 s19, 0x00020000")
            k("v_lshlrev_b32 v100, 21, v1")
            k("buffer_load_dword v101, v100, s[16:19], 0 offen")
            k("v_mov_b32 v100, 0")
            for base, size in [(40, 512*1024), (44, 512*3584), (46, 3584), (48, 1792*1024), (50, 1024), (52, 2048*1024)]:
                k.srd(56, base, size)
                k("buffer_load_dword v101, v100, s[56:59], 0 offen")
            k(f"{lab}:")
        if os.environ.get("TOUCH", "0") == "1":
            k("s_waitcnt lgkmcnt(0)")
            k.srd(8, 4, 2048*1024)
            k.srd(12, 6, 512*3072)
            k("s_and_b32 s40, s25, 3")
            k("s_lshr_b32 s41, s25, 2")
            lab = k.label("t"); lab2 = k.label("t")
            k("s_cmp_ge_u32 s23, 2")
            k(f"s_cbranch_scc1 {lab}")
            k("v_lshlrev_b32 v40, 7, v1")
            k("s_lshl_b32 s42, s41, 14"); k("s_lshl_b32 s43, s23, 13"); k("s_add_u32 s42, s42, s43"); k("s_add_u32 s42, s42, s30")
            k("buffer_load_dword v41, v40, s[8:11], s42 offen")
            k(f"{lab}:")
            k("v_lshrrev_b32 v40, 1, v1")
            k("v_mul_u32_u24 v40, 3072, v40")
            k("v_and_b32 v42, 1, v1")
            k("v_lshl_add_u32 v40, v42, 7, v40")
            k("s_lshl_b32 s42, s40, 7"); k("s_lshl_b32 s43, s23, 5"); k("s_add_u32 s42, s42, s43"); k("s_mul_i32 s42, s42, 3072"); k("s_add_u32 s42, s42, s32")
            k("buffer_load_dword v41, v40, s[12:15], s42 offen")
        k("v_lshrrev_b32 v4, 5, v1")
        k("v_and_b32 v5, 31, v1")
        k("v_bfe_u32 v6, v1, 1, 3")
        k("v_xor_b32 v6, v6, v4")
        k("v_lshlrev_b32 v6, 4, v6")
        k("v_lshl_add_u32 v6, v5, 7, v6")
        k("s_lshl_b32 s26, s23, 12")
        k("v_add_u32 v20, s26, v6")
        for s_ in range(1, 4): k(f"v_xor_b32 v{20+s_}, {s_*32}, v20")
        for s_ in range(4): k(f"v_add_u32 v{24+s_}, 0x10000, v{20+s_}")
        for r in range(28, 32): k(f"v_mov_b32 v{r}, 0")
    def stat_ops(k, base):
        for s_ in range(4):
            for q in range(4):
                r = base + 4*s_ + q
                t = 64 + 2*(q & 1)
                k(f"v_lshlrev_b32 v{t}, 16, v{r}")
                k(f"v_and_b32 v{t+1}, 0xffff0000, v{r}")
                k(f"v_add_f32 v28, v28, v{t}")
                k(f"v_add_f32 v29, v29, v{t+1}")
                k(f"v_fmac_f32 v30, v{t}, v{t}")
                k(f"v_fmac_f32 v31, v{t+1}, v{t+1}")
    def helper_chunk(k, c, slot):
        base = 32 + 16*(c & 1)
        for s_ in range(4):
            if slot >= 65536: k(f"ds_read_b128 {vr(base+4*s_,4)}, v{24+s_} offset:{slot-65536}")
            else: k(f"ds_read_b128 {vr(base+4*s_,4)}, v{20+s_} offset:{slot}")
        if c > 0: stat_ops(k, 32 + 16*((c-1) & 1))
        k("s_waitcnt lgkmcnt(0)")
        if c == 7: stat_ops(k, base)
    def helper_post(k):
        k("v_add_f32 v28, v28, v29")
        k("v_add_f32 v30, v30, v31")
        k("v_mov_b32 v29, v28")
        k("v_mov_b32 v31, v30")
        k("s_nop 1")
        k("v_permlane32_swap_b32 v28, v29")
        k("v_permlane32_swap_b32 v30, v31")
        k("s_nop 0")
        k("v_add_f32 v28, v28, v29")
        k("v_add_f32 v30, v30, v31")
        k(f"v_mul_f32 v28, {f32(1/512)}, v28")
        k(f"v_mul_f32 v30, {f32(1/512)}, v30")
        k("v_fma_f32 v30, -v28, v28, v30")
        k("v_max_f32 v30, 0, v30")
        k(f"v_add_f32 v30, {f32(1e-5)}, v30")
        k("v_rsq_f32 v30, v30")
        k("v_lshlrev_b32 v5, 3, v1")
        k("v_mul_f32 v31, v28, v30")
        k("v_sub_f32 v31, 0, v31")
        k("s_lshl_b32 s26, s23, 9")
        k(f"s_add_u32 s26, s26, {STB}")
        k("v_add_u32 v5, s26, v5")
        k("ds_write_b64 v5, v[30:31]")
        k("s_waitcnt lgkmcnt(0)")
        k("s_barrier")
    def cons_pre(k):
        k("s_mov_b32 s23, s22")
        k("s_mov_b32 s24, 0")
        k("v_and_b32 v3, 31, v1")
        k("v_lshrrev_b32 v4, 5, v1")
        k("v_lshlrev_b32 v2, 4, v1")
        for r in range(4): k(f"v_mov_b32 v{ONES+r}, 0x3f803f80")
        for r in range(16): k(f"v_mov_b32 v{CSA+r}, 0")
        k("s_min_u32 s36, s22, 2")
        k("s_waitcnt lgkmcnt(0)")
        k("s_mov_b32 s18, %d" % (6 << 20)); k("s_mov_b32 s19, 0x00020000")
    def after_step(k, s_, fwf):
        k(f"v_mfma_f32_32x32x16_bf16 {vr(CSA,16)}, {vr(fwf(cfg['VAR']),4)}, {vr(ONES,4)}, {vr(CSA,16)}")
    def epilogue(k, cfg):
        ACC = cfg["ACC"]
        k("v_lshlrev_b32 v5, 4, v4")
        k("s_lshl_b32 s26, s36, 7")
        k(f"s_add_u32 s26, s26, {CSB}")
        k("v_add_u32 v11, s26, v5")
        k("s_mov_b32 exec_lo, 1")
        k("s_mov_b32 exec_hi, 1")
        k("s_nop 4")
        for rr in range(4):
            k(f"ds_write_b128 v11, {vr(CSA+4*rr,4)} offset:{rr*32}")
        k("s_mov_b64 exec, -1")
        k("s_lshl_b32 s27, s20, 2")
        k("s_add_u32 s27, s27, s22")
        k("s_lshl_b32 s27, s27, 10")
        k("s_mul_i32 s28, s21, 3")
        QS = 0.25 * 1.4426950408889634
        k("s_lshl_b32 s31, s22, 13")
        k("v_mul_u32_u24 v6, 72, v3")
        k("v_lshl_add_u32 v6, v4, 3, v6")
        k("v_add_u32 v6, s31, v6")
        k("v_bfe_u32 v7, v1, 2, 2")
        k("v_lshl_add_u32 v8, v4, 2, v7")
        k("v_mul_u32_u24 v8, 72, v8")
        k("v_bfe_u32 v7, v1, 4, 1")
        k("v_lshl_add_u32 v8, v7, 5, v8")
        k("v_and_b32 v7, 3, v1")
        k("v_lshl_add_u32 v8, v7, 3, v8")
        k("v_add_u32 v8, s31, v8")
        k("v_bfe_u32 v9, v1, 4, 1")
        k("v_lshlrev_b32 v9, 16, v9")
        k("v_lshl_add_u32 v9, v4, 8, v9")
        k("v_and_b32 v7, 15, v1")
        k("v_lshl_add_u32 v9, v7, 4, v9")
        k("v_lshlrev_b32 v5, 4, v4")
        k(f"v_add_u32 v5, {CSB}, v5")
        k("v_lshlrev_b32 v10, 3, v1")
        k("s_lshl_b32 s26, s22, 9")
        k(f"s_add_u32 s26, s26, {STB}")
        k("v_add_u32 v10, s26, v10")
        k("s_waitcnt lgkmcnt(0)")
        k("s_barrier")
        k("ds_read_b64 v[12:13], v10")
        CSR = [16, 32, 48]
        for g in range(3):
            for rr in range(4):
                k(f"ds_read_b128 {vr(CSR[g]+4*rr,4)}, v5 offset:{g*128+rr*32}")
        P2 = lambda b, r: vr(b+2*r, 2)
        for g in range(3):
            acc = ACC + 16*g; cs = CSR[g]
            lq = k.label("q"); lv = k.label("v"); le = k.label("e")
            k(f"s_add_u32 s33, s28, {g}")
            k(f"s_waitcnt lgkmcnt({8-4*g})")
            k("v_mov_b32 v114, v12")
            k("v_mov_b32 v116, v13")
            k("s_cmp_ge_u32 s33, 16")
            k(f"s_cbranch_scc1 {lq}")
            k(f"v_mul_f32 v114, {f32(QS)}, v114")
            k(f"v_mul_f32 v116, {f32(QS)}, v116")
            k(f"{lq}:")
            k("v_mov_b32 v115, v114")
            k("v_mov_b32 v117, v116")
            for r in range(8): k(f"v_pk_mul_f32 {P2(cs,r)}, {P2(cs,r)}, v[116:117]")
            for r in range(8): k(f"v_pk_fma_f32 {P2(acc,r)}, {P2(acc,r)}, v[114:115], {P2(cs,r)}")
            for r in range(8): k(f"v_cvt_pk_bf16_f32 v{acc+r}, v{acc+2*r}, v{acc+2*r+1}")
            k("s_lshr_b32 s34, s33, 4")
            k("s_lshl_b32 s34, s34, 21")
            k("s_and_b32 s35, s33, 15")
            k("s_lshl_b32 s35, s35, 17")
            k("s_add_u32 s34, s34, s35")
            k("s_add_u32 s34, s34, s27")
            k(f"s_mov_b32 s{40+g}, s34")
            k("s_cmp_ge_u32 s33, 32")
            k(f"s_cbranch_scc1 {lv}")
            k(f"buffer_store_dwordx4 {vr(acc,4)}, v2, s[16:19], s34 offen")
            k("s_add_u32 s34, s34, 65536")
            k(f"buffer_store_dwordx4 {vr(acc+4,4)}, v2, s[16:19], s34 offen")
            k(f"s_branch {le}")
            k(f"{lv}:")
            for rr in range(4):
                k(f"ds_write_b64 v6, {vr(acc+2*rr,2)} offset:{g*2304+rr*16}")
            k(f"{le}:")
        lend = k.label("ve")
        k("s_add_u32 s33, s28, 2")
        k("s_cmp_lt_u32 s33, 32")
        k(f"s_cbranch_scc1 {lend}")
        k("s_waitcnt lgkmcnt(0)")
        for g in range(3):
            acc = ACC + 16*g
            for j in range(2):
                k(f"ds_read_b64_tr_b16 {vr(acc+8+4*j,2)}, v8 offset:{g*2304+j*16*72}")
                k(f"ds_read_b64_tr_b16 {vr(acc+8+4*j+2,2)}, v8 offset:{g*2304+j*16*72+8*72}")
        for g in range(3):
            acc = ACC + 16*g
            ls = k.label("vs")
            k(f"s_waitcnt lgkmcnt({8-4*g})")
            k(f"s_add_u32 s33, s28, {g}")
            k("s_cmp_lt_u32 s33, 32")
            k(f"s_cbranch_scc1 {ls}")
            k(f"buffer_store_dwordx4 {vr(acc+8,4)}, v9, s[16:19], s{40+g} offen")
            k(f"buffer_store_dwordx4 {vr(acc+12,4)}, v9, s[16:19], s{40+g} offen offset:512")
            k(f"{ls}:")
        k(f"{lend}:")
    gemm_core(k, name, cfg, dict(srds_a=srds_a, srds_w=srds_w,
                                 helper_pre=helper_pre, helper_chunk=helper_chunk, helper_post=helper_post,
                                 cons_pre=cons_pre, pre_step=after_step, epilogue=epilogue))
    assert cfg["FREE"] <= 112 and cfg["ACC"] == 64
    k(f"{name}_done:")
    k("s_endpgm")
    return k
```

```python
from dsl import *
from gemm import gemm_core
import os
ROT = os.environ.get("ROT", "0010")
AH = os.environ.get("AH", "2424")

def common_head(k, name, nwg, ST):
    k(f"s_cmp_ge_u32 s2, {nwg}")
    k(f"s_cbranch_scc1 {name}_done")
    if ST: stamp_rt(k, 0)
    stamp(k, 1, ST)

def ids(k):
    k("v_lshrrev_b32 v2, 6, v0")
    k("v_and_b32 v1, 63, v0")
    k("v_readfirstlane_b32 s22, v2")
    if os.environ.get("WREMAP", "1") == "1":
        k("s_nop 3")
        k("s_add_u32 s36, s22, 4")
        k("s_sub_u32 s37, s22, 8")
        k("s_cmp_lt_u32 s22, 8")
        k("s_cselect_b32 s36, s36, s37")
        k("s_cmp_ge_u32 s22, 12")
        k("s_cselect_b32 s22, s22, s36")

def make_g64(kind, ST=False):
    name = kind + "_kernel"
    KS = 32 if kind == "wo" else 112
    NCH = KS // 4
    NS = 8
    SZ = 16384
    k = Kern(name, 256, 768, NS*SZ + 256, 128)
    A_WS = WS_O if kind == "wo" else WS_G
    common_head(k, name, 256, ST)
    k("s_load_dwordx2 s[16:17], s[0:1], 80")
    if kind == "wo":
        k("s_load_dwordx2 s[4:5], s[0:1], 16")
        k("s_load_dwordx2 s[6:7], s[0:1], 0")
        k("s_load_dwordx2 s[48:49], s[0:1], 32")
        k("s_load_dwordx2 s[52:53], s[0:1], 40")
    else:
        k("s_load_dwordx2 s[4:5], s[0:1], 48")
        k("s_load_dwordx4 s[40:43], s[0:1], 56")
    k("s_and_b32 s24, s2, 7")
    k("s_lshr_b32 s25, s2, 3")
    k("s_lshl_b32 s20, s24, 2")
    k("s_and_b32 s26, s25, 3")
    k("s_add_u32 s20, s20, s26")
    k("s_lshr_b32 s21, s25, 2")
    ids(k)
    k(f"s_mul_i32 s29, s21, {NCH}")
    k("s_lshr_b32 s29, s29, 3")
    if ROT[1 if kind == "wo" else 3] == "0": k("s_mov_b32 s29, 0")
    k(f"s_mul_i32 s30, s20, {2*KS*1024}")
    k(f"s_add_u32 s30, s30, {A_WS}")
    k("s_lshl_b32 s32, s21, 7")
    cfg = dict(NTT=2, NG=2, KC=4, NCH=NCH, NS=NS, AHEAD=int(AH[1 if kind == "wo" else 3]), a_mode="frag", a_srd=16, w_srd=8, w_stride=1024, perm="pi",
               a_tile_stride=KS*1024, wave_ntt=1, wave_ng=1, NSET=4, ST=ST)
    def srds_a(k):
        k("s_mov_b32 s18, %d" % WS_END); k("s_mov_b32 s19, 0x00020000")
    def srds_w(k):
        k.srd(8, 4, KS*16*1024)
    EP = 96
    def cons_pre(k):
        k("s_lshr_b32 s23, s22, 1")
        k("s_and_b32 s24, s22, 1")
        k("v_and_b32 v3, 31, v1")
        k("v_lshrrev_b32 v4, 5, v1")
        k("v_lshlrev_b32 v2, 4, v1")
        k("s_lshl_b32 s27, s20, 1")
        k("s_add_u32 s27, s27, s23")
        k("s_waitcnt lgkmcnt(0)")
        k("s_mov_b32 s18, %d" % WS_END); k("s_mov_b32 s19, 0x00020000")
        if kind == "wo": code_prefetch(k, "mlp1_kernel", 1, 120, 80, wave_val=0)
        if os.environ.get("TOUCHA", "0") == "1":
            SH = 2*KS*1024//8
            k("v_lshlrev_b32 v9, 7, v1")
            k(f"s_mul_i32 s26, s21, {SH}")
            k(f"s_mul_i32 s28, s22, {SH//4}")
            k("s_add_u32 s26, s26, s28")
            k("s_add_u32 s26, s26, s30")
            nl = SH//4//128
            if nl < 64:
                k(f"v_min_u32 v9, {(nl-1)*128}, v9")
            k("buffer_load_dword v10, v9, s[16:19], s26 offen")
        if kind == "wo":
            k.srd(12, 6, 2048*1024)
            k("v_lshlrev_b32 v5, 10, v3")
            k("v_lshl_add_u32 v5, v4, 3, v5")
            k("s_lshl_b32 s28, s27, 15")
            k("s_lshl_b32 s26, s21, 7")
            k("s_add_u32 s28, s28, s26")
            k("s_lshl_b32 s26, s24, 6")
            k("s_add_u32 s28, s28, s26")
            for rr in range(4):
                k(f"buffer_load_dwordx2 {vr(EP+2*rr,2)}, v5, s[12:15], s28 offen offset:{rr*16}")
        else:
            k.srd(12, 40, 1024)
            k.srd(44, 42, 2048*1024)
            k("s_lshl_b32 s28, s27, 15")
            k("s_lshl_b32 s26, s21, 12")
            k("s_add_u32 s28, s28, s26")
            k("s_lshl_b32 s26, s24, 11")
            k("s_add_u32 s28, s28, s26")
            k(f"s_add_u32 s28, s28, {WS_H}")
            k(f"buffer_load_dwordx4 {vr(EP,4)}, v2, s[16:19], s28 offen")
            k(f"buffer_load_dwordx4 {vr(EP+4,4)}, v2, s[16:19], s28 offen offset:1024")
            k("v_lshlrev_b32 v5, 3, v4")
            k("s_lshl_b32 s28, s21, 7")
            k("s_lshl_b32 s26, s24, 6")
            k("s_add_u32 s28, s28, s26")
            for rr in range(4):
                k(f"buffer_load_dwordx2 {vr(EP+8+2*rr,2)}, v5, s[12:15], s28 offen offset:{rr*16}")
    def epilogue(k, cfg):
        A0 = cfg["ACC"]; T = 112; PK = 116
        k("s_waitcnt vmcnt(0)")
        k("s_nop 11")
        if kind == "wo":
            for r in range(8):
                d = EP + r
                k(f"v_lshlrev_b32 v{T}, 16, v{d}")
                k(f"v_and_b32 v{T+1}, 0xffff0000, v{d}")
                k(f"v_add_f32 v{A0+2*r}, v{A0+2*r}, v{T}")
                k(f"v_add_f32 v{A0+2*r+1}, v{A0+2*r+1}, v{T+1}")
            for r in range(8):
                k(f"v_cvt_pk_bf16_f32 v{PK+r}, v{A0+2*r}, v{A0+2*r+1}")
            k("s_lshl_b32 s28, s27, 15")
            k("s_lshl_b32 s26, s21, 12")
            k("s_add_u32 s28, s28, s26")
            k("s_lshl_b32 s26, s24, 11")
            k("s_add_u32 s28, s28, s26")
            k(f"s_add_u32 s28, s28, {WS_H}")
            k(f"buffer_store_dwordx4 {vr(PK,4)}, v2, s[16:19], s28 offen")
            k(f"buffer_store_dwordx4 {vr(PK+4,4)}, v2, s[16:19], s28 offen offset:1024")
            k(f"v_add_f32 v{T}, v{A0}, v{A0+1}")
            k(f"v_mul_f32 v{T+1}, v{A0}, v{A0}")
            k(f"v_fmac_f32 v{T+1}, v{A0+1}, v{A0+1}")
            k(f"v_add_f32 v{T+2}, v{A0+2}, v{A0+3}")
            k(f"v_mul_f32 v{T+3}, v{A0+2}, v{A0+2}")
            k(f"v_fmac_f32 v{T+3}, v{A0+3}, v{A0+3}")
            for r in range(4, 16, 2):
                k(f"v_add_f32 v{T+(r&2)}, v{T+(r&2)}, v{A0+r}")
                k(f"v_fmac_f32 v{T+1+(r&2)}, v{A0+r}, v{A0+r}")
                k(f"v_add_f32 v{T+(r&2)}, v{T+(r&2)}, v{A0+r+1}")
                k(f"v_fmac_f32 v{T+1+(r&2)}, v{A0+r+1}, v{A0+r+1}")
            k(f"v_add_f32 v{T}, v{T}, v{T+2}")
            k(f"v_add_f32 v{T+1}, v{T+1}, v{T+3}")
            k(f"v_mov_b32 v{T+2}, v{T}")
            k(f"v_mov_b32 v{T+3}, v{T+1}")
            k("v_lshlrev_b32 v5, 7, v3")
            k("s_lshl_b32 s28, s27, 12")
            k(f"v_permlane32_swap_b32 v{T}, v{T+2}")
            k(f"v_permlane32_swap_b32 v{T+1}, v{T+3}")
            k("s_lshl_b32 s26, s21, 4")
            k("s_add_u32 s28, s28, s26")
            k(f"v_add_f32 v{T}, v{T}, v{T+2}")
            k(f"v_add_f32 v{T+1}, v{T+1}, v{T+3}")
            k("s_lshl_b32 s26, s24, 3")
            k("s_add_u32 s28, s28, s26")
            k(f"s_add_u32 s28, s28, {WS_ST}")
            k("s_mov_b32 exec_hi, 0")
            k(f"buffer_store_dwordx2 v[{T}:{T+1}], v5, s[16:19], s28 offen")
        else:
            for r in range(8):
                k(f"v_lshlrev_b32 v{T}, 16, v{EP+r}")
                k(f"v_and_b32 v{T+1}, 0xffff0000, v{EP+r}")
                k(f"v_lshlrev_b32 v{T+2}, 16, v{EP+8+r}")
                k(f"v_and_b32 v{T+3}, 0xffff0000, v{EP+8+r}")
                k(f"v_add_f32 v{A0+2*r}, v{A0+2*r}, v{T+2}")
                k(f"v_add_f32 v{A0+2*r+1}, v{A0+2*r+1}, v{T+3}")
                k(f"v_add_f32 v{A0+2*r}, v{A0+2*r}, v{T}")
                k(f"v_add_f32 v{A0+2*r+1}, v{A0+2*r+1}, v{T+1}")
            for r in range(8):
                k(f"v_cvt_pk_bf16_f32 v{PK+r}, v{A0+2*r}, v{A0+2*r+1}")
            k("v_lshlrev_b32 v5, 10, v3")
            k("v_lshl_add_u32 v5, v4, 4, v5")
            for pr in range(2):
                k(f"v_permlane32_swap_b32 v{PK+4*pr}, v{PK+2+4*pr}")
                k(f"v_permlane32_swap_b32 v{PK+1+4*pr}, v{PK+3+4*pr}")
            k("s_lshl_b32 s28, s27, 15")
            k("s_lshl_b32 s26, s21, 7")
            k("s_add_u32 s28, s28, s26")
            k("s_lshl_b32 s26, s24, 6")
            k("s_add_u32 s28, s28, s26")
            k(f"buffer_store_dwordx4 {vr(PK,4)}, v5, s[44:47], s28 offen")
            k(f"buffer_store_dwordx4 {vr(PK+4,4)}, v5, s[44:47], s28 offen offset:32")
    hk = dict(srds_a=srds_a, srds_w=srds_w, cons_pre=cons_pre, epilogue=epilogue)
    if kind == "wo":
        XB = NS*SZ
        def prod_pre(k):
            k("v_mov_b32 v28, 0")
            k(f"v_mov_b32 v29, {XB + 128}")
            k("s_mov_b32 s42, 0")
            k("ds_write_b32 v29, v28")
            k("s_waitcnt lgkmcnt(0)")
        def prod_late(k):
            k("s_mov_b32 s50, %d" % (512*3584)); k("s_mov_b32 s51, 0x00020000")
            k("s_and_b32 s40, s2, 7")
            k("s_lshr_b32 s41, s40, 1"); k("s_mul_i32 s41, s41, 28"); k("s_add_u32 s41, s41, s25")
            k("s_and_b32 s40, s40, 1"); k("s_mul_i32 s40, s40, 112"); k("s_add_u32 s41, s41, s40")
            k("s_min_u32 s41, s41, 223")
            k("s_lshl_b32 s43, s41, 4")
            k("s_mul_i32 s44, s23, %d" % (128*3584)); k("s_add_u32 s40, s43, s44")
            k("v_mul_u32_u24 v30, 3584, v1")
            k("buffer_load_dwordx4 v[40:43], v30, s[48:51], s40 offen")
            k("s_add_u32 s40, s40, %d" % (64*3584))
            k("buffer_load_dwordx4 v[44:47], v30, s[48:51], s40 offen")
            k("s_mov_b32 s54, 3584"); k("s_mov_b32 s55, 0x00020000")
            k("v_mov_b32 v31, 0")
            k("buffer_load_dwordx4 v[72:75], v31, s[52:55], s43 offen")
        def prod_post(k):
            lab = k.label("cs")
            k("s_cmp_ge_u32 s25, 28")
            k(f"s_cbranch_scc1 {lab}")
            for q in range(4):
                k(f"v_lshlrev_b32 v{8+2*q}, 16, v{40+q}")
                k(f"v_and_b32 v{9+2*q}, 0xffff0000, v{40+q}")
                k(f"v_lshlrev_b32 v16, 16, v{44+q}")
                k(f"v_and_b32 v17, 0xffff0000, v{44+q}")
                k(f"v_add_f32 v{8+2*q}, v{8+2*q}, v16")
                k(f"v_add_f32 v{9+2*q}, v{9+2*q}, v17")
            for mode in ["row_shr:1", "row_shr:2", "row_shr:4", "row_shr:8", "row_bcast:15 row_mask:0xa", "row_bcast:31 row_mask:0xc"]:
                k("s_nop 1")
                for r in range(8):
                    m = mode if "row_mask" in mode else mode + " row_mask:0xf"
                    k(f"v_add_f32_dpp v{8+r}, v{8+r}, v{8+r} {m} bank_mask:0xf")
            k("s_lshl_b32 s40, s23, 5")
            k(f"s_add_u32 s40, s40, {XB}")
            k("v_mov_b32 v2, s40")
            k("v_mov_b32 v18, 1")
            k("s_mov_b32 exec_lo, 0")
            k("s_mov_b32 exec_hi, 0x80000000")
            k("ds_write_b128 v2, v[8:11]")
            k("ds_write_b128 v2, v[12:15] offset:16")
            k("s_waitcnt lgkmcnt(0)")
            k("ds_add_rtn_u32 v19, v29, v18")
            k("s_waitcnt lgkmcnt(0)")
            k("v_readlane_b32 s42, v19, 63")
            k("s_mov_b64 exec, -1")
            k(f"{lab}:")
        def prod_fin(k):
            lab = k.label("cs")
            k("s_cmp_lg_u32 s42, 3")
            k(f"s_cbranch_scc1 {lab}")
            k("s_mov_b32 exec_lo, 0")
            k("s_mov_b32 exec_hi, 0x80000000")
            k(f"v_mov_b32 v2, {XB}")
            for p_ in range(4):
                k(f"ds_read_b128 {vr(40+8*p_,4)}, v2 offset:{p_*32}")
                k(f"ds_read_b128 {vr(44+8*p_,4)}, v2 offset:{p_*32+16}")
            k("s_waitcnt lgkmcnt(0)")
            for r in range(8):
                k(f"v_add_f32 v{40+r}, v{40+r}, v{48+r}")
                k(f"v_add_f32 v{56+r}, v{56+r}, v{64+r}")
                k(f"v_add_f32 v{40+r}, v{40+r}, v{56+r}")
            for q in range(4):
                k(f"v_lshlrev_b32 v{16+2*q}, 16, v{72+q}")
                k(f"v_and_b32 v{17+2*q}, 0xffff0000, v{72+q}")
            k("s_lshl_b32 s40, s41, 5")
            k(f"s_add_u32 s40, s40, {WS_CS1}")
            k("s_mov_b32 s18, %d" % WS_END); k("s_mov_b32 s19, 0x00020000")
            k("v_mov_b32 v2, 0")
            k("buffer_store_dwordx4 v[40:43], v2, s[16:19], s40 offen")
            k("buffer_store_dwordx4 v[44:47], v2, s[16:19], s40 offen offset:16")
            k("s_add_u32 s40, s40, 8192")
            k("buffer_store_dwordx4 v[16:19], v2, s[16:19], s40 offen")
            k("buffer_store_dwordx4 v[20:23], v2, s[16:19], s40 offen offset:16")
            k("s_mov_b64 exec, -1")
            k(f"{lab}:")
        def aprod_post(k):
            if os.environ.get("PFW1", "0") == "1":
                k("s_mov_b32 s50, %d" % (512*3584)); k("s_mov_b32 s51, 0x00020000")
                k("v_and_b32 v9, 15, v1")
                k("v_min_u32 v9, 13, v9")
                k("v_lshlrev_b32 v9, 7, v9")
                k("v_lshrrev_b32 v10, 4, v1")
                k("v_mul_u32_u24 v10, 3584, v10")
                k("v_add_u32 v9, v9, v10")
                k("s_lshl_b32 s26, s25, 2"); k("s_add_u32 s26, s26, s23"); k("s_mul_i32 s26, s26, %d" % (4*3584))
                k("s_and_b32 s40, s2, 1"); k("s_mul_i32 s40, s40, 1792"); k("s_add_u32 s26, s26, s40")
                k("buffer_load_dword v10, v9, s[48:51], s26 offen")
        hk.update(aprod_post=aprod_post)
        hk.update(prod_pre=prod_pre, prod_mid=prod_late, prod_chunk_post=lambda k, c, slot: prod_post(k) if c == 6 else None, prod_post=prod_fin)
        cfg["NMID"] = 3; cfg["MID_AT"] = 5
    gemm_core(k, name, cfg, hk)
    assert cfg["FREE"] <= EP
    k(f"{name}_done:")
    k("s_endpgm")
    return k

def colsum_chunk(k, addr_regs, slot, kstride, second, acc):
    for s_ in range(4):
        off = slot + s_*kstride
        hi = off >> 16; lo = off & 0xffff
        if lo + second > 65535: hi += 1; lo -= 65536
        assert lo >= 0
        k(f"ds_read_b64_tr_b16 {vr(32+4*s_,2)}, v{addr_regs[hi]} offset:{lo}")
        k(f"ds_read_b64_tr_b16 {vr(34+4*s_,2)}, v{addr_regs[hi]} offset:{lo+second}")
    for s_ in range(4):
        k(f"s_waitcnt lgkmcnt({2*(3-s_)})")
        for q in range(4):
            r = 32 + 4*s_ + q; t = 48 + 2*(q & 1)
            k(f"v_lshlrev_b32 v{t}, 16, v{r}")
            k(f"v_and_b32 v{t+1}, 0xffff0000, v{r}")
            k(f"v_pk_add_f32 v[{acc}:{acc+1}], v[{acc}:{acc+1}], v[{t}:{t+1}]")

def make_mlp1(ST=False):
    name = "mlp1_kernel"
    NS = 4; SZ = 32768; CSB = NS*SZ; STB = CSB + 1024
    k = Kern(name, 224, 768, CSB + 1024 + 2048, 128)
    common_head(k, name, 224, ST)
    k("s_load_dwordx2 s[16:17], s[0:1], 80")
    k("s_load_dwordx4 s[4:7], s[0:1], 32")
    k("s_load_dwordx2 s[44:45], s[0:1], 48")
    k("s_and_b32 s24, s2, 7")
    k("s_lshr_b32 s25, s2, 3")
    k("s_lshr_b32 s20, s24, 1")
    k("s_lshl_b32 s20, s20, 2")
    k("s_and_b32 s26, s25, 3")
    k("s_add_u32 s20, s20, s26")
    k("s_and_b32 s21, s24, 1")
    k("s_mul_i32 s21, s21, 7")
    k("s_lshr_b32 s29, s25, 2")
    k("s_add_u32 s21, s21, s29")
    if ROT[2] == "0": k("s_mov_b32 s29, 0")
    ids(k)
    k("s_lshl_b32 s30, s20, 17")
    k(f"s_add_u32 s30, s30, {WS_H}")
    k("s_lshl_b32 s32, s21, 8")
    cfg = dict(NTT=4, NG=4, KC=4, NCH=8, NS=NS, AHEAD=2, a_mode="frag", a_srd=16, w_srd=8, w_stride=3584, perm="pi",
               a_tile_stride=32768, wave_ntt=2, wave_ng=2, NSET=2, ST=ST)
    def srds_a(k):
        k("s_mov_b32 s18, %d" % WS_END); k("s_mov_b32 s19, 0x00020000")
    def srds_w(k):
        k.srd(8, 4, 512*3584)
    C0 = -2.0 * 1.4426950408889634 * 0.7978845608028654
    C1 = C0 * 0.044715
    def aprod_pre(k):
        k("v_and_b32 v3, 31, v1")
        k("v_lshrrev_b32 v4, 5, v1")
        k("v_lshlrev_b32 v6, 7, v3")
        k("v_lshl_add_u32 v6, v4, 6, v6")
        k("s_lshl_b32 s27, s20, 2")
        k("s_add_u32 s27, s27, s23")
        k("s_lshl_b32 s31, s27, 12")
        k(f"s_add_u32 s31, s31, {WS_ST}")
        for q in range(4):
            k(f"buffer_load_dwordx4 {vr(64+4*q,4)}, v6, s[16:19], s31 offen offset:{q*16}")
    def aprod_init(k, nafter):
        b = 64
        k(f"s_waitcnt vmcnt({nafter})")
        for q in range(1, 8):
            k(f"v_add_f32 v{b}, v{b}, v{b+2*q}")
            k(f"v_add_f32 v{b+1}, v{b+1}, v{b+1+2*q}")
        k(f"v_mov_b32 v{b+2}, v{b}")
        k(f"v_mov_b32 v{b+3}, v{b+1}")
        k("s_nop 1")
        k(f"v_permlane32_swap_b32 v{b}, v{b+2}")
        k(f"v_permlane32_swap_b32 v{b+1}, v{b+3}")
        k("s_nop 0")
        k(f"v_add_f32 v{b}, v{b}, v{b+2}")
        k(f"v_add_f32 v{b+1}, v{b+1}, v{b+3}")
        k(f"v_mul_f32 v{b}, {f32(1/512)}, v{b}")
        k(f"v_mul_f32 v{b+1}, {f32(1/512)}, v{b+1}")
        k(f"v_fma_f32 v{b+1}, -v{b}, v{b}, v{b+1}")
        k(f"v_max_f32 v{b+1}, 0, v{b+1}")
        k(f"v_add_f32 v{b+2}, {f32(1e-5)}, v{b+1}")
        k(f"v_rsq_f32 v{b+3}, v{b+2}")
        k(f"v_sub_f32 v{b+9}, 0, v{b}")
        k(f"v_mul_f32 v{b+4}, v{b+3}, v{b+3}")
        k(f"v_mul_f32 v{b+4}, v{b+4}, v{b+1}")
        k(f"v_add_f32 v{b+4}, {f32(1e-5)}, v{b+4}")
        k(f"v_rsq_f32 v{b+4}, v{b+4}")
        k("s_nop 0")
        k(f"v_mul_f32 v{b+5}, v{b+3}, v{b+4}")
        k(f"v_rcp_f32 v{b+8}, v{b+5}")
        k(f"v_mul_f32 v{b+10}, {f32(C0)}, v{b+5}")
        k(f"v_mul_f32 v{b+11}, v{b+5}, v{b+5}")
        k(f"v_mul_f32 v{b+11}, v{b+11}, v{b+5}")
        k(f"v_mul_f32 v{b+11}, {f32(C1)}, v{b+11}")
        k("v_lshlrev_b32 v5, 4, v3")
        k("s_lshl_b32 s26, s23, 9")
        k(f"s_add_u32 s26, s26, {STB}")
        k("v_add_u32 v5, s26, v5")
        k(f"ds_write_b128 v5, {vr(b+8,4)}")
        k("s_waitcnt lgkmcnt(0)")
        k("s_barrier")
    def aprod_post(k):
        if os.environ.get("PFW2", "1") == "1":
            k("s_mov_b32 s46, %d" % (1792*1024)); k("s_mov_b32 s47, 0x00020000")
            k("v_lshlrev_b32 v7, 7, v1")
            k("s_lshl_b32 s26, s25, 2"); k("s_add_u32 s26, s26, s23"); k("s_lshl_b32 s26, s26, 14")
            k("buffer_load_dword v8, v7, s[44:47], s26 offen")
            k("s_add_u32 s26, s26, 8192")
            k("buffer_load_dword v8, v7, s[44:47], s26 offen")
    def prod_pre(k):
        k("v_and_b32 v9, 31, v1")
        k("v_lshlrev_b32 v11, 2, v9")
        k("s_mov_b32 s18, %d" % WS_END); k("s_mov_b32 s19, 0x00020000")
        k("s_lshl_b32 s26, s21, 9")
        k("s_lshl_b32 s27, s23, 7")
        k("s_add_u32 s26, s26, s27")
        k(f"s_add_u32 s26, s26, {WS_CS1}")
        k("buffer_load_dword v24, v11, s[16:19], s26 offen")
        k("s_add_u32 s26, s26, 8192")
        k("buffer_load_dword v20, v11, s[16:19], s26 offen")
    def prod_init(k, nafter):
        k(f"s_waitcnt vmcnt({nafter})")
        k("s_lshl_b32 s26, s23, 7")
        k(f"s_add_u32 s26, s26, {CSB}")
        k("v_add_u32 v5, s26, v11")
        k("ds_write_b32 v5, v20 offset:512")
        k("ds_write_b32 v5, v24")
        k("s_waitcnt lgkmcnt(0)")
        k("s_barrier")
    def cons_pre(k):
        k("s_and_b32 s23, s22, 2")
        k("s_and_b32 s24, s22, 1")
        k("s_lshl_b32 s24, s24, 1")
        k("v_and_b32 v3, 31, v1")
        k("v_lshrrev_b32 v4, 5, v1")
        k("v_lshlrev_b32 v2, 4, v1")
        k("s_lshl_b32 s27, s20, 2")
        k("s_add_u32 s27, s27, s23")
        k("s_waitcnt lgkmcnt(0)")
        k("s_mov_b32 s18, %d" % WS_END); k("s_mov_b32 s19, 0x00020000")
        code_prefetch(k, "mlp2_kernel", 1, 124, 80, wave_val=0)
    def acc_init(k, cfg):
        ACC = cfg["ACC"]
        k("v_lshlrev_b32 v5, 4, v4")
        k("s_lshl_b32 s26, s24, 7")
        k(f"s_add_u32 s26, s26, {CSB}")
        k("v_add_u32 v5, s26, v5")
        k("v_lshlrev_b32 v6, 4, v3")
        k("s_lshl_b32 s26, s23, 9")
        k(f"s_add_u32 s26, s26, {STB}")
        k("v_add_u32 v6, s26, v6")
        k("s_barrier")
        F = 28
        k(f"ds_read_b128 v[8:11], v6")
        k(f"ds_read_b128 v[12:15], v6 offset:512")
        P2 = lambda b, r: vr(b+2*r, 2)
        for g in range(2):
            for rr in range(4):
                k(f"ds_read_b128 {vr(ACC+16*g+4*rr,4)}, v5 offset:{512+g*128+rr*32}")
                k(f"ds_read_b128 {vr(ACC+32+16*g+4*rr,4)}, v5 offset:{g*128+rr*32}")
        k("s_waitcnt lgkmcnt(15)")
        k("s_waitcnt lgkmcnt(8)")
        for i in range(2):
            k(f"v_mov_b32 v{F+8+4*i}, v{8+4*i}")
            k(f"v_mov_b32 v{F+9+4*i}, v{8+4*i}")
            k(f"v_mov_b32 v{F+10+4*i}, v{9+4*i}")
            k(f"v_mov_b32 v{F+11+4*i}, v{9+4*i}")
        T = F + 16
        for g in range(2):
            if g == 1: k("s_waitcnt lgkmcnt(0)")
            B = ACC + 16*g; C = ACC + 32 + 16*g
            for r in range(8): k(f"v_pk_mul_f32 {P2(T,r)}, {P2(B,r)}, {vr(F+12,2)}")
            for r in range(8): k(f"v_pk_mul_f32 {P2(B,r)}, {P2(B,r)}, {vr(F+8,2)}")
            for r in range(8): k(f"v_pk_fma_f32 {P2(B,r)}, {P2(C,r)}, {vr(F+10,2)}, {P2(B,r)}")
            for r in range(8): k(f"v_pk_fma_f32 {P2(C,r)}, {P2(C,r)}, {vr(F+14,2)}, {P2(T,r)}")
    def epilogue(k, cfg):
        ACC = cfg["ACC"]
        k(f"s_mul_i32 s30, s27, {112*1024}")
        k("s_lshl_b32 s26, s21, 13")
        k("s_add_u32 s30, s30, s26")
        k("s_lshl_b32 s26, s24, 11")
        k("s_add_u32 s30, s30, s26")
        k(f"s_add_u32 s30, s30, {WS_G}")
        for i in range(2):
            for j, src in enumerate([8+4*i, 10+4*i, 11+4*i]):
                k(f"v_mov_b32 v{16+6*i+2*j}, v{src}")
                k(f"v_mov_b32 v{17+6*i+2*j}, v{src}")
        P2 = lambda b, r: vr(b+2*r, 2)
        T = [28, 44]
        order = [(0,0), (1,0), (0,1), (1,1)]
        def stage1(n):
            i, g = order[n]; acc = ACC + 16*(i*2+g); TT = T[n & 1]; c = 16 + 6*i
            for r in range(8): k(f"v_pk_mul_f32 {P2(TT,r)}, {P2(acc,r)}, {P2(acc,r)}")
            for r in range(8): k(f"v_pk_fma_f32 {P2(TT,r)}, {P2(TT,r)}, {vr(c+4,2)}, {vr(c+2,2)}")
            for r in range(8): k(f"v_pk_mul_f32 {P2(TT,r)}, {P2(TT,r)}, {P2(acc,r)}")
        def stage2(n):
            i, g = order[n]; acc = ACC + 16*(i*2+g); TT = T[n & 1]; c = 16 + 6*i
            for r in range(16): k(f"v_exp_f32 v{TT+r}, v{TT+r}")
            for r in range(8): k(f"v_pk_fma_f32 {P2(TT,r)}, {P2(TT,r)}, {vr(c,2)}, {vr(c,2)}")
            for r in range(16): k(f"v_rcp_f32 v{TT+r}, v{TT+r}")
            for r in range(8): k(f"v_pk_mul_f32 {P2(acc,r)}, {P2(acc,r)}, {P2(TT,r)}")
            for r in range(8): k(f"v_cvt_pk_bf16_f32 v{acc+r}, v{acc+2*r}, v{acc+2*r+1}")
            k(f"s_add_u32 s26, s30, {i*112*1024 + g*2048}")
            k(f"buffer_store_dwordx4 {vr(acc,4)}, v2, s[16:19], s26 offen")
            k(f"buffer_store_dwordx4 {vr(acc+4,4)}, v2, s[16:19], s26 offen offset:1024")
        for n in range(4):
            stage1(n); stage2(n)
    gemm_core(k, name, cfg, dict(srds_a=srds_a, srds_w=srds_w, aprod_pre=aprod_pre, aprod_init=aprod_init, aprod_post=aprod_post, prod_pre=prod_pre, prod_init=prod_init,
                                 cons_pre=cons_pre, acc_init=acc_init, epilogue=epilogue))
    assert cfg["FREE"] <= 128 and cfg["ACC"] == 60
    k(f"{name}_done:")
    k("s_endpgm")
    return k

def make_qkv(ST=False, FUSED=False):
    name = "qkv_kernel"
    NS = 5; SZ = 16384 + 12288
    SCR = NS*SZ; CSB = SCR + 16384; STB = CSB + 512
    ONES = 10; CSA = 112
    k = Kern(name, 256, 1024, 163840, 128)
    common_head(k, name, 256, ST)
    k("s_load_dwordx4 s[4:7], s[0:1], 0")
    k("s_load_dwordx2 s[16:17], s[0:1], 80")
    if FUSED: k("s_load_dwordx4 s[48:51], s[0:1], 32")
    if os.environ.get("SELFPF", "0") == "1":
        sk = k.label("spf")
        k("s_cmp_ge_u32 s2, 8")
        k(f"s_cbranch_scc1 {sk}")
        lab = k.label("pc")
        k("s_getpc_b64 s[80:81]")
        k(f"{lab}:")
        k(f"s_sub_u32 s80, s80, {lab}-qkv_kernel")
        k("s_subb_u32 s81, s81, 0")
        k("v_lshlrev_b32 v103, 7, v0")
        k("v_min_u32 v103, qkv_kernel_end-qkv_kernel-4, v103")
        k("v_mov_b32 v101, s81")
        k("v_add_co_u32 v100, vcc, s80, v103")
        k("s_nop 1")
        k("v_addc_co_u32 v101, vcc, 0, v101, vcc")
        k("v_cmp_gt_u32 vcc, 128, v0")
        k("s_nop 1")
        k("s_and_saveexec_b64 s[84:85], vcc")
        k(f"s_cbranch_execz {sk}r")
        k("global_load_dword v102, v[100:101], off")
        k(f"{sk}r:")
        k("s_mov_b64 exec, s[84:85]")
        k(f"{sk}:")
    k("s_and_b32 s24, s2, 7")
    k("s_lshr_b32 s25, s2, 3")
    k("s_lshr_b32 s20, s24, 1")
    k("s_lshl_b32 s20, s20, 2")
    k("s_and_b32 s26, s25, 3")
    k("s_add_u32 s20, s20, s26")
    k("s_and_b32 s21, s24, 1")
    k("s_lshl_b32 s21, s21, 3")
    k("s_lshr_b32 s27, s25, 2")
    k("s_add_u32 s21, s21, s27")
    k("s_lshl_b32 s26, s26, 1")
    k("s_add_u32 s29, s26, s27")
    k("s_and_b32 s29, s29, 7")
    if ROT[0] == "0": k("s_mov_b32 s29, 0")
    ids(k)
    k("s_lshl_b32 s30, s20, 17")
    k("s_mul_i32 s32, s21, 192")
    cfg = dict(NTT=4, NG=3, KC=4, NCH=8, NS=NS, AHEAD=int(AH[0]), a_mode="rows", a_srd=8, w_srd=12, w_stride=3072, perm="nat",
               wave_ntt=1, wave_ng=3, NSET=2, ST=ST, NVAR=3)
    def srds_a(k):
        k.srd(8, 4, 2048*1024)
    def srds_w(k):
        k.srd(12, 6, 512*3072)
    XB = STB + 2048
    def prod_pre(k):
        k("v_mov_b32 v28, 0")
        k(f"v_mov_b32 v29, {XB + 128}")
        k("s_mov_b32 s46, 0")
        k("ds_write_b32 v29, v28")
        k("s_waitcnt lgkmcnt(0)")
    def prod_mid(k):
        k("s_mov_b64 s[52:53], s[50:51]")
        k("s_mov_b32 s54, 3584"); k("s_mov_b32 s55, 0x00020000")
        k("s_mov_b32 s50, %d" % (512*3584)); k("s_mov_b32 s51, 0x00020000")
        k("s_min_u32 s41, s2, 223")
        k("s_lshl_b32 s43, s41, 4")
        k("s_mul_i32 s44, s23, %d" % (128*3584)); k("s_add_u32 s40, s43, s44")
        k("v_mul_u32_u24 v30, 3584, v1")
        k("buffer_load_dwordx4 v[40:43], v30, s[48:51], s40 offen")
        k("s_add_u32 s40, s40, %d" % (64*3584))
        k("buffer_load_dwordx4 v[44:47], v30, s[48:51], s40 offen")
        k("v_mov_b32 v31, 0")
        k("buffer_load_dwordx4 v[72:75], v31, s[52:55], s43 offen")
    def prod_red(k):
        lab = k.label("cs")
        k("s_cmp_ge_u32 s2, 224")
        k(f"s_cbranch_scc1 {lab}")
        for q in range(4):
            k(f"v_lshlrev_b32 v{8+2*q}, 16, v{40+q}")
            k(f"v_and_b32 v{9+2*q}, 0xffff0000, v{40+q}")
            k(f"v_lshlrev_b32 v16, 16, v{44+q}")
            k(f"v_and_b32 v17, 0xffff0000, v{44+q}")
            k(f"v_add_f32 v{8+2*q}, v{8+2*q}, v16")
            k(f"v_add_f32 v{9+2*q}, v{9+2*q}, v17")
        for mode in ["row_shr:1", "row_shr:2", "row_shr:4", "row_shr:8", "row_bcast:15 row_mask:0xa", "row_bcast:31 row_mask:0xc"]:
            k("s_nop 1")
            for r in range(8):
                m = mode if "row_mask" in mode else mode + " row_mask:0xf"
                k(f"v_add_f32_dpp v{8+r}, v{8+r}, v{8+r} {m} bank_mask:0xf")
        k("s_lshl_b32 s40, s23, 5")
        k(f"s_add_u32 s40, s40, {XB}")
        k("v_mov_b32 v2, s40")
        k("v_mov_b32 v18, 1")
        k("s_mov_b32 exec_lo, 0")
        k("s_mov_b32 exec_hi, 0x80000000")
        k("ds_write_b128 v2, v[8:11]")
        k("ds_write_b128 v2, v[12:15] offset:16")
        k("s_waitcnt lgkmcnt(0)")
        k("ds_add_rtn_u32 v19, v29, v18")
        k("s_waitcnt lgkmcnt(0)")
        k("v_readlane_b32 s46, v19, 63")
        k("s_mov_b64 exec, -1")
        k(f"{lab}:")
    def prod_fin(k):
        lab = k.label("cs")
        k("s_cmp_lg_u32 s46, 3")
        k(f"s_cbranch_scc1 {lab}")
        k("s_mov_b32 exec_lo, 0")
        k("s_mov_b32 exec_hi, 0x80000000")
        k(f"v_mov_b32 v2, {XB}")
        for p_ in range(4):
            k(f"ds_read_b128 {vr(40+8*p_,4)}, v2 offset:{p_*32}")
            k(f"ds_read_b128 {vr(44+8*p_,4)}, v2 offset:{p_*32+16}")
        k("s_waitcnt lgkmcnt(0)")
        for r in range(8):
            k(f"v_add_f32 v{40+r}, v{40+r}, v{48+r}")
            k(f"v_add_f32 v{56+r}, v{56+r}, v{64+r}")
            k(f"v_add_f32 v{40+r}, v{40+r}, v{56+r}")
        for q in range(4):
            k(f"v_lshlrev_b32 v{16+2*q}, 16, v{72+q}")
            k(f"v_and_b32 v{17+2*q}, 0xffff0000, v{72+q}")
        k("s_lshl_b32 s40, s41, 5")
        k(f"s_add_u32 s40, s40, {WS_CS1}")
        k("s_mov_b32 s18, %d" % WS_END); k("s_mov_b32 s19, 0x00020000")
        k("v_mov_b32 v2, 0")
        k("buffer_store_dwordx4 v[40:43], v2, s[16:19], s40 offen")
        k("buffer_store_dwordx4 v[44:47], v2, s[16:19], s40 offen offset:16")
        k("s_add_u32 s40, s40, 8192")
        k("buffer_store_dwordx4 v[16:19], v2, s[16:19], s40 offen")
        k("buffer_store_dwordx4 v[20:23], v2, s[16:19], s40 offen offset:16")
        k("s_mov_b64 exec, -1")
        k(f"{lab}:")
    def helper_pre(k):
        if FUSED:
            lz = k.label("z")
            k("s_cmp_lg_u32 s2, 0"); k(f"s_cbranch_scc1 {lz}")
            k("s_cmp_lg_u32 s23, 0"); k(f"s_cbranch_scc1 {lz}")
            k("s_waitcnt lgkmcnt(0)")
            k("s_mov_b32 s18, %d" % WS_END); k("s_mov_b32 s19, 0x00020000")
            for r in range(4): k(f"v_mov_b32 v{96+r}, 0")
            k("v_lshlrev_b32 v100, 4, v1")
            k(f"s_mov_b32 s40, {WS_CNT}")
            k("buffer_store_dwordx4 v[96:99], v100, s[16:19], s40 offen")
            k(f"{lz}:")
        if os.environ.get("SELFPF", "0") == "2": code_prefetch(k, "qkv_kernel", 2, 104, 80, wave_val=13, backward=True)
        code_prefetch(k, "post_kernel" if FUSED else "att_kernel", 3 if FUSED else 2, 104, 80, wave_val=12)
        if os.environ.get("TLB", "0") == "1":
            lab = k.label("tlb")
            k("s_cmp_lg_u32 s25, 0")
            k(f"s_cbranch_scc1 {lab}")
            k("s_cmp_lg_u32 s23, 3")
            k(f"s_cbranch_scc1 {lab}")
            k("s_load_dwordx4 s[40:43], s[0:1], 16")
            k("s_load_dwordx8 s[44:51], s[0:1], 32")
            k("s_load_dwordx2 s[52:53], s[0:1], 64")
            k("s_waitcnt lgkmcnt(0)")
            k("s_mov_b32 s18, %d" % WS_END); k("s_mov_b32 s19, 0x00020000")
            k("v_lshlrev_b32 v100, 21, v1")
            k("buffer_load_dword v101, v100, s[16:19], 0 offen")
            k("v_mov_b32 v100, 0")
            for base, size in [(40, 512*1024), (44, 512*3584), (46, 3584), (48, 1792*1024), (50, 1024), (52, 2048*1024)]:
                k.srd(56, base, size)
                k("buffer_load_dword v101, v100, s[56:59], 0 offen")
            k(f"{lab}:")
        if os.environ.get("TOUCH", "0") == "1":
            k("s_waitcnt lgkmcnt(0)")
            k.srd(8, 4, 2048*1024)
            k.srd(12, 6, 512*3072)
            k("s_and_b32 s40, s25, 3")
            k("s_lshr_b32 s41, s25, 2")
            lab = k.label("t"); lab2 = k.label("t")
            k("s_cmp_ge_u32 s23, 2")
            k(f"s_cbranch_scc1 {lab}")
            k("v_lshlrev_b32 v40, 7, v1")
            k("s_lshl_b32 s42, s41, 14"); k("s_lshl_b32 s43, s23, 13"); k("s_add_u32 s42, s42, s43"); k("s_add_u32 s42, s42, s30")
            k("buffer_load_dword v41, v40, s[8:11], s42 offen")
            k(f"{lab}:")
            k("v_lshrrev_b32 v40, 1, v1")
            k("v_mul_u32_u24 v40, 3072, v40")
            k("v_and_b32 v42, 1, v1")
            k("v_lshl_add_u32 v40, v42, 7, v40")
            k("s_lshl_b32 s42, s40, 7"); k("s_lshl_b32 s43, s23, 5"); k("s_add_u32 s42, s42, s43"); k("s_mul_i32 s42, s42, 3072"); k("s_add_u32 s42, s42, s32")
            k("buffer_load_dword v41, v40, s[12:15], s42 offen")
        k("v_lshrrev_b32 v4, 5, v1")
        k("v_and_b32 v5, 31, v1")
        k("v_bfe_u32 v6, v1, 1, 3")
        k("v_xor_b32 v6, v6, v4")
        k("v_lshlrev_b32 v6, 4, v6")
        k("v_lshl_add_u32 v6, v5, 7, v6")
        k("s_lshl_b32 s26, s23, 12")
        k("v_add_u32 v20, s26, v6")
        for s_ in range(1, 4): k(f"v_xor_b32 v{20+s_}, {s_*32}, v20")
        for s_ in range(4): k(f"v_add_u32 v{24+s_}, 0x10000, v{20+s_}")
        for r in range(28, 32): k(f"v_mov_b32 v{r}, 0")
    def stat_ops(k, base):
        for s_ in range(4):
            for q in range(4):
                r = base + 4*s_ + q
                t = 64 + 2*(q & 1)
                k(f"v_lshlrev_b32 v{t}, 16, v{r}")
                k(f"v_and_b32 v{t+1}, 0xffff0000, v{r}")
                k(f"v_add_f32 v28, v28, v{t}")
                k(f"v_add_f32 v29, v29, v{t+1}")
                k(f"v_fmac_f32 v30, v{t}, v{t}")
                k(f"v_fmac_f32 v31, v{t+1}, v{t+1}")
    def helper_chunk(k, c, slot):
        base = 32 + 16*(c & 1)
        for s_ in range(4):
            if slot >= 65536: k(f"ds_read_b128 {vr(base+4*s_,4)}, v{24+s_} offset:{slot-65536}")
            else: k(f"ds_read_b128 {vr(base+4*s_,4)}, v{20+s_} offset:{slot}")
        if c > 0: stat_ops(k, 32 + 16*((c-1) & 1))
        k("s_waitcnt lgkmcnt(0)")
        if c == 7: stat_ops(k, base)
    def helper_post(k):
        k("v_add_f32 v28, v28, v29")
        k("v_add_f32 v30, v30, v31")
        k("v_mov_b32 v29, v28")
        k("v_mov_b32 v31, v30")
        k("s_nop 1")
        k("v_permlane32_swap_b32 v28, v29")
        k("v_permlane32_swap_b32 v30, v31")
        k("s_nop 0")
        k("v_add_f32 v28, v28, v29")
        k("v_add_f32 v30, v30, v31")
        k(f"v_mul_f32 v28, {f32(1/512)}, v28")
        k(f"v_mul_f32 v30, {f32(1/512)}, v30")
        k("v_fma_f32 v30, -v28, v28, v30")
        k("v_max_f32 v30, 0, v30")
        k(f"v_add_f32 v30, {f32(1e-5)}, v30")
        k("v_rsq_f32 v30, v30")
        k("v_lshlrev_b32 v5, 3, v1")
        k("v_mul_f32 v31, v28, v30")
        k("v_sub_f32 v31, 0, v31")
        k("s_lshl_b32 s26, s23, 9")
        k(f"s_add_u32 s26, s26, {STB}")
        k("v_add_u32 v5, s26, v5")
        k("ds_write_b64 v5, v[30:31]")
        k("s_waitcnt lgkmcnt(0)")
        k("s_barrier")
    def cons_pre(k):
        k("s_mov_b32 s23, s22")
        k("s_mov_b32 s24, 0")
        k("v_and_b32 v3, 31, v1")
        k("v_lshrrev_b32 v4, 5, v1")
        k("v_lshlrev_b32 v2, 4, v1")
        for r in range(4): k(f"v_mov_b32 v{ONES+r}, 0x3f803f80")
        for r in range(16): k(f"v_mov_b32 v{CSA+r}, 0")
        k("s_min_u32 s36, s22, 2")
        k("s_waitcnt lgkmcnt(0)")
        k("s_mov_b32 s18, %d" % (6 << 20)); k("s_mov_b32 s19, 0x00020000")
    def after_step(k, s_, fwf):
        k(f"v_mfma_f32_32x32x16_bf16 {vr(CSA,16)}, {vr(fwf(cfg['VAR']),4)}, {vr(ONES,4)}, {vr(CSA,16)}")
    def epilogue(k, cfg):
        ACC = cfg["ACC"]
        k("v_lshlrev_b32 v5, 4, v4")
        k("s_lshl_b32 s26, s36, 7")
        k(f"s_add_u32 s26, s26, {CSB}")
        k("v_add_u32 v11, s26, v5")
        k("s_mov_b32 exec_lo, 1")
        k("s_mov_b32 exec_hi, 1")
        k("s_nop 4")
        for rr in range(4):
            k(f"ds_write_b128 v11, {vr(CSA+4*rr,4)} offset:{rr*32}")
        k("s_mov_b64 exec, -1")
        k("s_lshl_b32 s27, s20, 2")
        k("s_add_u32 s27, s27, s22")
        k("s_lshl_b32 s27, s27, 10")
        k("s_mul_i32 s28, s21, 3")
        QS = 0.25 * 1.4426950408889634
        k("s_lshl_b32 s31, s22, 13")
        k("v_mul_u32_u24 v6, 72, v3")
        k("v_lshl_add_u32 v6, v4, 3, v6")
        k("v_add_u32 v6, s31, v6")
        k("v_bfe_u32 v7, v1, 2, 2")
        k("v_lshl_add_u32 v8, v4, 2, v7")
        k("v_mul_u32_u24 v8, 72, v8")
        k("v_bfe_u32 v7, v1, 4, 1")
        k("v_lshl_add_u32 v8, v7, 5, v8")
        k("v_and_b32 v7, 3, v1")
        k("v_lshl_add_u32 v8, v7, 3, v8")
        k("v_add_u32 v8, s31, v8")
        k("v_bfe_u32 v9, v1, 4, 1")
        k("v_lshlrev_b32 v9, 16, v9")
        k("v_lshl_add_u32 v9, v4, 8, v9")
        k("v_and_b32 v7, 15, v1")
        k("v_lshl_add_u32 v9, v7, 4, v9")
        k("v_lshlrev_b32 v5, 4, v4")
        k(f"v_add_u32 v5, {CSB}, v5")
        k("v_lshlrev_b32 v10, 3, v1")
        k("s_lshl_b32 s26, s22, 9")
        k(f"s_add_u32 s26, s26, {STB}")
        k("v_add_u32 v10, s26, v10")
        k("s_waitcnt lgkmcnt(0)")
        k("s_barrier")
        k("ds_read_b64 v[12:13], v10")
        CSR = [16, 32, 48]
        for g in range(3):
            for rr in range(4):
                k(f"ds_read_b128 {vr(CSR[g]+4*rr,4)}, v5 offset:{g*128+rr*32}")
        P2 = lambda b, r: vr(b+2*r, 2)
        for g in range(3):
            acc = ACC + 16*g; cs = CSR[g]
            lq = k.label("q"); lv = k.label("v"); le = k.label("e")
            k(f"s_add_u32 s33, s28, {g}")
            k(f"s_waitcnt lgkmcnt({8-4*g})")
            k("v_mov_b32 v114, v12")
            k("v_mov_b32 v116, v13")
            k("s_cmp_ge_u32 s33, 16")
            k(f"s_cbranch_scc1 {lq}")
            k(f"v_mul_f32 v114, {f32(QS)}, v114")
            k(f"v_mul_f32 v116, {f32(QS)}, v116")
            k(f"{lq}:")
            k("v_mov_b32 v115, v114")
            k("v_mov_b32 v117, v116")
            for r in range(8): k(f"v_pk_mul_f32 {P2(cs,r)}, {P2(cs,r)}, v[116:117]")
            for r in range(8): k(f"v_pk_fma_f32 {P2(acc,r)}, {P2(acc,r)}, v[114:115], {P2(cs,r)}")
            for r in range(8): k(f"v_cvt_pk_bf16_f32 v{acc+r}, v{acc+2*r}, v{acc+2*r+1}")
            k("s_lshr_b32 s34, s33, 4")
            k("s_lshl_b32 s34, s34, 21")
            k("s_and_b32 s35, s33, 15")
            k("s_lshl_b32 s35, s35, 17")
            k("s_add_u32 s34, s34, s35")
            k("s_add_u32 s34, s34, s27")
            k(f"s_mov_b32 s{40+g}, s34")
            k("s_cmp_ge_u32 s33, 32")
            k(f"s_cbranch_scc1 {lv}")
            k(f"buffer_store_dwordx4 {vr(acc,4)}, v2, s[16:19], s34 offen")
            k("s_add_u32 s34, s34, 65536")
            k(f"buffer_store_dwordx4 {vr(acc+4,4)}, v2, s[16:19], s34 offen")
            k(f"s_branch {le}")
            k(f"{lv}:")
            for rr in range(4):
                k(f"ds_write_b64 v6, {vr(acc+2*rr,2)} offset:{g*2304+rr*16}")
            k(f"{le}:")
        lend = k.label("ve")
        k("s_add_u32 s33, s28, 2")
        k("s_cmp_lt_u32 s33, 32")
        k(f"s_cbranch_scc1 {lend}")
        k("s_waitcnt lgkmcnt(0)")
        for g in range(3):
            acc = ACC + 16*g
            for j in range(2):
                k(f"ds_read_b64_tr_b16 {vr(acc+8+4*j,2)}, v8 offset:{g*2304+j*16*72}")
                k(f"ds_read_b64_tr_b16 {vr(acc+8+4*j+2,2)}, v8 offset:{g*2304+j*16*72+8*72}")
        for g in range(3):
            acc = ACC + 16*g
            ls = k.label("vs")
            k(f"s_waitcnt lgkmcnt({8-4*g})")
            k(f"s_add_u32 s33, s28, {g}")
            k("s_cmp_lt_u32 s33, 32")
            k(f"s_cbranch_scc1 {ls}")
            k(f"buffer_store_dwordx4 {vr(acc+8,4)}, v9, s[16:19], s{40+g} offen")
            k(f"buffer_store_dwordx4 {vr(acc+12,4)}, v9, s[16:19], s{40+g} offen offset:512")
            k(f"{ls}:")
        k(f"{lend}:")
    hk = dict(srds_a=srds_a, srds_w=srds_w, helper_pre=helper_pre, helper_chunk=helper_chunk, helper_post=helper_post,
              cons_pre=cons_pre, pre_step=after_step, epilogue=epilogue)
    if FUSED and False:
        def prod_all(k):
            k("s_waitcnt vmcnt(0)")
            prod_red(k); prod_fin(k)
        hk.update(prod_pre=prod_pre, prod_late=prod_mid, prod_post=prod_all)
        cfg["NLATE"] = 3
    gemm_core(k, name, cfg, hk)
    assert cfg["FREE"] <= 112 and cfg["ACC"] == 64
    k(f"{name}_done:")
    k("s_endpgm")
    return k
```

```python
from dsl import *
from gemm import gemm_core
import os
ROT = os.environ.get("ROT", "0010")
AH = os.environ.get("AH", "2424")

def common_head(k, name, nwg, ST):
    k(f"s_cmp_ge_u32 s2, {nwg}")
    k(f"s_cbranch_scc1 {name}_done")
    if ST: stamp_rt(k, 0)
    stamp(k, 1, ST)

def ids(k):
    k("v_lshrrev_b32 v2, 6, v0")
    k("v_and_b32 v1, 63, v0")
    k("v_readfirstlane_b32 s22, v2")
    if os.environ.get("WREMAP", "1") == "1":
        k("s_nop 3")
        k("s_add_u32 s36, s22, 4")
        k("s_sub_u32 s37, s22, 8")
        k("s_cmp_lt_u32 s22, 8")
        k("s_cselect_b32 s36, s36, s37")
        k("s_cmp_ge_u32 s22, 12")
        k("s_cselect_b32 s22, s22, s36")

def make_g64(kind, ST=False):
    name = kind + "_kernel"
    KS = 32 if kind == "wo" else 112
    NCH = KS // 4
    NS = 8
    SZ = 16384
    k = Kern(name, 256, 768, NS*SZ + 256, 128)
    A_WS = WS_O if kind == "wo" else WS_G
    common_head(k, name, 256, ST)
    k("s_load_dwordx2 s[16:17], s[0:1], 80")
    if kind == "wo":
        k("s_load_dwordx2 s[4:5], s[0:1], 16")
        k("s_load_dwordx2 s[6:7], s[0:1], 0")
        k("s_load_dwordx2 s[48:49], s[0:1], 32")
        k("s_load_dwordx2 s[52:53], s[0:1], 40")
    else:
        k("s_load_dwordx2 s[4:5], s[0:1], 48")
        k("s_load_dwordx4 s[40:43], s[0:1], 56")
    k("s_and_b32 s24, s2, 7")
    k("s_lshr_b32 s25, s2, 3")
    k("s_lshl_b32 s20, s24, 2")
    k("s_and_b32 s26, s25, 3")
    k("s_add_u32 s20, s20, s26")
    k("s_lshr_b32 s21, s25, 2")
    ids(k)
    k(f"s_mul_i32 s29, s21, {NCH}")
    k("s_lshr_b32 s29, s29, 3")
    if ROT[1 if kind == "wo" else 3] == "0": k("s_mov_b32 s29, 0")
    k(f"s_mul_i32 s30, s20, {2*KS*1024}")
    k(f"s_add_u32 s30, s30, {A_WS}")
    k("s_lshl_b32 s32, s21, 7")
    cfg = dict(NTT=2, NG=2, KC=4, NCH=NCH, NS=NS, AHEAD=int(AH[1 if kind == "wo" else 3]), a_mode="frag", a_srd=16, w_srd=8, w_stride=1024, perm="pi",
               a_tile_stride=KS*1024, wave_ntt=1, wave_ng=1, NSET=4, ST=ST)
    def srds_a(k):
        k("s_mov_b32 s18, %d" % WS_END); k("s_mov_b32 s19, 0x00020000")
    def srds_w(k):
        k.srd(8, 4, KS*16*1024)
    EP = 96
    def cons_pre(k):
        k("s_lshr_b32 s23, s22, 1")
        k("s_and_b32 s24, s22, 1")
        k("v_and_b32 v3, 31, v1")
        k("v_lshrrev_b32 v4, 5, v1")
        k("v_lshlrev_b32 v2, 4, v1")
        k("s_lshl_b32 s27, s20, 1")
        k("s_add_u32 s27, s27, s23")
        k("s_waitcnt lgkmcnt(0)")
        k("s_mov_b32 s18, %d" % WS_END); k("s_mov_b32 s19, 0x00020000")
        if kind == "wo": code_prefetch(k, "mlp1_kernel", 1, 120, 80, wave_val=0)
        if os.environ.get("TOUCHA", "0") == "1":
            SH = 2*KS*1024//8
            k("v_lshlrev_b32 v9, 7, v1")
            k(f"s_mul_i32 s26, s21, {SH}")
            k(f"s_mul_i32 s28, s22, {SH//4}")
            k("s_add_u32 s26, s26, s28")
            k("s_add_u32 s26, s26, s30")
            nl = SH//4//128
            if nl < 64:
                k(f"v_min_u32 v9, {(nl-1)*128}, v9")
            k("buffer_load_dword v10, v9, s[16:19], s26 offen")
        if kind == "wo":
            k.srd(12, 6, 2048*1024)
            k("v_lshlrev_b32 v5, 10, v3")
            k("v_lshl_add_u32 v5, v4, 3, v5")
            k("s_lshl_b32 s28, s27, 15")
            k("s_lshl_b32 s26, s21, 7")
            k("s_add_u32 s28, s28, s26")
            k("s_lshl_b32 s26, s24, 6")
            k("s_add_u32 s28, s28, s26")
            for rr in range(4):
                k(f"buffer_load_dwordx2 {vr(EP+2*rr,2)}, v5, s[12:15], s28 offen offset:{rr*16}")
        else:
            k.srd(12, 40, 1024)
            k.srd(44, 42, 2048*1024)
            k("s_lshl_b32 s28, s27, 15")
            k("s_lshl_b32 s26, s21, 12")
            k("s_add_u32 s28, s28, s26")
            k("s_lshl_b32 s26, s24, 11")
            k("s_add_u32 s28, s28, s26")
            k(f"s_add_u32 s28, s28, {WS_H}")
            k(f"buffer_load_dwordx4 {vr(EP,4)}, v2, s[16:19], s28 offen")
            k(f"buffer_load_dwordx4 {vr(EP+4,4)}, v2, s[16:19], s28 offen offset:1024")
            k("v_lshlrev_b32 v5, 3, v4")
            k("s_lshl_b32 s28, s21, 7")
            k("s_lshl_b32 s26, s24, 6")
            k("s_add_u32 s28, s28, s26")
            for rr in range(4):
                k(f"buffer_load_dwordx2 {vr(EP+8+2*rr,2)}, v5, s[12:15], s28 offen offset:{rr*16}")
    def epilogue(k, cfg):
        A0 = cfg["ACC"]; T = 112; PK = 116
        k("s_waitcnt vmcnt(0)")
        k("s_nop 11")
        if kind == "wo":
            for r in range(8):
                d = EP + r
                k(f"v_lshlrev_b32 v{T}, 16, v{d}")
                k(f"v_and_b32 v{T+1}, 0xffff0000, v{d}")
                k(f"v_add_f32 v{A0+2*r}, v{A0+2*r}, v{T}")
                k(f"v_add_f32 v{A0+2*r+1}, v{A0+2*r+1}, v{T+1}")
            for r in range(8):
                k(f"v_cvt_pk_bf16_f32 v{PK+r}, v{A0+2*r}, v{A0+2*r+1}")
            k("s_lshl_b32 s28, s27, 15")
            k("s_lshl_b32 s26, s21, 12")
            k("s_add_u32 s28, s28, s26")
            k("s_lshl_b32 s26, s24, 11")
            k("s_add_u32 s28, s28, s26")
            k(f"s_add_u32 s28, s28, {WS_H}")
            k(f"buffer_store_dwordx4 {vr(PK,4)}, v2, s[16:19], s28 offen")
            k(f"buffer_store_dwordx4 {vr(PK+4,4)}, v2, s[16:19], s28 offen offset:1024")
            k(f"v_add_f32 v{T}, v{A0}, v{A0+1}")
            k(f"v_mul_f32 v{T+1}, v{A0}, v{A0}")
            k(f"v_fmac_f32 v{T+1}, v{A0+1}, v{A0+1}")
            k(f"v_add_f32 v{T+2}, v{A0+2}, v{A0+3}")
            k(f"v_mul_f32 v{T+3}, v{A0+2}, v{A0+2}")
            k(f"v_fmac_f32 v{T+3}, v{A0+3}, v{A0+3}")
            for r in range(4, 16, 2):
                k(f"v_add_f32 v{T+(r&2)}, v{T+(r&2)}, v{A0+r}")
                k(f"v_fmac_f32 v{T+1+(r&2)}, v{A0+r}, v{A0+r}")
                k(f"v_add_f32 v{T+(r&2)}, v{T+(r&2)}, v{A0+r+1}")
                k(f"v_fmac_f32 v{T+1+(r&2)}, v{A0+r+1}, v{A0+r+1}")
            k(f"v_add_f32 v{T}, v{T}, v{T+2}")
            k(f"v_add_f32 v{T+1}, v{T+1}, v{T+3}")
            k(f"v_mov_b32 v{T+2}, v{T}")
            k(f"v_mov_b32 v{T+3}, v{T+1}")
            k("v_lshlrev_b32 v5, 7, v3")
            k("s_lshl_b32 s28, s27, 12")
            k(f"v_permlane32_swap_b32 v{T}, v{T+2}")
            k(f"v_permlane32_swap_b32 v{T+1}, v{T+3}")
            k("s_lshl_b32 s26, s21, 4")
            k("s_add_u32 s28, s28, s26")
            k(f"v_add_f32 v{T}, v{T}, v{T+2}")
            k(f"v_add_f32 v{T+1}, v{T+1}, v{T+3}")
            k("s_lshl_b32 s26, s24, 3")
            k("s_add_u32 s28, s28, s26")
            k(f"s_add_u32 s28, s28, {WS_ST}")
            k("s_mov_b32 exec_hi, 0")
            k(f"buffer_store_dwordx2 v[{T}:{T+1}], v5, s[16:19], s28 offen")
        else:
            for r in range(8):
                k(f"v_lshlrev_b32 v{T}, 16, v{EP+r}")
                k(f"v_and_b32 v{T+1}, 0xffff0000, v{EP+r}")
                k(f"v_lshlrev_b32 v{T+2}, 16, v{EP+8+r}")
                k(f"v_and_b32 v{T+3}, 0xffff0000, v{EP+8+r}")
                k(f"v_add_f32 v{A0+2*r}, v{A0+2*r}, v{T+2}")
                k(f"v_add_f32 v{A0+2*r+1}, v{A0+2*r+1}, v{T+3}")
                k(f"v_add_f32 v{A0+2*r}, v{A0+2*r}, v{T}")
                k(f"v_add_f32 v{A0+2*r+1}, v{A0+2*r+1}, v{T+1}")
            for r in range(8):
                k(f"v_cvt_pk_bf16_f32 v{PK+r}, v{A0+2*r}, v{A0+2*r+1}")
            k("v_lshlrev_b32 v5, 10, v3")
            k("v_lshl_add_u32 v5, v4, 4, v5")
            for pr in range(2):
                k(f"v_permlane32_swap_b32 v{PK+4*pr}, v{PK+2+4*pr}")
                k(f"v_permlane32_swap_b32 v{PK+1+4*pr}, v{PK+3+4*pr}")
            k("s_lshl_b32 s28, s27, 15")
            k("s_lshl_b32 s26, s21, 7")
            k("s_add_u32 s28, s28, s26")
            k("s_lshl_b32 s26, s24, 6")
            k("s_add_u32 s28, s28, s26")
            k(f"buffer_store_dwordx4 {vr(PK,4)}, v5, s[44:47], s28 offen")
            k(f"buffer_store_dwordx4 {vr(PK+4,4)}, v5, s[44:47], s28 offen offset:32")
    hk = dict(srds_a=srds_a, srds_w=srds_w, cons_pre=cons_pre, epilogue=epilogue)
    if kind == "wo":
        XB = NS*SZ
        def prod_pre(k):
            k("v_mov_b32 v28, 0")
            k(f"v_mov_b32 v29, {XB + 128}")
            k("s_mov_b32 s42, 0")
            k("ds_write_b32 v29, v28")
            k("s_waitcnt lgkmcnt(0)")
        def prod_late(k):
            k("s_mov_b32 s50, %d" % (512*3584)); k("s_mov_b32 s51, 0x00020000")
            k("s_and_b32 s40, s2, 7")
            k("s_lshr_b32 s41, s40, 1"); k("s_mul_i32 s41, s41, 28"); k("s_add_u32 s41, s41, s25")
            k("s_and_b32 s40, s40, 1"); k("s_mul_i32 s40, s40, 112"); k("s_add_u32 s41, s41, s40")
            k("s_min_u32 s41, s41, 223")
            k("s_lshl_b32 s43, s41, 4")
            k("s_mul_i32 s44, s23, %d" % (128*3584)); k("s_add_u32 s40, s43, s44")
            k("v_mul_u32_u24 v30, 3584, v1")
            k("buffer_load_dwordx4 v[40:43], v30, s[48:51], s40 offen")
            k("s_add_u32 s40, s40, %d" % (64*3584))
            k("buffer_load_dwordx4 v[44:47], v30, s[48:51], s40 offen")
            k("s_mov_b32 s54, 3584"); k("s_mov_b32 s55, 0x00020000")
            k("v_mov_b32 v31, 0")
            k("buffer_load_dwordx4 v[72:75], v31, s[52:55], s43 offen")
        def prod_post(k):
            lab = k.label("cs")
            k("s_cmp_ge_u32 s25, 28")
            k(f"s_cbranch_scc1 {lab}")
            for q in range(4):
                k(f"v_lshlrev_b32 v{8+2*q}, 16, v{40+q}")
                k(f"v_and_b32 v{9+2*q}, 0xffff0000, v{40+q}")
                k(f"v_lshlrev_b32 v16, 16, v{44+q}")
                k(f"v_and_b32 v17, 0xffff0000, v{44+q}")
                k(f"v_add_f32 v{8+2*q}, v{8+2*q}, v16")
                k(f"v_add_f32 v{9+2*q}, v{9+2*q}, v17")
            for mode in ["row_shr:1", "row_shr:2", "row_shr:4", "row_shr:8", "row_bcast:15 row_mask:0xa", "row_bcast:31 row_mask:0xc"]:
                k("s_nop 1")
                for r in range(8):
                    m = mode if "row_mask" in mode else mode + " row_mask:0xf"
                    k(f"v_add_f32_dpp v{8+r}, v{8+r}, v{8+r} {m} bank_mask:0xf")
            k("s_lshl_b32 s40, s23, 5")
            k(f"s_add_u32 s40, s40, {XB}")
            k("v_mov_b32 v2, s40")
            k("v_mov_b32 v18, 1")
            k("s_mov_b32 exec_lo, 0")
            k("s_mov_b32 exec_hi, 0x80000000")
            k("ds_write_b128 v2, v[8:11]")
            k("ds_write_b128 v2, v[12:15] offset:16")
            k("s_waitcnt lgkmcnt(0)")
            k("ds_add_rtn_u32 v19, v29, v18")
            k("s_waitcnt lgkmcnt(0)")
            k("v_readlane_b32 s42, v19, 63")
            k("s_mov_b64 exec, -1")
            k(f"{lab}:")
        def prod_fin(k):
            lab = k.label("cs")
            k("s_cmp_lg_u32 s42, 3")
            k(f"s_cbranch_scc1 {lab}")
            k("s_mov_b32 exec_lo, 0")
            k("s_mov_b32 exec_hi, 0x80000000")
            k(f"v_mov_b32 v2, {XB}")
            for p_ in range(4):
                k(f"ds_read_b128 {vr(40+8*p_,4)}, v2 offset:{p_*32}")
                k(f"ds_read_b128 {vr(44+8*p_,4)}, v2 offset:{p_*32+16}")
            k("s_waitcnt lgkmcnt(0)")
            for r in range(8):
                k(f"v_add_f32 v{40+r}, v{40+r}, v{48+r}")
                k(f"v_add_f32 v{56+r}, v{56+r}, v{64+r}")
                k(f"v_add_f32 v{40+r}, v{40+r}, v{56+r}")
            for q in range(4):
                k(f"v_lshlrev_b32 v{16+2*q}, 16, v{72+q}")
                k(f"v_and_b32 v{17+2*q}, 0xffff0000, v{72+q}")
            k("s_lshl_b32 s40, s41, 5")
            k(f"s_add_u32 s40, s40, {WS_CS1}")
            k("s_mov_b32 s18, %d" % WS_END); k("s_mov_b32 s19, 0x00020000")
            k("v_mov_b32 v2, 0")
            k("buffer_store_dwordx4 v[40:43], v2, s[16:19], s40 offen")
            k("buffer_store_dwordx4 v[44:47], v2, s[16:19], s40 offen offset:16")
            k("s_add_u32 s40, s40, 8192")
            k("buffer_store_dwordx4 v[16:19], v2, s[16:19], s40 offen")
            k("buffer_store_dwordx4 v[20:23], v2, s[16:19], s40 offen offset:16")
            k("s_mov_b64 exec, -1")
            k(f"{lab}:")
        def aprod_post(k):
            if os.environ.get("PFW1", "0") == "1":
                k("s_mov_b32 s50, %d" % (512*3584)); k("s_mov_b32 s51, 0x00020000")
                k("v_and_b32 v9, 15, v1")
                k("v_min_u32 v9, 13, v9")
                k("v_lshlrev_b32 v9, 7, v9")
                k("v_lshrrev_b32 v10, 4, v1")
                k("v_mul_u32_u24 v10, 3584, v10")
                k("v_add_u32 v9, v9, v10")
                k("s_lshl_b32 s26, s25, 2"); k("s_add_u32 s26, s26, s23"); k("s_mul_i32 s26, s26, %d" % (4*3584))
                k("s_and_b32 s40, s2, 1"); k("s_mul_i32 s40, s40, 1792"); k("s_add_u32 s26, s26, s40")
                k("buffer_load_dword v10, v9, s[48:51], s26 offen")
        hk.update(aprod_post=aprod_post)
        hk.update(prod_pre=prod_pre, prod_mid=prod_late, prod_chunk_post=lambda k, c, slot: prod_post(k) if c == 6 else None, prod_post=prod_fin)
        cfg["NMID"] = 3; cfg["MID_AT"] = 5
    gemm_core(k, name, cfg, hk)
    assert cfg["FREE"] <= EP
    k(f"{name}_done:")
    k("s_endpgm")
    return k

def colsum_chunk(k, addr_regs, slot, kstride, second, acc):
    for s_ in range(4):
        off = slot + s_*kstride
        hi = off >> 16; lo = off & 0xffff
        if lo + second > 65535: hi += 1; lo -= 65536
        assert lo >= 0
        k(f"ds_read_b64_tr_b16 {vr(32+4*s_,2)}, v{addr_regs[hi]} offset:{lo}")
        k(f"ds_read_b64_tr_b16 {vr(34+4*s_,2)}, v{addr_regs[hi]} offset:{lo+second}")
    for s_ in range(4):
        k(f"s_waitcnt lgkmcnt({2*(3-s_)})")
        for q in range(4):
            r = 32 + 4*s_ + q; t = 48 + 2*(q & 1)
            k(f"v_lshlrev_b32 v{t}, 16, v{r}")
            k(f"v_and_b32 v{t+1}, 0xffff0000, v{r}")
            k(f"v_pk_add_f32 v[{acc}:{acc+1}], v[{acc}:{acc+1}], v[{t}:{t+1}]")

def make_mlp1(ST=False):
    name = "mlp1_kernel"
    NS = 4; SZ = 32768; CSB = NS*SZ; STB = CSB + 1024
    k = Kern(name, 224, 768, CSB + 1024 + 2048, 128)
    common_head(k, name, 224, ST)
    k("s_load_dwordx2 s[16:17], s[0:1], 80")
    k("s_load_dwordx4 s[4:7], s[0:1], 32")
    k("s_load_dwordx2 s[44:45], s[0:1], 48")
    k("s_and_b32 s24, s2, 7")
    k("s_lshr_b32 s25, s2, 3")
    k("s_lshr_b32 s20, s24, 1")
    k("s_lshl_b32 s20, s20, 2")
    k("s_and_b32 s26, s25, 3")
    k("s_add_u32 s20, s20, s26")
    k("s_and_b32 s21, s24, 1")
    k("s_mul_i32 s21, s21, 7")
    k("s_lshr_b32 s29, s25, 2")
    k("s_add_u32 s21, s21, s29")
    if ROT[2] == "0": k("s_mov_b32 s29, 0")
    ids(k)
    k("s_lshl_b32 s30, s20, 17")
    k(f"s_add_u32 s30, s30, {WS_H}")
    k("s_lshl_b32 s32, s21, 8")
    cfg = dict(NTT=4, NG=4, KC=4, NCH=8, NS=NS, AHEAD=2, a_mode="frag", a_srd=16, w_srd=8, w_stride=3584, perm="pi",
               a_tile_stride=32768, wave_ntt=2, wave_ng=2, NSET=2, ST=ST)
    def srds_a(k):
        k("s_mov_b32 s18, %d" % WS_END); k("s_mov_b32 s19, 0x00020000")
    def srds_w(k):
        k.srd(8, 4, 512*3584)
    C0 = -2.0 * 1.4426950408889634 * 0.7978845608028654
    C1 = C0 * 0.044715
    def aprod_pre(k):
        k("v_and_b32 v3, 31, v1")
        k("v_lshrrev_b32 v4, 5, v1")
        k("v_lshlrev_b32 v6, 7, v3")
        k("v_lshl_add_u32 v6, v4, 6, v6")
        k("s_lshl_b32 s27, s20, 2")
        k("s_add_u32 s27, s27, s23")
        k("s_lshl_b32 s31, s27, 12")
        k(f"s_add_u32 s31, s31, {WS_ST}")
        for q in range(4):
            k(f"buffer_load_dwordx4 {vr(64+4*q,4)}, v6, s[16:19], s31 offen offset:{q*16}")
    def aprod_init(k, nafter):
        b = 64
        k(f"s_waitcnt vmcnt({nafter})")
        for q in range(1, 8):
            k(f"v_add_f32 v{b}, v{b}, v{b+2*q}")
            k(f"v_add_f32 v{b+1}, v{b+1}, v{b+1+2*q}")
        k(f"v_mov_b32 v{b+2}, v{b}")
        k(f"v_mov_b32 v{b+3}, v{b+1}")
        k("s_nop 1")
        k(f"v_permlane32_swap_b32 v{b}, v{b+2}")
        k(f"v_permlane32_swap_b32 v{b+1}, v{b+3}")
        k("s_nop 0")
        k(f"v_add_f32 v{b}, v{b}, v{b+2}")
        k(f"v_add_f32 v{b+1}, v{b+1}, v{b+3}")
        k(f"v_mul_f32 v{b}, {f32(1/512)}, v{b}")
        k(f"v_mul_f32 v{b+1}, {f32(1/512)}, v{b+1}")
        k(f"v_fma_f32 v{b+1}, -v{b}, v{b}, v{b+1}")
        k(f"v_max_f32 v{b+1}, 0, v{b+1}")
        k(f"v_add_f32 v{b+2}, {f32(1e-5)}, v{b+1}")
        k(f"v_rsq_f32 v{b+3}, v{b+2}")
        k(f"v_sub_f32 v{b+9}, 0, v{b}")
        k(f"v_mul_f32 v{b+4}, v{b+3}, v{b+3}")
        k(f"v_mul_f32 v{b+4}, v{b+4}, v{b+1}")
        k(f"v_add_f32 v{b+4}, {f32(1e-5)}, v{b+4}")
        k(f"v_rsq_f32 v{b+4}, v{b+4}")
        k("s_nop 0")
        k(f"v_mul_f32 v{b+5}, v{b+3}, v{b+4}")
        k(f"v_rcp_f32 v{b+8}, v{b+5}")
        k(f"v_mul_f32 v{b+10}, {f32(C0)}, v{b+5}")
        k(f"v_mul_f32 v{b+11}, v{b+5}, v{b+5}")
        k(f"v_mul_f32 v{b+11}, v{b+11}, v{b+5}")
        k(f"v_mul_f32 v{b+11}, {f32(C1)}, v{b+11}")
        k("v_lshlrev_b32 v5, 4, v3")
        k("s_lshl_b32 s26, s23, 9")
        k(f"s_add_u32 s26, s26, {STB}")
        k("v_add_u32 v5, s26, v5")
        k(f"ds_write_b128 v5, {vr(b+8,4)}")
        k("s_waitcnt lgkmcnt(0)")
        k("s_barrier")
    def aprod_post(k):
        if os.environ.get("PFW2", "1") == "1": w2touch(k)
    def w2touch(k):
        if True:
            k("s_mov_b32 s46, %d" % (1792*1024)); k("s_mov_b32 s47, 0x00020000")
            k("v_lshlrev_b32 v7, 7, v1")
            k("s_lshl_b32 s26, s25, 2"); k("s_add_u32 s26, s26, s23"); k("s_lshl_b32 s26, s26, 14")
            k("buffer_load_dword v8, v7, s[44:47], s26 offen")
            k("s_add_u32 s26, s26, 8192")
            k("buffer_load_dword v8, v7, s[44:47], s26 offen")
    def prod_pre(k):
        k("v_and_b32 v9, 31, v1")
        k("v_lshlrev_b32 v11, 2, v9")
        k("s_mov_b32 s18, %d" % WS_END); k("s_mov_b32 s19, 0x00020000")
        k("s_lshl_b32 s26, s21, 9")
        k("s_lshl_b32 s27, s23, 7")
        k("s_add_u32 s26, s26, s27")
        k(f"s_add_u32 s26, s26, {WS_CS1}")
        k("buffer_load_dword v24, v11, s[16:19], s26 offen")
        k("s_add_u32 s26, s26, 8192")
        k("buffer_load_dword v20, v11, s[16:19], s26 offen")
    def prod_init(k, nafter):
        k(f"s_waitcnt vmcnt({nafter})")
        k("s_lshl_b32 s26, s23, 7")
        k(f"s_add_u32 s26, s26, {CSB}")
        k("v_add_u32 v5, s26, v11")
        k("ds_write_b32 v5, v20 offset:512")
        k("ds_write_b32 v5, v24")
        k("s_waitcnt lgkmcnt(0)")
        k("s_barrier")
    def cons_pre(k):
        k("s_and_b32 s23, s22, 2")
        k("s_and_b32 s24, s22, 1")
        k("s_lshl_b32 s24, s24, 1")
        k("v_and_b32 v3, 31, v1")
        k("v_lshrrev_b32 v4, 5, v1")
        k("v_lshlrev_b32 v2, 4, v1")
        k("s_lshl_b32 s27, s20, 2")
        k("s_add_u32 s27, s27, s23")
        k("s_waitcnt lgkmcnt(0)")
        k("s_mov_b32 s18, %d" % WS_END); k("s_mov_b32 s19, 0x00020000")
        code_prefetch(k, "mlp2_kernel", 1, 124, 80, wave_val=0)
    def acc_init(k, cfg):
        ACC = cfg["ACC"]
        k("v_lshlrev_b32 v5, 4, v4")
        k("s_lshl_b32 s26, s24, 7")
        k(f"s_add_u32 s26, s26, {CSB}")
        k("v_add_u32 v5, s26, v5")
        k("v_lshlrev_b32 v6, 4, v3")
        k("s_lshl_b32 s26, s23, 9")
        k(f"s_add_u32 s26, s26, {STB}")
        k("v_add_u32 v6, s26, v6")
        k("s_barrier")
        F = 28
        k(f"ds_read_b128 v[8:11], v6")
        k(f"ds_read_b128 v[12:15], v6 offset:512")
        P2 = lambda b, r: vr(b+2*r, 2)
        for g in range(2):
            for rr in range(4):
                k(f"ds_read_b128 {vr(ACC+16*g+4*rr,4)}, v5 offset:{512+g*128+rr*32}")
                k(f"ds_read_b128 {vr(ACC+32+16*g+4*rr,4)}, v5 offset:{g*128+rr*32}")
        k("s_waitcnt lgkmcnt(15)")
        k("s_waitcnt lgkmcnt(8)")
        for i in range(2):
            k(f"v_mov_b32 v{F+8+4*i}, v{8+4*i}")
            k(f"v_mov_b32 v{F+9+4*i}, v{8+4*i}")
            k(f"v_mov_b32 v{F+10+4*i}, v{9+4*i}")
            k(f"v_mov_b32 v{F+11+4*i}, v{9+4*i}")
        T = F + 16
        for g in range(2):
            if g == 1: k("s_waitcnt lgkmcnt(0)")
            B = ACC + 16*g; C = ACC + 32 + 16*g
            for r in range(8): k(f"v_pk_mul_f32 {P2(T,r)}, {P2(B,r)}, {vr(F+12,2)}")
            for r in range(8): k(f"v_pk_mul_f32 {P2(B,r)}, {P2(B,r)}, {vr(F+8,2)}")
            for r in range(8): k(f"v_pk_fma_f32 {P2(B,r)}, {P2(C,r)}, {vr(F+10,2)}, {P2(B,r)}")
            for r in range(8): k(f"v_pk_fma_f32 {P2(C,r)}, {P2(C,r)}, {vr(F+14,2)}, {P2(T,r)}")
    def epilogue(k, cfg):
        ACC = cfg["ACC"]
        k(f"s_mul_i32 s30, s27, {112*1024}")
        k("s_lshl_b32 s26, s21, 13")
        k("s_add_u32 s30, s30, s26")
        k("s_lshl_b32 s26, s24, 11")
        k("s_add_u32 s30, s30, s26")
        k(f"s_add_u32 s30, s30, {WS_G}")
        for i in range(2):
            for j, src in enumerate([8+4*i, 10+4*i, 11+4*i]):
                k(f"v_mov_b32 v{16+6*i+2*j}, v{src}")
                k(f"v_mov_b32 v{17+6*i+2*j}, v{src}")
        P2 = lambda b, r: vr(b+2*r, 2)
        T = [28, 44]
        order = [(0,0), (1,0), (0,1), (1,1)]
        def stage1(n):
            i, g = order[n]; acc = ACC + 16*(i*2+g); TT = T[n & 1]; c = 16 + 6*i
            for r in range(8): k(f"v_pk_mul_f32 {P2(TT,r)}, {P2(acc,r)}, {P2(acc,r)}")
            for r in range(8): k(f"v_pk_fma_f32 {P2(TT,r)}, {P2(TT,r)}, {vr(c+4,2)}, {vr(c+2,2)}")
            for r in range(8): k(f"v_pk_mul_f32 {P2(TT,r)}, {P2(TT,r)}, {P2(acc,r)}")
        def stage2(n):
            i, g = order[n]; acc = ACC + 16*(i*2+g); TT = T[n & 1]; c = 16 + 6*i
            for r in range(16): k(f"v_exp_f32 v{TT+r}, v{TT+r}")
            for r in range(8): k(f"v_pk_fma_f32 {P2(TT,r)}, {P2(TT,r)}, {vr(c,2)}, {vr(c,2)}")
            for r in range(16): k(f"v_rcp_f32 v{TT+r}, v{TT+r}")
            for r in range(8): k(f"v_pk_mul_f32 {P2(acc,r)}, {P2(acc,r)}, {P2(TT,r)}")
            for r in range(8): k(f"v_cvt_pk_bf16_f32 v{acc+r}, v{acc+2*r}, v{acc+2*r+1}")
            k(f"s_add_u32 s26, s30, {i*112*1024 + g*2048}")
            k(f"buffer_store_dwordx4 {vr(acc,4)}, v2, s[16:19], s26 offen")
            k(f"buffer_store_dwordx4 {vr(acc+4,4)}, v2, s[16:19], s26 offen offset:1024")
        for n in range(4):
            stage1(n); stage2(n)
    hk = dict(srds_a=srds_a, srds_w=srds_w, aprod_pre=aprod_pre, aprod_init=aprod_init, aprod_post=aprod_post, prod_pre=prod_pre, prod_init=prod_init,
              cons_pre=cons_pre, acc_init=acc_init, epilogue=epilogue)
    if os.environ.get("PFW2", "1").startswith("m"):
        hk["aprod_mid"] = w2touch; cfg["ANMID"] = 2; cfg["AMID_AT"] = int(os.environ["PFW2"][1:])
    gemm_core(k, name, cfg, hk)
    assert cfg["FREE"] <= 128 and cfg["ACC"] == 60
    k(f"{name}_done:")
    k("s_endpgm")
    return k

def make_qkv(ST=False, FUSED=False):
    name = "qkv_kernel"
    NS = 5; SZ = 16384 + 12288
    SCR = NS*SZ; CSB = SCR + 16384; STB = CSB + 512
    ONES = 10; CSA = 112
    k = Kern(name, 256, 1024, 163840, 128)
    common_head(k, name, 256, ST)
    k("s_load_dwordx4 s[4:7], s[0:1], 0")
    k("s_load_dwordx2 s[16:17], s[0:1], 80")
    if FUSED: k("s_load_dwordx4 s[48:51], s[0:1], 32")
    if os.environ.get("SELFPF", "0") == "1":
        sk = k.label("spf")
        k("s_cmp_ge_u32 s2, 8")
        k(f"s_cbranch_scc1 {sk}")
        lab = k.label("pc")
        k("s_getpc_b64 s[80:81]")
        k(f"{lab}:")
        k(f"s_sub_u32 s80, s80, {lab}-qkv_kernel")
        k("s_subb_u32 s81, s81, 0")
        k("v_lshlrev_b32 v103, 7, v0")
        k("v_min_u32 v103, qkv_kernel_end-qkv_kernel-4, v103")
        k("v_mov_b32 v101, s81")
        k("v_add_co_u32 v100, vcc, s80, v103")
        k("s_nop 1")
        k("v_addc_co_u32 v101, vcc, 0, v101, vcc")
        k("v_cmp_gt_u32 vcc, 128, v0")
        k("s_nop 1")
        k("s_and_saveexec_b64 s[84:85], vcc")
        k(f"s_cbranch_execz {sk}r")
        k("global_load_dword v102, v[100:101], off")
        k(f"{sk}r:")
        k("s_mov_b64 exec, s[84:85]")
        k(f"{sk}:")
    k("s_and_b32 s24, s2, 7")
    k("s_lshr_b32 s25, s2, 3")
    k("s_lshr_b32 s20, s24, 1")
    k("s_lshl_b32 s20, s20, 2")
    k("s_and_b32 s26, s25, 3")
    k("s_add_u32 s20, s20, s26")
    k("s_and_b32 s21, s24, 1")
    k("s_lshl_b32 s21, s21, 3")
    k("s_lshr_b32 s27, s25, 2")
    k("s_add_u32 s21, s21, s27")
    k("s_lshl_b32 s26, s26, 1")
    k("s_add_u32 s29, s26, s27")
    k("s_and_b32 s29, s29, 7")
    if ROT[0] == "0": k("s_mov_b32 s29, 0")
    ids(k)
    k("s_lshl_b32 s30, s20, 17")
    k("s_mul_i32 s32, s21, 192")
    cfg = dict(NTT=4, NG=3, KC=4, NCH=8, NS=NS, AHEAD=int(AH[0]), a_mode="rows", a_srd=8, w_srd=12, w_stride=3072, perm="nat",
               wave_ntt=1, wave_ng=3, NSET=2, ST=ST, NVAR=3)
    def srds_a(k):
        k.srd(8, 4, 2048*1024)
    def srds_w(k):
        k.srd(12, 6, 512*3072)
    XB = STB + 2048
    def prod_pre(k):
        k("v_mov_b32 v28, 0")
        k(f"v_mov_b32 v29, {XB + 128}")
        k("s_mov_b32 s46, 0")
        k("ds_write_b32 v29, v28")
        k("s_waitcnt lgkmcnt(0)")
    def prod_mid(k):
        k("s_mov_b64 s[52:53], s[50:51]")
        k("s_mov_b32 s54, 3584"); k("s_mov_b32 s55, 0x00020000")
        k("s_mov_b32 s50, %d" % (512*3584)); k("s_mov_b32 s51, 0x00020000")
        k("s_min_u32 s41, s2, 223")
        k("s_lshl_b32 s43, s41, 4")
        k("s_mul_i32 s44, s23, %d" % (128*3584)); k("s_add_u32 s40, s43, s44")
        k("v_mul_u32_u24 v30, 3584, v1")
        k("buffer_load_dwordx4 v[40:43], v30, s[48:51], s40 offen")
        k("s_add_u32 s40, s40, %d" % (64*3584))
        k("buffer_load_dwordx4 v[44:47], v30, s[48:51], s40 offen")
        k("v_mov_b32 v31, 0")
        k("buffer_load_dwordx4 v[72:75], v31, s[52:55], s43 offen")
    def prod_red(k):
        lab = k.label("cs")
        k("s_cmp_ge_u32 s2, 224")
        k(f"s_cbranch_scc1 {lab}")
        for q in range(4):
            k(f"v_lshlrev_b32 v{8+2*q}, 16, v{40+q}")
            k(f"v_and_b32 v{9+2*q}, 0xffff0000, v{40+q}")
            k(f"v_lshlrev_b32 v16, 16, v{44+q}")
            k(f"v_and_b32 v17, 0xffff0000, v{44+q}")
            k(f"v_add_f32 v{8+2*q}, v{8+2*q}, v16")
            k(f"v_add_f32 v{9+2*q}, v{9+2*q}, v17")
        for mode in ["row_shr:1", "row_shr:2", "row_shr:4", "row_shr:8", "row_bcast:15 row_mask:0xa", "row_bcast:31 row_mask:0xc"]:
            k("s_nop 1")
            for r in range(8):
                m = mode if "row_mask" in mode else mode + " row_mask:0xf"
                k(f"v_add_f32_dpp v{8+r}, v{8+r}, v{8+r} {m} bank_mask:0xf")
        k("s_lshl_b32 s40, s23, 5")
        k(f"s_add_u32 s40, s40, {XB}")
        k("v_mov_b32 v2, s40")
        k("v_mov_b32 v18, 1")
        k("s_mov_b32 exec_lo, 0")
        k("s_mov_b32 exec_hi, 0x80000000")
        k("ds_write_b128 v2, v[8:11]")
        k("ds_write_b128 v2, v[12:15] offset:16")
        k("s_waitcnt lgkmcnt(0)")
        k("ds_add_rtn_u32 v19, v29, v18")
        k("s_waitcnt lgkmcnt(0)")
        k("v_readlane_b32 s46, v19, 63")
        k("s_mov_b64 exec, -1")
        k(f"{lab}:")
    def prod_fin(k):
        lab = k.label("cs")
        k("s_cmp_lg_u32 s46, 3")
        k(f"s_cbranch_scc1 {lab}")
        k("s_mov_b32 exec_lo, 0")
        k("s_mov_b32 exec_hi, 0x80000000")
        k(f"v_mov_b32 v2, {XB}")
        for p_ in range(4):
            k(f"ds_read_b128 {vr(40+8*p_,4)}, v2 offset:{p_*32}")
            k(f"ds_read_b128 {vr(44+8*p_,4)}, v2 offset:{p_*32+16}")
        k("s_waitcnt lgkmcnt(0)")
        for r in range(8):
            k(f"v_add_f32 v{40+r}, v{40+r}, v{48+r}")
            k(f"v_add_f32 v{56+r}, v{56+r}, v{64+r}")
            k(f"v_add_f32 v{40+r}, v{40+r}, v{56+r}")
        for q in range(4):
            k(f"v_lshlrev_b32 v{16+2*q}, 16, v{72+q}")
            k(f"v_and_b32 v{17+2*q}, 0xffff0000, v{72+q}")
        k("s_lshl_b32 s40, s41, 5")
        k(f"s_add_u32 s40, s40, {WS_CS1}")
        k("s_mov_b32 s18, %d" % WS_END); k("s_mov_b32 s19, 0x00020000")
        k("v_mov_b32 v2, 0")
        k("buffer_store_dwordx4 v[40:43], v2, s[16:19], s40 offen")
        k("buffer_store_dwordx4 v[44:47], v2, s[16:19], s40 offen offset:16")
        k("s_add_u32 s40, s40, 8192")
        k("buffer_store_dwordx4 v[16:19], v2, s[16:19], s40 offen")
        k("buffer_store_dwordx4 v[20:23], v2, s[16:19], s40 offen offset:16")
        k("s_mov_b64 exec, -1")
        k(f"{lab}:")
    def helper_pre(k):
        if FUSED:
            lz = k.label("z")
            k("s_cmp_lg_u32 s2, 0"); k(f"s_cbranch_scc1 {lz}")
            k("s_cmp_lg_u32 s23, 0"); k(f"s_cbranch_scc1 {lz}")
            k("s_waitcnt lgkmcnt(0)")
            k("s_mov_b32 s18, %d" % WS_END); k("s_mov_b32 s19, 0x00020000")
            for r in range(4): k(f"v_mov_b32 v{96+r}, 0")
            k("v_lshlrev_b32 v100, 4, v1")
            k(f"s_mov_b32 s40, {WS_CNT}")
            k("buffer_store_dwordx4 v[96:99], v100, s[16:19], s40 offen")
            k(f"{lz}:")
        if os.environ.get("SELFPF", "0") == "2": code_prefetch(k, "qkv_kernel", 2, 104, 80, wave_val=13, backward=True)
        code_prefetch(k, "post_kernel" if FUSED else "att_kernel", 3 if FUSED else 2, 104, 80, wave_val=12)
        if os.environ.get("TLB", "0") == "1":
            lab = k.label("tlb")
            k("s_cmp_lg_u32 s25, 0")
            k(f"s_cbranch_scc1 {lab}")
            k("s_cmp_lg_u32 s23, 3")
            k(f"s_cbranch_scc1 {lab}")
            k("s_load_dwordx4 s[40:43], s[0:1], 16")
            k("s_load_dwordx8 s[44:51], s[0:1], 32")
            k("s_load_dwordx2 s[52:53], s[0:1], 64")
            k("s_waitcnt lgkmcnt(0)")
            k("s_mov_b32 s18, %d" % WS_END); k("s_mov_b32 s19, 0x00020000")
            k("v_lshlrev_b32 v100, 21, v1")
            k("buffer_load_dword v101, v100, s[16:19], 0 offen")
            k("v_mov_b32 v100, 0")
            for base, size in [(40, 512*1024), (44, 512*3584), (46, 3584), (48, 1792*1024), (50, 1024), (52, 2048*1024)]:
                k.srd(56, base, size)
                k("buffer_load_dword v101, v100, s[56:59], 0 offen")
            k(f"{lab}:")
        if os.environ.get("TOUCH", "0") == "1":
            k("s_waitcnt lgkmcnt(0)")
            k.srd(8, 4, 2048*1024)
            k.srd(12, 6, 512*3072)
            k("s_and_b32 s40, s25, 3")
            k("s_lshr_b32 s41, s25, 2")
            lab = k.label("t"); lab2 = k.label("t")
            k("s_cmp_ge_u32 s23, 2")
            k(f"s_cbranch_scc1 {lab}")
            k("v_lshlrev_b32 v40, 7, v1")
            k("s_lshl_b32 s42, s41, 14"); k("s_lshl_b32 s43, s23, 13"); k("s_add_u32 s42, s42, s43"); k("s_add_u32 s42, s42, s30")
            k("buffer_load_dword v41, v40, s[8:11], s42 offen")
            k(f"{lab}:")
            k("v_lshrrev_b32 v40, 1, v1")
            k("v_mul_u32_u24 v40, 3072, v40")
            k("v_and_b32 v42, 1, v1")
            k("v_lshl_add_u32 v40, v42, 7, v40")
            k("s_lshl_b32 s42, s40, 7"); k("s_lshl_b32 s43, s23, 5"); k("s_add_u32 s42, s42, s43"); k("s_mul_i32 s42, s42, 3072"); k("s_add_u32 s42, s42, s32")
            k("buffer_load_dword v41, v40, s[12:15], s42 offen")
        k("v_lshrrev_b32 v4, 5, v1")
        k("v_and_b32 v5, 31, v1")
        k("v_bfe_u32 v6, v1, 1, 3")
        k("v_xor_b32 v6, v6, v4")
        k("v_lshlrev_b32 v6, 4, v6")
        k("v_lshl_add_u32 v6, v5, 7, v6")
        k("s_lshl_b32 s26, s23, 12")
        k("v_add_u32 v20, s26, v6")
        for s_ in range(1, 4): k(f"v_xor_b32 v{20+s_}, {s_*32}, v20")
        for s_ in range(4): k(f"v_add_u32 v{24+s_}, 0x10000, v{20+s_}")
        for r in range(28, 32): k(f"v_mov_b32 v{r}, 0")
    def stat_ops(k, base):
        for s_ in range(4):
            for q in range(4):
                r = base + 4*s_ + q
                t = 64 + 2*(q & 1)
                k(f"v_lshlrev_b32 v{t}, 16, v{r}")
                k(f"v_and_b32 v{t+1}, 0xffff0000, v{r}")
                k(f"v_add_f32 v28, v28, v{t}")
                k(f"v_add_f32 v29, v29, v{t+1}")
                k(f"v_fmac_f32 v30, v{t}, v{t}")
                k(f"v_fmac_f32 v31, v{t+1}, v{t+1}")
    def helper_chunk(k, c, slot):
        base = 32 + 16*(c & 1)
        for s_ in range(4):
            if slot >= 65536: k(f"ds_read_b128 {vr(base+4*s_,4)}, v{24+s_} offset:{slot-65536}")
            else: k(f"ds_read_b128 {vr(base+4*s_,4)}, v{20+s_} offset:{slot}")
        if c > 0: stat_ops(k, 32 + 16*((c-1) & 1))
        k("s_waitcnt lgkmcnt(0)")
        if c == 7: stat_ops(k, base)
    def helper_post(k):
        k("v_add_f32 v28, v28, v29")
        k("v_add_f32 v30, v30, v31")
        k("v_mov_b32 v29, v28")
        k("v_mov_b32 v31, v30")
        k("s_nop 1")
        k("v_permlane32_swap_b32 v28, v29")
        k("v_permlane32_swap_b32 v30, v31")
        k("s_nop 0")
        k("v_add_f32 v28, v28, v29")
        k("v_add_f32 v30, v30, v31")
        k(f"v_mul_f32 v28, {f32(1/512)}, v28")
        k(f"v_mul_f32 v30, {f32(1/512)}, v30")
        k("v_fma_f32 v30, -v28, v28, v30")
        k("v_max_f32 v30, 0, v30")
        k(f"v_add_f32 v30, {f32(1e-5)}, v30")
        k("v_rsq_f32 v30, v30")
        k("v_lshlrev_b32 v5, 3, v1")
        k("v_mul_f32 v31, v28, v30")
        k("v_sub_f32 v31, 0, v31")
        k("s_lshl_b32 s26, s23, 9")
        k(f"s_add_u32 s26, s26, {STB}")
        k("v_add_u32 v5, s26, v5")
        k("ds_write_b64 v5, v[30:31]")
        k("s_waitcnt lgkmcnt(0)")
        k("s_barrier")
    def cons_pre(k):
        k("s_mov_b32 s23, s22")
        k("s_mov_b32 s24, 0")
        k("v_and_b32 v3, 31, v1")
        k("v_lshrrev_b32 v4, 5, v1")
        k("v_lshlrev_b32 v2, 4, v1")
        for r in range(4): k(f"v_mov_b32 v{ONES+r}, 0x3f803f80")
        for r in range(16): k(f"v_mov_b32 v{CSA+r}, 0")
        k("s_min_u32 s36, s22, 2")
        k("s_waitcnt lgkmcnt(0)")
        k("s_mov_b32 s18, %d" % (6 << 20)); k("s_mov_b32 s19, 0x00020000")
    def after_step(k, s_, fwf):
        k(f"v_mfma_f32_32x32x16_bf16 {vr(CSA,16)}, {vr(fwf(cfg['VAR']),4)}, {vr(ONES,4)}, {vr(CSA,16)}")
    def epilogue(k, cfg):
        ACC = cfg["ACC"]
        k("v_lshlrev_b32 v5, 4, v4")
        k("s_lshl_b32 s26, s36, 7")
        k(f"s_add_u32 s26, s26, {CSB}")
        k("v_add_u32 v11, s26, v5")
        k("s_mov_b32 exec_lo, 1")
        k("s_mov_b32 exec_hi, 1")
        k("s_nop 4")
        for rr in range(4):
            k(f"ds_write_b128 v11, {vr(CSA+4*rr,4)} offset:{rr*32}")
        k("s_mov_b64 exec, -1")
        k("s_lshl_b32 s27, s20, 2")
        k("s_add_u32 s27, s27, s22")
        k("s_lshl_b32 s27, s27, 10")
        k("s_mul_i32 s28, s21, 3")
        QS = 0.25 * 1.4426950408889634
        k("s_lshl_b32 s31, s22, 13")
        k("v_mul_u32_u24 v6, 72, v3")
        k("v_lshl_add_u32 v6, v4, 3, v6")
        k("v_add_u32 v6, s31, v6")
        k("v_bfe_u32 v7, v1, 2, 2")
        k("v_lshl_add_u32 v8, v4, 2, v7")
        k("v_mul_u32_u24 v8, 72, v8")
        k("v_bfe_u32 v7, v1, 4, 1")
        k("v_lshl_add_u32 v8, v7, 5, v8")
        k("v_and_b32 v7, 3, v1")
        k("v_lshl_add_u32 v8, v7, 3, v8")
        k("v_add_u32 v8, s31, v8")
        k("v_bfe_u32 v9, v1, 4, 1")
        k("v_lshlrev_b32 v9, 16, v9")
        k("v_lshl_add_u32 v9, v4, 8, v9")
        k("v_and_b32 v7, 15, v1")
        k("v_lshl_add_u32 v9, v7, 4, v9")
        k("v_lshlrev_b32 v5, 4, v4")
        k(f"v_add_u32 v5, {CSB}, v5")
        k("v_lshlrev_b32 v10, 3, v1")
        k("s_lshl_b32 s26, s22, 9")
        k(f"s_add_u32 s26, s26, {STB}")
        k("v_add_u32 v10, s26, v10")
        k("s_waitcnt lgkmcnt(0)")
        k("s_barrier")
        k("ds_read_b64 v[12:13], v10")
        CSR = [16, 32, 48]
        for g in range(3):
            for rr in range(4):
                k(f"ds_read_b128 {vr(CSR[g]+4*rr,4)}, v5 offset:{g*128+rr*32}")
        P2 = lambda b, r: vr(b+2*r, 2)
        for g in range(3):
            acc = ACC + 16*g; cs = CSR[g]
            lq = k.label("q"); lv = k.label("v"); le = k.label("e")
            k(f"s_add_u32 s33, s28, {g}")
            k(f"s_waitcnt lgkmcnt({8-4*g})")
            k("v_mov_b32 v114, v12")
            k("v_mov_b32 v116, v13")
            k("s_cmp_ge_u32 s33, 16")
            k(f"s_cbranch_scc1 {lq}")
            k(f"v_mul_f32 v114, {f32(QS)}, v114")
            k(f"v_mul_f32 v116, {f32(QS)}, v116")
            k(f"{lq}:")
            k("v_mov_b32 v115, v114")
            k("v_mov_b32 v117, v116")
            for r in range(8): k(f"v_pk_mul_f32 {P2(cs,r)}, {P2(cs,r)}, v[116:117]")
            for r in range(8): k(f"v_pk_fma_f32 {P2(acc,r)}, {P2(acc,r)}, v[114:115], {P2(cs,r)}")
            for r in range(8): k(f"v_cvt_pk_bf16_f32 v{acc+r}, v{acc+2*r}, v{acc+2*r+1}")
            k("s_lshr_b32 s34, s33, 4")
            k("s_lshl_b32 s34, s34, 21")
            k("s_and_b32 s35, s33, 15")
            k("s_lshl_b32 s35, s35, 17")
            k("s_add_u32 s34, s34, s35")
            k("s_add_u32 s34, s34, s27")
            k(f"s_mov_b32 s{40+g}, s34")
            k("s_cmp_ge_u32 s33, 32")
            k(f"s_cbranch_scc1 {lv}")
            k(f"buffer_store_dwordx4 {vr(acc,4)}, v2, s[16:19], s34 offen")
            k("s_add_u32 s34, s34, 65536")
            k(f"buffer_store_dwordx4 {vr(acc+4,4)}, v2, s[16:19], s34 offen")
            k(f"s_branch {le}")
            k(f"{lv}:")
            for rr in range(4):
                k(f"ds_write_b64 v6, {vr(acc+2*rr,2)} offset:{g*2304+rr*16}")
            k(f"{le}:")
        lend = k.label("ve")
        k("s_add_u32 s33, s28, 2")
        k("s_cmp_lt_u32 s33, 32")
        k(f"s_cbranch_scc1 {lend}")
        k("s_waitcnt lgkmcnt(0)")
        for g in range(3):
            acc = ACC + 16*g
            for j in range(2):
                k(f"ds_read_b64_tr_b16 {vr(acc+8+4*j,2)}, v8 offset:{g*2304+j*16*72}")
                k(f"ds_read_b64_tr_b16 {vr(acc+8+4*j+2,2)}, v8 offset:{g*2304+j*16*72+8*72}")
        for g in range(3):
            acc = ACC + 16*g
            ls = k.label("vs")
            k(f"s_waitcnt lgkmcnt({8-4*g})")
            k(f"s_add_u32 s33, s28, {g}")
            k("s_cmp_lt_u32 s33, 32")
            k(f"s_cbranch_scc1 {ls}")
            k(f"buffer_store_dwordx4 {vr(acc+8,4)}, v9, s[16:19], s{40+g} offen")
            k(f"buffer_store_dwordx4 {vr(acc+12,4)}, v9, s[16:19], s{40+g} offen offset:512")
            k(f"{ls}:")
        k(f"{lend}:")
    hk = dict(srds_a=srds_a, srds_w=srds_w, helper_pre=helper_pre, helper_chunk=helper_chunk, helper_post=helper_post,
              cons_pre=cons_pre, pre_step=after_step, epilogue=epilogue)
    if FUSED and False:
        def prod_all(k):
            k("s_waitcnt vmcnt(0)")
            prod_red(k); prod_fin(k)
        hk.update(prod_pre=prod_pre, prod_late=prod_mid, prod_post=prod_all)
        cfg["NLATE"] = 3
    gemm_core(k, name, cfg, hk)
    assert cfg["FREE"] <= 112 and cfg["ACC"] == 64
    k(f"{name}_done:")
    k("s_endpgm")
    return k
```
